```python
import torch

def _softmax(x, axis=-1):
    return torch.softmax(x, dim=axis)
def _gelu(x):
    return torch.nn.functional.gelu(x, approximate="tanh")
def _silu(x):
    return torch.nn.functional.silu(x)
def _sigmoid(x):
    return torch.sigmoid(x)
def _layernorm(x, axis=-1, eps=1e-5):
    m = x.mean(dim=axis, keepdim=True)
    v = x.var(dim=axis, keepdim=True, unbiased=False)
    return (x - m) / torch.sqrt(v + eps)
def _scatter_add(tgt, idx, src, axis=0):
    return tgt.clone().index_add_(axis, idx, src)
def _segment_sum(src, seg, n):
    out = torch.zeros((n,) + src.shape[1:], dtype=src.dtype)
    return out.index_add_(0, seg, src)
def _pad(x, pw):
    flat = tuple(v for pair in reversed(pw) for v in pair)
    return torch.nn.functional.pad(x, flat)

kernel_name = 'parallel_sum__grouped_kv_mqa__dense_activation_relu__prompt'

def setup_inputs():

    _w = (lambda a: (lambda t: t.to(torch.bfloat16) if t.is_floating_point() else t)(torch.as_tensor(a)))
    def _A_setup():
        B, S, D, H = 1, 2048, 512, 32
        Dh = D // H
        return {
            "x": _w((lambda *s: torch.randn(*s, dtype=torch.bfloat16) * 0.05)(B, S, D)),
            "wq": _w((lambda *s: torch.randn(*s, dtype=torch.bfloat16) * 0.2)(D, H * Dh)),
            "wk": _w((lambda *s: torch.randn(*s, dtype=torch.bfloat16) * 0.2)(D, Dh)),
            "wv": _w((lambda *s: torch.randn(*s, dtype=torch.bfloat16) * 0.1)(D, Dh)),
            "wo": _w((lambda *s: torch.randn(*s, dtype=torch.bfloat16) * 0.1)(H * Dh, D)),
        }
    _A_in = _A_setup()

    def _B_setup():
        B, S, D, Dff = 1, 2048, 512, 1376
        return {
            "x": _w((lambda *s: torch.randn(*s, dtype=torch.bfloat16) * 0.05)(B, S, D)),
            "w1": _w((lambda *s: torch.randn(*s, dtype=torch.bfloat16) * 0.1)(D, Dff)),
            "w2": _w((lambda *s: torch.randn(*s, dtype=torch.bfloat16) * 0.1)(Dff, D)),
        }
    _B_in = _B_setup()

    return {
        "A_x": _A_in["x"],
        "A_wq": _A_in["wq"],
        "A_wk": _A_in["wk"],
        "A_wv": _A_in["wv"],
        "A_wo": _A_in["wo"],
        "B_x": _B_in["x"],
        "B_w1": _B_in["w1"],
        "B_w2": _B_in["w2"],
    }

def reference(A_x, A_wq, A_wk, A_wv, A_wo, B_x, B_w1, B_w2):
    def _A_ref(x, wq, wk, wv, wo):
        B, S, D = x.shape
        H = 32
        Dh = D // H
        q = (lambda x, *d: x.permute(*d))((x @ wq).reshape(B, S, H, Dh), 0, 2, 1, 3)
        k = x @ wk
        v = x @ wv
        scores = torch.einsum("bhqd,bkd->bhqk", q, k) * (Dh ** -0.5)
        p = _softmax(scores, axis=-1)
        o = torch.einsum("bhqk,bkd->bhqd", p, v)
        return (lambda x, *d: x.permute(*d))(o, 0, 2, 1, 3).reshape(B, S, H * Dh) @ wo

    def _B_ref(x, w1, w2):
        h = torch.einsum("bsd,df->bsf", x, w1)
        zero = torch.zeros_like(h)
        h = torch.maximum(h, zero)
        return torch.einsum("bsf,fd->bsd", h, w2)

    x = A_x
    xn = _layernorm(x, axis=-1)
    return x + _A_ref(xn, A_wq, A_wk, A_wv, A_wo) + _B_ref(xn, B_w1, B_w2)
```

```python
import re

class Asm:
    def __init__(self):
        self.lines = []
        self._lab = 0
    def __call__(self, s):
        for ln in s.split("\n"):
            ln = ln.rstrip()
            if ln.strip():
                self.lines.append(ln if (ln.endswith(":") or ln.startswith(".") or ln.startswith(";")) else "    " + ln.strip())
    def label(self, name):
        self.lines.append(name + ":")
    def newlabel(self, base="L"):
        self._lab += 1
        return f"{base}_{self._lab}"
    def nop(self, n):
        while n > 0:
            k = min(n, 16)
            self(f"s_nop {k-1}")
            n -= k
    def text(self):
        return "\n".join(self.lines) + "\n"

def v(a, n=1):
    return f"v{a}" if n == 1 else f"v[{a}:{a+n-1}]"
def s(a, n=1):
    return f"s{a}" if n == 1 else f"s[{a}:{a+n-1}]"

_REG = re.compile(r"^[-|]*([vsa])(?:(\d+)|\[(\d+):(\d+)\])\|?$")
def regs_of(tok):
    tok = tok.strip()
    m = _REG.match(tok)
    if not m:
        if tok in ("vcc", "exec", "m0"): return [("x", tok)]
        return []
    k = m.group(1)
    if m.group(2) is not None:
        return [(k, int(m.group(2)))]
    return [(k, i) for i in range(int(m.group(3)), int(m.group(4)) + 1)]

TRANS = ("v_exp_", "v_log_", "v_rcp_", "v_rsq_", "v_sqrt_", "v_sin_", "v_cos_")
def mfma_passes(mn):
    if "32x32" in mn: return 8
    if "16x16" in mn: return 4
    raise ValueError(mn)

def parse(line):
    line = line.split(";")[0].strip()
    if not line or line.endswith(":") or line.startswith("."):
        return None
    parts = line.split(None, 1)
    mn = parts[0]
    ops = []
    if len(parts) > 1:
        depth = 0; cur = ""
        for ch in parts[1]:
            if ch in "[(": depth += 1
            if ch in "])": depth -= 1
            if ch == "," and depth == 0:
                ops.append(cur.strip()); cur = ""
            else:
                cur += ch
        ops.append(cur.strip())
        last = ops[-1].split()
        mods = last[1:]
        ops[-1] = last[0] if last else ""
    else:
        mods = []
    return mn, ops, mods

def classify(mn, ops, mods):
    R = lambda i: regs_of(ops[i]) if i < len(ops) else []
    if mn.startswith("v_mfma"):
        return dict(kind="mfma", dst=R(0), ab=R(1) + R(2), c=R(3), passes=mfma_passes(mn), src=R(1)+R(2)+R(3))
    if mn.startswith("v_smfmac"):
        return dict(kind="mfma", dst=R(0), ab=R(1) + R(2) + R(3), c=R(0), passes=mfma_passes(mn), src=R(0)+R(1)+R(2)+R(3))
    if mn.startswith("v_cmp"):
        return dict(kind="valu", dst=R(0), src=sum((R(i) for i in range(1, len(ops))), []))
    if mn.startswith("v_readfirstlane") or mn.startswith("v_readlane"):
        return dict(kind="valu", dst=R(0), src=R(1), readlane=True)
    if mn.startswith("v_permlane"):
        return dict(kind="valu", dst=R(0)+R(1), src=R(0)+R(1), permlane=True)
    if mn.startswith("v_"):
        src = sum((R(i) for i in range(1, len(ops))), [])
        if mn.startswith(("v_fmac", "v_dot2c")): src += R(0)
        if "cndmask" in mn and len(ops) == 3: src += [("x", "vcc")]
        d = dict(kind="valu", dst=R(0), src=src, trans=mn.startswith(TRANS), dpp=("_dpp" in mn), dot=mn.startswith("v_dot"), mn=mn)
        return d
    if mn.startswith("ds_"):
        if mn.startswith(("ds_read", "ds_bpermute", "ds_swizzle")) or "_rtn" in mn:
            return dict(kind="mem", dst=R(0), src=sum((R(i) for i in range(1, len(ops))), []))
        return dict(kind="mem", dst=[], src=sum((R(i) for i in range(len(ops))), []))
    if mn.startswith(("buffer_", "global_")):
        if mn in ("buffer_inv", "buffer_wbl2"): return dict(kind="other", dst=[], src=[])
        if "lds" in mods or "_lds_" in mn:
            return dict(kind="mem", dst=[], src=sum((R(i) for i in range(len(ops))), []) + [("x", "m0")], vmem=True, dma=True)
        if "load" in mn:
            return dict(kind="mem", dst=R(0), src=sum((R(i) for i in range(1, len(ops))), []), vmem=True)
        wide = ("x3" in mn or "x4" in mn)
        return dict(kind="mem", dst=[], src=sum((R(i) for i in range(len(ops))), []), vmem=True, store=R(0) if wide else [])
    if mn.startswith("s_"):
        if mn == "s_nop": return dict(kind="nop", n=int(ops[0], 0) + 1, dst=[], src=[])
        if mn.startswith(("s_cmp", "s_cbranch", "s_branch", "s_waitcnt", "s_barrier", "s_setprio", "s_sleep", "s_endpgm", "s_wakeup", "s_bitcmp")):
            return dict(kind="salu", dst=[], src=sum((R(i) for i in range(len(ops))), []))
        return dict(kind="salu", dst=R(0), src=sum((R(i) for i in range(1, len(ops))), []))
    raise ValueError("unknown instr " + mn)

def check_hazards(lines, name=""):
    probs = []
    hist = []
    pos = 0
    for ln in lines:
        p = parse(ln)
        if p is None: continue
        mn, ops, mods = p
        I = classify(mn, ops, mods)
        src = set(I.get("src", [])); dst = set(I.get("dst", []))
        for (ppos, P, ptxt) in reversed(hist):
            dist = pos - ppos - 1 + 0
            dist = pos - ppos - P.get("n", 1)
            if dist > 24: break
            pd = set(P.get("dst", []))
            need = 0; why = ""
            if P["kind"] == "valu":
                if I["kind"] == "mfma" and pd & src: need, why = 2, "valu->mfma"
                if I["kind"] == "valu":
                    if I.get("readlane") and pd & src: need, why = max(need, 1), "valu->readlane"
                    if I.get("permlane") and pd & src: need, why = max(need, 2), "valu->permlane"
                    if I.get("dpp") and pd & src: need, why = max(need, 2), "valu->dpp"
                    if P.get("trans") and not I.get("trans") and pd & src: need, why = max(need, 1), "trans->valu"
                    if P.get("dot") and (pd & (src | dst)) and not (I.get("mn") == P.get("mn")): need, why = max(need, 3), "dot->valu"
                    sg = {r for r in pd if r[0] in ("s", "x")}
                    if sg & src: need, why = max(need, 2), "valu sgpr->valu"
                if I.get("vmem"):
                    sg = {r for r in pd if r[0] == "s"}
                    if sg & src: need, why = max(need, 5), "valu sgpr->vmem"
            if P["kind"] == "mfma":
                n = {4: 8, 8: 12}[P["passes"]]
                if I["kind"] == "mfma":
                    if pd & set(I["ab"]): need, why = n, "mfma D->A/B"
                    c = set(I["c"])
                    if pd & c and not (pd == c and P["passes"] == I["passes"]): need, why = max(need, {4: 6, 8: 10}[P["passes"]]), "mfma D->C overlap"
                    if pd & dst and not (pd == c): need, why = max(need, 0), ""
                elif I["kind"] in ("valu", "mem"):
                    if pd & (src | dst): need, why = n, "mfma D->valu/mem"
                if I["kind"] == "valu" and set(P["c"]) & dst:
                    need, why = max(need, {4: 3, 8: 7}[P["passes"]]), "mfma C WAR"
            if P["kind"] == "salu" and ("x", "m0") in pd and I.get("dma"):
                need, why = 1, "m0->dma"
            if P.get("store") and set(P["store"]) & dst:
                need, why = max(need, 2), "wide store WAR"
            if need > dist:
                probs.append(f"{name}: {why} needs {need} has {dist}: '{ptxt.strip()}' -> '{ln.strip()}'")
        hist.append((pos, I, ln))
        if len(hist) > 64: hist.pop(0)
        pos += I.get("n", 1)
    return probs
```

```python
import sys
from asmlib import Asm, v, s, check_hazards

NAME = "parallel_sum__grouped_kv_mqa__dense_activation_relu__prompt"
QF, KF, VF, HF, FP = 0x000000, 0x200000, 0x210000, 0x300000, 0x900000
WS_SIZE = 0x1000000
CSCALE = 0x3eb8aa3b
BIAS = 88.0
import struct
def f2u(x): return struct.unpack("<I", struct.pack("<f", x))[0]
assert abs(struct.unpack("<f", struct.pack("<I", CSCALE))[0] - 0.25*1.4426950408889634) < 1e-7

sW, sB, sG = 3, 4, 5
sPX, sPWQ, sPWK, sPWV, sPWO, sPBX, sPW1, sPW2 = 8, 10, 12, 14, 16, 18, 20, 22
sPOUT, sPDBG, sPWS = 24, 26, 28
rX, rWA, rWB, rWS, rOUT, rDBG = 32, 36, 40, 44, 48, 52
T = 56

def srd(a, r, ptr, size):
    a(f"s_mov_b32 {s(r)}, {s(ptr)}")
    a(f"s_and_b32 {s(r+1)}, {s(ptr+1)}, 0xffff")
    a(f"s_mov_b32 {s(r+2)}, {size}")
    a(f"s_mov_b32 {s(r+3)}, 0x20000")

def prologue(a, endlabel):
    a(f"s_cmp_ge_u32 s2, 256")
    a(f"s_cbranch_scc1 {endlabel}")
    a(f"s_load_dwordx16 s[8:23], s[0:1], 0")
    a(f"s_load_dwordx4 s[24:27], s[0:1], 64")
    a(f"s_load_dwordx2 s[28:29], s[0:1], 80")
    a(f"v_lshrrev_b32 v1, 6, v0")
    a(f"s_and_b32 s6, s2, 7")
    a(f"v_readfirstlane_b32 {s(sW)}, v1")
    a(f"s_lshr_b32 s7, s2, 3")
    a(f"s_and_b32 {s(sG)}, s7, 7")
    a(f"s_lshr_b32 s7, s7, 3")
    a(f"s_lshl2_add_u32 {s(sB)}, s6, s7")
    a(f"v_and_b32 v1, 63, v0")
    a(f"s_waitcnt lgkmcnt(0)")

def kernel_header(a, name):
    a(f".globl {name}")
    a(f".p2align 8")
    a(f".type {name},@function")
    a.label(name)

def descriptor(name, vgpr=256, sgpr=102):
    return f""".amdhsa_kernel {name}
  .amdhsa_next_free_vgpr {vgpr}
  .amdhsa_next_free_sgpr {sgpr}
  .amdhsa_accum_offset {min(256, (vgpr+3)//4*4)}
  .amdhsa_group_segment_fixed_size 0
  .amdhsa_kernarg_size 88
  .amdhsa_user_sgpr_count 2
  .amdhsa_user_sgpr_kernarg_segment_ptr 1
  .amdhsa_system_sgpr_workgroup_id_x 1
.end_amdhsa_kernel
"""

XN_STRIDE = 1040
XN_BYTES = 64 * XN_STRIDE
NSLOT = 11
K1_LDS = XN_BYTES + 8 * NSLOT * 1024

def gen_k1(a):
    name = "k1_kernel"
    kernel_header(a, name)
    prologue(a, "K1_end")
    vDMA, vTR0, vTR1, vXL, vXW, vXR = 2, 3, 4, 5, 6, 7
    XRAW = 16
    ACC = 64
    XF = 96
    UNP = 64
    WF = 128
    sStride, sCol, sStep, sOffB, sRole, sF, sRing, sOff = T, T+1, T+2, T+3, T+4, T+5, T+6, T+7
    srd(a, rX, sPX, 2097152)
    srd(a, rWS, sPWS, WS_SIZE)
    a(f"v_lshrrev_b32 v8, 3, v1")
    a(f"v_and_b32 v9, 7, v1")
    a(f"v_lshlrev_b32 {v(vXL)}, 10, v8")
    a(f"v_lshl_add_u32 {v(vXL)}, v9, 4, {v(vXL)}")
    a(f"s_lshl_b32 s6, {s(sB)}, 16")
    a(f"s_lshl_b32 s7, {s(sW)}, 13")
    a(f"s_add_u32 s6, s6, s7")
    for j in range(8):
        a(f"buffer_load_dwordx4 {v(XRAW+4*j,4)}, {v(vXL)}, {s(rX,4)}, s6 offen offset:{128*j}")
    a(f"s_mul_i32 {s(sF)}, {s(sG)}, 5")
    a(f"s_min_u32 s6, {s(sG)}, 3")
    a(f"s_add_u32 {s(sF)}, {s(sF)}, s6")
    a(f"s_add_u32 {s(sF)}, {s(sF)}, {s(sW)}")
    a(f"s_sub_u32 {s(sF)}, {s(sF)}, 2")
    srd(a, rWA, sPW1, 1409024)
    srd(a, rWB, sPW1, 1409024)
    a(f"s_mov_b32 {s(sRole)}, 1")
    a(f"s_movk_i32 {s(sStride)}, 2752")
    a(f"s_lshl_b32 {s(sCol)}, {s(sF)}, 6")
    a(f"s_mov_b32 {s(sOffB)}, {256*2752}")
    a(f"s_cmp_lt_u32 {s(sW)}, 2")
    a(f"s_cbranch_scc0 K1_notq")
    srd(a, rWA, sPWQ, 524288)
    srd(a, rWB, sPWQ, 524288)
    a(f"s_mov_b32 {s(sRole)}, 0")
    a(f"s_movk_i32 {s(sStride)}, 1024")
    a(f"s_lshl_b32 {s(sCol)}, {s(sG)}, 7")
    a(f"s_lshl_b32 s6, {s(sW)}, 6")
    a(f"s_add_u32 {s(sCol)}, {s(sCol)}, s6")
    a(f"s_mov_b32 {s(sOffB)}, {256*1024}")
    a(f"s_branch K1_roledone")
    a.label("K1_notq")
    a(f"s_cmp_eq_u32 {s(sW)}, 7")
    a(f"s_cbranch_scc0 K1_roledone")
    a(f"s_cmp_lt_u32 {s(sG)}, 3")
    a(f"s_cbranch_scc1 K1_roledone")
    srd(a, rWA, sPWK, 16384)
    srd(a, rWB, sPWV, 16384)
    a(f"s_mov_b32 {s(sRole)}, 2")
    a(f"s_movk_i32 {s(sStride)}, 64")
    a(f"s_mov_b32 {s(sCol)}, 0")
    a(f"s_mov_b32 {s(sOffB)}, 0")
    a(f"s_cmp_eq_u32 {s(sG)}, 3")
    a(f"s_cbranch_scc0 K1_roledone")
    a(f"s_mov_b32 {s(sRole)}, 3")
    a(f"s_mov_b32 {s(rWA+2)}, 0")
    a(f"s_mov_b32 {s(rWB+2)}, 0")
    a.label("K1_roledone")
    a(f"s_lshl_b32 {s(sStep)}, {s(sStride)}, 4")
    a(f"v_lshrrev_b32 v10, 2, v1")
    a(f"v_and_b32 v11, 3, v1")
    a(f"v_lshlrev_b32 v12, 4, v11")
    a(f"v_add_u32 v12, {s(sCol)}, v12")
    a(f"v_mad_u32_u24 {v(vDMA)}, v10, {s(sStride)}, v12")
    a(f"s_mul_i32 {s(sRing)}, {s(sW)}, {NSLOT*1024}")
    a(f"s_add_u32 {s(sRing)}, {s(sRing)}, {XN_BYTES}")
    a(f"s_mov_b32 {s(sOff)}, 0")
    def dma(u):
        r = rWA if u < 16 else rWB
        if u == 16:
            a(f"s_mov_b32 {s(sOff)}, {s(sOffB)}")
        a(f"s_add_u32 m0, {s(sRing)}, {(u % NSLOT)*1024}")
        a(f"s_nop 0")
        a(f"buffer_load_dwordx4 {v(vDMA)}, {s(r,4)}, {s(sOff)} offen lds")
        a(f"s_add_u32 {s(sOff)}, {s(sOff)}, {s(sStep)}")
    for u in range(NSLOT):
        dma(u)
    a(f"v_and_b32 v10, 3, v10")
    a(f"v_lshrrev_b32 v12, 4, v1")
    a(f"v_lshlrev_b32 v11, 3, v11")
    a(f"v_add_u32 v11, {s(sRing)}, v11")
    a(f"s_cmp_eq_u32 {s(sRole)}, 2")
    a(f"s_cbranch_scc1 K1_trkv")
    a(f"v_lshrrev_b32 v13, 1, v12")
    a(f"v_and_b32 v14, 1, v12")
    a(f"v_lshl_add_u32 v13, v13, 3, v10")
    a(f"v_lshl_add_u32 {v(vTR0)}, v13, 6, v11")
    a(f"v_lshl_add_u32 {v(vTR0)}, v14, 5, {v(vTR0)}")
    a(f"v_add_u32 {v(vTR1)}, 256, {v(vTR0)}")
    a(f"v_and_b32 v13, 31, v1")
    a(f"v_mul_u32_u24 {v(vXR)}, {XN_STRIDE}, v13")
    a(f"v_lshrrev_b32 v13, 5, v1")
    a(f"v_lshl_add_u32 {v(vXR)}, v13, 4, {v(vXR)}")
    a(f"s_branch K1_trdone")
    a.label("K1_trkv")
    a(f"v_lshl_add_u32 v13, v12, 3, v10")
    a(f"v_lshl_add_u32 {v(vTR0)}, v13, 5, v11")
    a(f"v_add_u32 {v(vTR1)}, 128, {v(vTR0)}")
    a(f"s_sub_u32 s6, {s(sG)}, 4")
    a(f"s_lshl_b32 s6, s6, 4")
    a(f"v_and_b32 v13, 15, v1")
    a(f"v_add_u32 v13, s6, v13")
    a(f"v_mul_u32_u24 {v(vXR)}, {XN_STRIDE}, v13")
    a(f"v_lshl_add_u32 {v(vXR)}, v12, 4, {v(vXR)}")
    a.label("K1_trdone")
    a(f"s_lshl_b32 s6, {s(sW)}, 3")
    a(f"v_add_u32 v8, s6, v8")
    a(f"v_mul_u32_u24 {v(vXW)}, {XN_STRIDE}, v8")
    a(f"v_lshl_add_u32 {v(vXW)}, v9, 4, {v(vXW)}")
    S1, S2 = 48, 52
    for i in range(8):
        a(f"v_mov_b32 {v(48+i)}, 0")
    for j in range(8):
        a(f"s_waitcnt vmcnt({NSLOT + 7 - j})")
        for d in range(4):
            src = XRAW + 4*j + d
            u = UNP + 8*j + 2*d
            a(f"v_lshlrev_b32 {v(u)}, 16, {v(src)}")
            a(f"v_and_b32 {v(u+1)}, 0xffff0000, {v(src)}")
        for d in range(4):
            u = UNP + 8*j + 2*d
            k = 2*(d & 1)
            a(f"v_pk_add_f32 {v(S1+k,2)}, {v(S1+k,2)}, {v(u,2)}")
            a(f"v_pk_fma_f32 {v(S2+k,2)}, {v(u,2)}, {v(u,2)}, {v(S2+k,2)}")
    a(f"v_pk_add_f32 {v(S1,2)}, {v(S1,2)}, {v(S1+2,2)}")
    a(f"v_pk_add_f32 {v(S2,2)}, {v(S2,2)}, {v(S2+2,2)}")
    a(f"v_add_f32 {v(S1)}, {v(S1)}, {v(S1+1)}")
    a(f"v_add_f32 {v(S2)}, {v(S2)}, {v(S2+1)}")
    for dpp in ("quad_perm:[1,0,3,2]", "quad_perm:[2,3,0,1]", "row_half_mirror"):
        a(f"s_nop 0")
        a(f"v_add_f32_dpp {v(S1)}, {v(S1)}, {v(S1)} {dpp} row_mask:0xf bank_mask:0xf")
        a(f"v_add_f32_dpp {v(S2)}, {v(S2)}, {v(S2)} {dpp} row_mask:0xf bank_mask:0xf")
    inv = f2u(1.0/512)
    a(f"v_mul_f32 {v(S1)}, {inv:#x}, {v(S1)}")
    a(f"v_mul_f32 {v(S2)}, {inv:#x}, {v(S2)}")
    a(f"v_fma_f32 {v(S2)}, -{v(S1)}, {v(S1)}, {v(S2)}")
    a(f"v_max_f32 {v(S2)}, 0, {v(S2)}")
    a(f"v_cvt_pk_bf16_f32 v56, {v(S1)}, {v(S2)}")
    a(f"v_and_b32 v57, 0xffff0000, v56")
    a(f"v_lshlrev_b32 v56, 16, v56")
    a(f"v_add_f32 v57, {f2u(1e-5):#x}, v57")
    a(f"v_cvt_pk_bf16_f32 v57, v57, v57")
    a(f"v_and_b32 v57, 0xffff0000, v57")
    a(f"v_sqrt_f32 v57, v57")
    a(f"s_nop 0")
    a(f"v_cvt_pk_bf16_f32 v57, v57, v57")
    a(f"v_and_b32 v57, 0xffff0000, v57")
    a(f"v_rcp_f32 v58, v57")
    a(f"s_nop 0")
    a(f"v_mul_f32 v60, v56, v58")
    a(f"v_sub_f32 v60, 0, v60")
    for j in range(8):
        for d in range(4):
            u = UNP + 8*j + 2*d
            a(f"v_pk_fma_f32 {v(u,2)}, {v(u,2)}, v[58:59], v[60:61] op_sel_hi:[1,0,0]")
        for d in range(4):
            u = UNP + 8*j + 2*d
            a(f"v_cvt_pk_bf16_f32 {v(XRAW+4*j+d)}, {v(u)}, {v(u+1)}")
        a(f"ds_write_b128 {v(vXW)}, {v(XRAW+4*j,4)} offset:{128*j}")
    a(f"s_waitcnt lgkmcnt(0)")
    a(f"s_barrier")
    issued = NSLOT
    def service(u):
        nonlocal issued
        a(f"s_waitcnt vmcnt({issued - 1 - u})")
        slot = (u % NSLOT) * 1024
        a(f"ds_read_b64_tr_b16 {v(WF+4*u,2)}, {v(vTR0)} offset:{slot}")
        a(f"ds_read_b64_tr_b16 {v(WF+4*u+2,2)}, {v(vTR1)} offset:{slot}")
    a(f"s_cmp_eq_u32 {s(sRole)}, 2")
    a(f"s_cbranch_scc1 K1_kv")
    LA = 2
    def xread(st):
        for rt in range(2):
            a(f"ds_read_b128 {v(XF + 8*(st % 4) + 4*rt, 4)}, {v(vXR)} offset:{32*st + rt*32*XN_STRIDE}")
    for st in range(LA):
        service(st); xread(st)
    for st in range(32):
        nx = st + LA
        if nx < 32:
            service(nx); xread(nx)
            a(f"s_waitcnt lgkmcnt({4*LA})")
        else:
            a(f"s_waitcnt lgkmcnt({4*(31-st)})")
        if st + NSLOT < 32:
            dma(st + NSLOT); issued += 1
        for rt in range(2):
            c = "0" if st == 0 else v(ACC+16*rt, 16)
            a(f"v_mfma_f32_32x32x16_bf16 {v(ACC+16*rt,16)}, {v(WF+4*st,4)}, {v(XF+8*(st%4)+4*rt,4)}, {c}")
    a(f"s_cmp_eq_u32 {s(sRole)}, 3")
    a(f"s_cbranch_scc1 K1_end")
    a(f"s_cmp_eq_u32 {s(sRole)}, 0")
    a(f"s_cbranch_scc1 K1_epq")
    a(f"v_lshlrev_b32 v8, 4, v1")
    a(f"s_mul_i32 s6, {s(sB)}, {2*86}")
    a(f"s_lshl_b32 s7, {s(sF)}, 1")
    a(f"s_add_u32 s6, s6, s7")
    a(f"s_lshl_b32 s6, s6, 10")
    a(f"s_add_u32 s6, s6, {HF}")
    a(f"s_add_u32 s7, s6, {86*1024}")
    a.nop(6)
    for rt in range(2):
        for hh in range(2):
            d = XRAW + 8*rt + 4*hh
            for i in range(4):
                r = ACC + 16*rt + 8*hh + 2*i
                a(f"v_cvt_pk_bf16_f32 {v(d+i)}, {v(r)}, {v(r+1)}")
            for i in range(4):
                a(f"v_pk_max_i16 {v(d+i)}, {v(d+i)}, 0")
            a(f"buffer_store_dwordx4 {v(d,4)}, v8, {s(rWS,4)}, s{6+rt} offen offset:{1024*hh}")
    a(f"s_endpgm")
    a.label("K1_epq")
    a(f"v_and_b32 v9, 31, v1")
    a(f"v_lshrrev_b32 v10, 3, v9")
    a(f"v_lshlrev_b32 v8, 13, v10")
    a(f"v_and_b32 v9, 7, v9")
    a(f"v_lshl_add_u32 v8, v9, 4, v8")
    a(f"v_lshrrev_b32 v10, 5, v1")
    a(f"v_lshl_add_u32 v8, v10, 9, v8")
    a(f"s_lshl_b32 s6, {s(sB)}, 6")
    a(f"s_add_u32 s6, s6, {s(sG)}")
    a(f"s_lshl_b32 s6, s6, 10")
    a(f"s_lshl_b32 s7, {s(sW)}, 8")
    a(f"s_add_u32 s6, s6, s7")
    a(f"s_add_u32 s7, s6, 32768")
    a(f"s_mov_b32 {s(T+8)}, {CSCALE:#x}")
    assert QF == 0
    for rt in range(2):
        for hh in range(2):
            d = XRAW + 8*rt + 4*hh
            for i in range(4):
                r = ACC + 16*rt + 8*hh + 2*i
                a(f"v_pk_mul_f32 {v(r,2)}, {v(r,2)}, {s(T+8,2)} op_sel_hi:[1,0]")
            for i in range(4):
                r = ACC + 16*rt + 8*hh + 2*i
                a(f"v_cvt_pk_bf16_f32 {v(d+i)}, {v(r)}, {v(r+1)}")
            a(f"buffer_store_dwordx4 {v(d,4)}, v8, {s(rWS,4)}, s{6+rt} offen offset:{128*hh}")
    a(f"s_endpgm")
    a.label("K1_kv")
    issued = NSLOT
    for st in range(16):
        a(f"ds_read_b128 {v(UNP+4*st,4)}, {v(vXR)} offset:{64*st}")
        if st == 7: a("s_waitcnt lgkmcnt(0)")
    a("s_waitcnt lgkmcnt(0)")
    for u in range(32):
        service(u)
        a(f"s_waitcnt lgkmcnt(0)")
        if u + NSLOT < 32:
            dma(u + NSLOT); issued += 1
        if u < 16:
            c = "0" if u == 0 else v(48, 4)
            a(f"v_mfma_f32_16x16x32_bf16 {v(48,4)}, {v(WF+4*u,4)}, {v(UNP+4*u,4)}, {c}")
        else:
            c = "0" if u == 16 else v(52, 4)
            a(f"v_mfma_f32_16x16x32_bf16 {v(52,4)}, {v(UNP+4*(u-16),4)}, {v(WF+4*u,4)}, {c}")
    a(f"s_sub_u32 s6, {s(sG)}, 4")
    a(f"s_lshr_b32 s7, s6, 1")
    a(f"s_lshl1_add_u32 s7, {s(sB)}, s7")
    a(f"s_lshl_b32 s7, s7, 10")
    a(f"s_and_b32 s6, s6, 1")
    a(f"s_lshl_b32 {s(T+8)}, s6, 8")
    a(f"s_add_u32 {s(T+8)}, {s(T+8)}, s7")
    a(f"s_add_u32 {s(T+8)}, {s(T+8)}, {KF}")
    a(f"s_lshl_b32 {s(T+9)}, s6, 9")
    a(f"s_add_u32 {s(T+9)}, {s(T+9)}, s7")
    a(f"s_add_u32 {s(T+9)}, {s(T+9)}, {VF}")
    a(f"v_and_b32 v9, 15, v1")
    a(f"v_lshrrev_b32 v10, 4, v1")
    a(f"v_and_b32 v11, 1, v10")
    a(f"v_lshrrev_b32 v12, 1, v10")
    a(f"v_lshlrev_b32 v9, 4, v9")
    a(f"v_lshl_add_u32 v13, v11, 9, v9")
    a(f"v_lshl_add_u32 v13, v12, 3, v13")
    a(f"v_lshl_add_u32 v14, v12, 8, v9")
    a(f"v_lshl_add_u32 v14, v11, 3, v14")
    a(f"v_cvt_pk_bf16_f32 v56, v48, v49")
    a(f"v_cvt_pk_bf16_f32 v57, v50, v51")
    a(f"v_cvt_pk_bf16_f32 v58, v52, v53")
    a(f"v_cvt_pk_bf16_f32 v59, v54, v55")
    a(f"buffer_store_dwordx2 v[56:57], v13, {s(rWS,4)}, {s(T+8)} offen")
    a(f"buffer_store_dwordx2 v[58:59], v14, {s(rWS,4)}, {s(T+9)} offen")
    a.label("K1_end")
    a(f"s_endpgm")
    return name

L_KROT2, L_Q, L_C, L_O, L_CNT, L_RED, L_STG = 0, 16384, 24576, 28672, 49152, 49408, 66816
O_STRIDE = 80
RED_STRIDE = 272
assert L_O + 8*32*O_STRIDE <= L_CNT and L_RED + 64*RED_STRIDE <= L_STG
K2_LDS = L_STG + 4 * 16384
FD = 6

def gen_ffn2(a, sJ, rW2, pre):
    vA0, vA1, vB0, vB1, vT0, vT1 = 2, 3, 4, 5, 6, 7
    ACC, AF, BF = 64, 128, 144
    sStg, sWo, sHo, sHb = T, T+1, T+2, T+3
    a(f"s_lshl_b32 {s(sStg)}, {s(sJ)}, 14")
    a(f"s_add_u32 {s(sStg)}, {s(sStg)}, {L_STG}")
    a(f"v_lshrrev_b32 v8, 3, v1")
    a(f"v_and_b32 v9, 7, v1")
    a(f"v_lshrrev_b32 v10, 2, v1")
    a(f"v_and_b32 v10, 4, v10")
    a(f"v_xor_b32 v9, v9, v10")
    a(f"v_lshlrev_b32 {v(vA0)}, 10, v8")
    a(f"v_lshl_add_u32 {v(vA0)}, v9, 4, {v(vA0)}")
    a(f"s_lshl_b32 s6, {s(sG)}, 7")
    a(f"v_add_u32 {v(vA0)}, s6, {v(vA0)}")
    a(f"v_add_u32 {v(vA1)}, {8192-1024}, {v(vA0)}")
    a(f"v_lshlrev_b32 {v(vB0)}, 4, v1")
    a(f"v_add_u32 {v(vB1)}, {86*1024}, {v(vB0)}")
    a(f"s_lshl_b32 {s(sWo)}, {s(sJ)}, 14")
    a(f"s_mul_i32 {s(sHb)}, {s(sB)}, {2*86*1024}")
    a(f"s_add_u32 {s(sHb)}, {s(sHb)}, {HF}")
    a(f"s_lshl_b32 {s(sHo)}, {s(sJ)}, 10")
    a(f"s_add_u32 {s(sHo)}, {s(sHo)}, {s(sHb)}")
    a(f"s_add_u32 {s(sHb)}, {s(sHb)}, {85*1024}")
    def issue(i):
        a(f"s_add_u32 m0, {s(sStg)}, {(i % FD)*2048}")
        if i == 21:
            a(f"s_min_u32 {s(sHo)}, {s(sHo)}, {s(sHb)}")
        else:
            a(f"s_nop 0")
        a(f"buffer_load_dwordx4 {v(vA0)}, {s(rW2,4)}, {s(sWo)} offen lds")
        a(f"buffer_load_dwordx4 {v(vA1)}, {s(rW2,4)}, {s(sWo)} offen offset:1024 lds")
        a(f"buffer_load_dwordx4 {v(BF+8*(i%FD),4)}, {v(vB0)}, {s(rWS,4)}, {s(sHo)} offen")
        a(f"buffer_load_dwordx4 {v(BF+8*(i%FD)+4,4)}, {v(vB1)}, {s(rWS,4)}, {s(sHo)} offen")
        a(f"s_add_u32 {s(sWo)}, {s(sWo)}, {4*16384}")
        a(f"s_add_u32 {s(sHo)}, {s(sHo)}, 4096")
    for i in range(FD - 1):
        issue(i)
    a(f"v_lshrrev_b32 v8, 5, v1")
    a(f"v_bfe_u32 v9, v1, 2, 2")
    a(f"v_lshl_add_u32 v8, v8, 2, v9")
    a(f"v_lshlrev_b32 v8, 7, v8")
    a(f"v_bfe_u32 v10, v1, 4, 1")
    a(f"v_lshl_add_u32 v8, v10, 5, v8")
    a(f"v_and_b32 v10, 3, v1")
    a(f"v_lshl_add_u32 v8, v10, 3, v8")
    a(f"v_lshrrev_b32 v9, 1, v9")
    a(f"v_lshl_add_u32 {v(vT0)}, v9, 6, v8")
    a(f"v_xor_b32 {v(vT1)}, 64, {v(vT0)}")
    a(f"v_add_u32 {v(vT0)}, {s(sStg)}, {v(vT0)}")
    a(f"v_add_u32 {v(vT1)}, {s(sStg)}, {v(vT1)}")
    N = 22
    def aread(i):
        issued = min(N, i + FD - 1) if i == 0 else min(N, i + FD - 1)
        a(f"s_waitcnt vmcnt({4*(issued - 1 - i)})")
        base = AF + 8*(i % 2); o = (i % FD) * 2048
        a(f"ds_read_b64_tr_b16 {v(base,2)}, {v(vT0)} offset:{o}")
        a(f"ds_read_b64_tr_b16 {v(base+2,2)}, {v(vT0)} offset:{o+1024}")
        a(f"ds_read_b64_tr_b16 {v(base+4,2)}, {v(vT1)} offset:{o}")
        a(f"ds_read_b64_tr_b16 {v(base+6,2)}, {v(vT1)} offset:{o+1024}")
    aread(0)
    for i in range(N):
        if i + FD - 1 < N:
            issue(i + FD - 1)
        if i + 1 < N:
            aread(i + 1)
            a(f"s_waitcnt lgkmcnt(4)")
        else:
            a(f"s_waitcnt lgkmcnt(0)")
        for ct in range(2):
            for rt in range(2):
                acc = ACC + 32*ct + 16*rt
                c = "0" if i == 0 else v(acc, 16)
                a(f"v_mfma_f32_32x32x16_bf16 {v(acc,16)}, {v(AF+8*(i%2)+4*ct,4)}, {v(BF+8*(i%FD)+4*rt,4)}, {c}")
    a(f"v_and_b32 v8, 31, v1")
    a(f"v_mul_u32_u24 v8, {RED_STRIDE}, v8")
    a(f"v_lshrrev_b32 v9, 5, v1")
    a(f"v_lshl_add_u32 v8, v9, 4, v8")
    a(f"v_mov_b32 v10, {L_CNT+32}")
    a(f"v_mov_b32 v11, 1")
    a.nop(6)
    for ct in range(2):
        for rt in range(2):
            for r in range(16):
                col = 32*ct + 8*(r//4) + (r % 4)
                a(f"ds_add_f32 v8, {v(ACC+32*ct+16*rt+r)} offset:{L_RED + rt*32*RED_STRIDE + col*4}")
    a(f"s_mov_b64 s[6:7], exec")
    a(f"s_mov_b64 exec, 1")
    a(f"ds_add_u32 v10, v11")
    a(f"s_mov_b64 exec, s[6:7]")
    a.label(f"{pre}_redwait")
    a(f"ds_read_b32 v12, v10")
    a(f"s_waitcnt lgkmcnt(0)")
    a(f"v_readfirstlane_b32 s6, v12")
    a(f"s_cmp_ge_u32 s6, 4")
    a(f"s_cbranch_scc1 {pre}_redok")
    a(f"s_sleep 2")
    a(f"s_branch {pre}_redwait")
    a.label(f"{pre}_redok")
    a(f"v_lshrrev_b32 v8, 4, v1")
    a(f"v_and_b32 v9, 15, v1")
    a(f"s_lshl_b32 s6, {s(sJ)}, 4")
    a(f"v_add_u32 v8, s6, v8")
    a(f"v_mul_u32_u24 v10, {RED_STRIDE}, v8")
    a(f"v_lshl_add_u32 v10, v9, 4, v10")
    a(f"v_lshlrev_b32 v11, 11, v8")
    a(f"v_lshl_add_u32 v11, v9, 4, v11")
    a(f"s_lshl_b32 s6, {s(sB)}, 17")
    a(f"s_lshl_b32 s7, {s(sG)}, 8")
    a(f"s_add_u32 s6, s6, s7")
    a(f"s_add_u32 s6, s6, {FP}")
    for q in range(4):
        a(f"ds_read_b128 {v(ACC+4*q,4)}, v10 offset:{L_RED + 4*q*RED_STRIDE}")
    for q in range(4):
        a(f"s_waitcnt lgkmcnt({3-q})")
        a(f"buffer_store_dwordx4 {v(ACC+4*q,4)}, v11, {s(rWS,4)}, s6 offen")
        a(f"s_add_u32 s6, s6, 8192")

def zero_lds(a, start, nbytes, nthreads):
    a(f"v_lshlrev_b32 v8, 4, v0")
    a(f"v_add_u32 v9, {start}, v8")
    for i in range(4): a(f"v_mov_b32 {v(12+i)}, 0")
    per = nthreads * 16
    n = (nbytes + per - 1) // per
    for i in range(n):
        rem = nbytes - i*per
        if rem < per:
            a(f"v_cmp_gt_u32 vcc, {rem}, v8")
            a(f"s_and_saveexec_b64 s[6:7], vcc")
        a(f"ds_write_b128 v9, v[12:15] offset:{i*per}")
        if rem < per:
            a(f"s_mov_b64 exec, s[6:7]")

def gen_k1b(a):
    name = "k1b_kernel"
    kernel_header(a, name)
    prologue(a, "K1b_end")
    srd(a, rWS, sPWS, WS_SIZE)
    srd(a, rWA, sPW2, 1409024)
    zero_lds(a, L_CNT, L_STG - L_CNT, 256)
    a("s_waitcnt lgkmcnt(0)")
    a("s_barrier")
    gen_ffn2(a, sW, rWA, "K1b")
    a.label("K1b_end")
    a("s_endpgm")
    return name

ROT = (0, 5, 10)
def gen_k2(a):
    name = "k2_kernel"
    kernel_header(a, name)
    prologue(a, "K2_end")
    srd(a, rWS, sPWS, WS_SIZE)
    srd(a, rWA, sPWO, 524288)
    srd(a, rX, sPX, 2097152)
    srd(a, rOUT, sPOUT, 2097152)
    sC = T + 10
    a(f"s_lshl3_add_u32 {s(sC)}, {s(sB)}, {s(sG)}")
    a(f"s_cmp_ge_u32 {s(sW)}, 4")
    a(f"s_cbranch_scc1 K2_gemm")
    vL16, vQA, vOA, vIDX = 2, 3, 4, 5
    vCA, vONE = 6, 7
    ZERO = 0
    Q, KROT, S0, S1, C, O, KR, VR = 8, 12, 16, 32, 48, 64, 80, 128
    Q, KROT = 8, 12
    S0, S1, C, O = 16, 32, 48, 64
    KR = 80
    VR = 128
    rot = (0, 4, 8, 12)
    res = [t for t in range(16) if t not in rot]
    def kreg(t):
        return KROT if t in rot else KR + 4*res.index(t)
    a(f"v_lshlrev_b32 {v(vL16)}, 4, v1")
    a(f"s_lshl_b32 s6, {s(sC)}, 13")
    a(f"s_lshl_b32 s7, {s(sW)}, 11")
    a(f"s_add_u32 s6, s6, s7")
    a(f"s_add_u32 m0, s7, {L_Q}")
    a(f"s_lshl_b32 {s(T)}, {s(sW)}, 14")
    a(f"buffer_load_dwordx4 {v(vL16)}, {s(rWS,4)}, s6 offen lds")
    a(f"buffer_load_dwordx4 {v(vL16)}, {s(rWS,4)}, s6 offen offset:1024 lds")
    a(f"s_add_u32 {s(T+1)}, {s(T)}, {KF}")
    order = [1, 2] + [t for t in res if t not in (1, 2)]
    a(f"s_lshl_b32 {s(T+3)}, {s(sW)}, 12")
    nv = 2
    for t in order[:2]:
        a(f"s_add_u32 s6, {s(T+1)}, {(t//4)*4096}")
        a(f"buffer_load_dwordx4 {v(kreg(t),4)}, {v(vL16)}, {s(rWS,4)}, s6 offen offset:{(t%4)*1024}"); nv += 1
    for i, t in enumerate(rot):
        a(f"s_add_u32 m0, {s(T+3)}, {L_KROT2 + i*1024}")
        a(f"s_add_u32 s6, {s(T+1)}, {t*1024}")
        a(f"buffer_load_dwordx4 {v(vL16)}, {s(rWS,4)}, s6 offen lds"); nv += 1
    a(f"v_and_b32 v6, 15, v1")
    a(f"v_lshrrev_b32 v7, 5, v1")
    a(f"v_lshlrev_b32 v6, 4, v6")
    a(f"v_lshl_add_u32 v6, v7, 8, v6")
    a(f"s_add_u32 {s(T+2)}, {s(T)}, {VF}")
    a(f"s_mov_b32 {s(T+4)}, 0x0000ffff")
    a(f"s_mov_b32 {s(T+5)}, 0x0000ffff")
    n_first = nv
    for t in range(16):
        if t in res and t not in (1, 2):
            a(f"s_mov_b64 exec, -1")
            a(f"s_add_u32 s6, {s(T+1)}, {(t//4)*4096}")
            a(f"buffer_load_dwordx4 {v(kreg(t),4)}, {v(vL16)}, {s(rWS,4)}, s6 offen offset:{(t%4)*1024}"); nv += 1
        a(f"s_mov_b64 exec, {s(T+4,2)}")
        a(f"s_add_u32 s6, {s(T+2)}, {(t//4)*4096}")
        for t2 in range(2):
            a(f"buffer_load_dwordx4 {v(VR+8*t+4*t2,4)}, v6, {s(rWS,4)}, s6 offen offset:{(t%4)*1024 + t2*512}"); nv += 1
    a(f"s_not_b64 exec, {s(T+4,2)}")
    a(f"v_and_b32 v7, 31, v1")
    a(f"v_cmp_eq_u32 vcc, 16, v7")
    a(f"v_mov_b32 v7, 0x3f803f80")
    a(f"s_nop 0")
    a(f"v_cndmask_b32 v7, 0, v7, vcc")
    for r in range(128):
        a(f"v_mov_b32 {v(VR+r)}, v7")
    a(f"s_mov_b64 exec, -1")
    a(f"v_mov_b32 {v(vIDX)}, 0xdddddddd")
    a(f"v_and_b32 v7, 31, v1")
    a(f"v_lshlrev_b32 {v(vCA)}, 4, v7")
    a(f"v_mul_u32_u24 {v(vOA)}, {O_STRIDE}, v7")
    a(f"v_lshrrev_b32 v7, 5, v1")
    a(f"v_lshl_add_u32 {v(vOA)}, v7, 4, {v(vOA)}")
    a(f"v_mov_b32 {v(vQA)}, {v(vL16)}")
    a(f"v_add_u32 {v(vL16)}, {s(T+3)}, {v(vL16)}")
    a(f"s_lshl_b32 s7, {s(sW)}, 11")
    a(f"v_add_u32 v7, s7, {v(vQA)}")
    a(f"s_waitcnt vmcnt({nv - 4})")
    a(f"ds_read_b128 {v(Q,4)}, v7 offset:{L_Q}")
    a(f"ds_read_b128 {v(KROT,4)}, v7 offset:{L_Q+1024}")
    a(f"s_waitcnt lgkmcnt(0)")
    a(f"v_mfma_f32_32x32x16_bf16 {v(S0,16)}, {v(kreg(1),4)}, {v(Q,4)}, 0")
    a(f"v_mfma_f32_32x32x16_bf16 {v(S1,16)}, {v(kreg(2),4)}, {v(Q,4)}, 0")
    a(f"v_mfma_f32_32x32x16_bf16 {v(C,16)}, {v(kreg(1),4)}, {v(KROT,4)}, 0")
    a(f"v_mfma_f32_32x32x16_bf16 {v(O,16)}, {v(kreg(2),4)}, {v(KROT,4)}, 0")
    a.nop(10)
    for base in (S0, C):
        a(f"v_max3_f32 {v(base)}, {v(base)}, {v(base+1)}, {v(base+2)}")
        a(f"v_max3_f32 {v(base+3)}, {v(base+3)}, {v(base+4)}, {v(base+5)}")
        i = 6
        k = 0
        while i + 1 < 32:
            d = base if k % 2 == 0 else base + 3
            a(f"v_max3_f32 {v(d)}, {v(d)}, {v(base+i)}, {v(base+i+1)}")
            i += 2; k += 1
        a(f"v_max_f32 {v(base)}, {v(base)}, {v(base+3)}")
    a(f"v_mov_b32 {v(S0+1)}, {v(S0)}")
    a(f"v_mov_b32 {v(C+1)}, {v(C)}")
    a(f"s_nop 1")
    a(f"v_permlane32_swap_b32 {v(S0)}, {v(S0+1)}")
    a(f"v_permlane32_swap_b32 {v(C)}, {v(C+1)}")
    a(f"s_nop 1")
    for base in (S0, C):
        a(f"v_max_f32 {v(base)}, {v(base)}, {v(base+1)}")
        a(f"v_sub_f32 {v(base)}, {f2u(-BIAS):#x}, {v(base)}")
        for i in range(1, 4):
            a(f"v_mov_b32 {v(base+i)}, {v(base)}")
    a(f"s_lshl_b32 s7, {s(sW)}, 10")
    a(f"v_add_u32 v7, s7, {v(vCA)}")
    a(f"ds_write_b128 v7, {v(S0,4)} offset:{L_C}")
    a(f"ds_write_b128 v7, {v(C,4)} offset:{L_C+512}")
    a(f"v_mov_b32 v0, 0")
    a(f"v_mov_b32 v1, 0")
    a(f"v_mov_b32 {v(vONE)}, 1")
    a(f"s_waitcnt vmcnt({nv - n_first}) lgkmcnt(0)")
    a(f"s_barrier")
    a(f"s_setprio 3")
    a(f"ds_read_b128 {v(Q,4)}, {v(vQA)} offset:{L_Q}")
    for i in range(4):
        a(f"ds_read_b128 {v(C+4*i,4)}, {v(vCA)} offset:{L_C}")
    a(f"ds_read_b128 {v(KROT,4)}, {v(vL16)} offset:{L_KROT2}")
    a(f"v_mfma_f32_32x32x8_bf16 {v(O,16)}, v[0:1], v[0:1], 0")
    a(f"s_waitcnt vmcnt(0) lgkmcnt(0)")
    a(f"v_mfma_f32_32x32x16_bf16 {v(S0,16)}, {v(KROT,4)}, {v(Q,4)}, {v(C,16)}")
    a(f"ds_read_b128 {v(KROT,4)}, {v(vL16)} offset:{L_KROT2+1024}")
    a(f"s_mov_b32 {s(T)}, 0")
    a(f"s_mov_b32 {s(T+6)}, {L_CNT}")
    a.nop(10)
    a(".p2align 6")
    a.label("K2_ph")
    body_start = len(a.lines)
    def PV(t, half):
        sb = (S0 if t % 2 == 0 else S1) + 8*half
        a(f"v_smfmac_f32_32x32x32_bf16 {v(O,16)}, {v(VR+8*t+4*half,4)}, {v(sb,8)}, {v(vIDX)}")
    def QK(t):
        sb = S0 if t % 2 == 0 else S1
        a(f"v_mfma_f32_32x32x16_bf16 {v(sb,16)}, {v(kreg(t),4)}, {v(Q,4)}, {v(C,16)}")
    for t in range(16):
        cur = S0 if t % 2 == 0 else S1
        E = lambda i: a(f"v_exp_f32 {v(cur+i)}, {v(cur+i)}")
        for i in range(0, 2): E(i)
        if t > 0: PV(t-1, 1)
        for i in range(2, 5): E(i)
        nt = (t + 1) % 16
        if nt in rot or t == 15:
            a(f"s_waitcnt lgkmcnt(0)")
        QK(nt)
        if nt in rot:
            nxt = (rot.index(nt) + 1) % 4
            a(f"ds_read_b128 {v(KROT,4)}, {v(vL16)} offset:{L_KROT2 + nxt*1024}")
        for i in range(5, 10): E(i)
        PV(t, 0)
        if t == 14:
            a(f"ds_read_b128 {v(Q,4)}, {v(vQA)} offset:{L_Q+1024}")
            for i in range(4):
                a(f"ds_read_b128 {v(C+4*i,4)}, {v(vCA)} offset:{L_C+512}")
        for i in range(10, 16): E(i)
    a(f"s_nop 1")
    PV(15, 1)
    a(f"v_add_u32 {v(vQA)}, 1024, {v(vQA)}")
    a(f"v_add_u32 {v(vCA)}, 512, {v(vCA)}")
    a(f"v_mov_b32 v0, {s(T+6)}")
    a(f"s_add_u32 {s(T)}, {s(T)}, 1")
    a(f"s_add_u32 {s(T+6)}, {s(T+6)}, 4")
    a.nop(7)
    for r in range(8):
        a(f"ds_add_f32 {v(vOA)}, {v(O+r)} offset:{L_O + (8*(r//4) + r%4)*4}")
    a(f"s_mov_b32 exec_hi, 0")
    a(f"ds_add_f32 {v(vOA)}, {v(O+8)} offset:{L_O + 64}")
    a(f"s_mov_b32 exec_lo, 1")
    a(f"ds_add_u32 v0, {v(vONE)}")
    a(f"s_mov_b64 exec, -1")
    a(f"v_mov_b32 v0, 0")
    a(f"v_add_u32 {v(vOA)}, {32*O_STRIDE}, {v(vOA)}")
    a(f"s_cmp_lt_u32 {s(T)}, 8")
    a(f"v_mfma_f32_32x32x8_bf16 {v(O,16)}, v[0:1], v[0:1], 0")
    a(f"s_cbranch_scc1 K2_ph")
    body = a.lines[body_start:]
    pr = check_hazards(body + body, "attn-loop")
    assert not pr, "\n".join(pr)
    a(f"s_endpgm")
    a.label("K2_gemm")
    sJ = T + 11
    a(f"s_sub_u32 {s(sJ)}, {s(sW)}, 4")
    sStg, sWo, sP, sCnt = T, T+1, T+2, T+3
    vD0, vD1, vOR, vCN = 2, 3, 4, 5
    TR = 8
    ACC, WFR, OB, BFR, EX = 64, 128, 96, 120, 192
    a(f"s_lshl_b32 {s(sStg)}, {s(sJ)}, 14")
    a(f"s_add_u32 {s(sStg)}, {s(sStg)}, {L_STG}")
    a(f"v_lshrrev_b32 v16, 4, v1")
    a(f"v_and_b32 v17, 15, v1")
    a(f"v_lshlrev_b32 v18, 1, v16")
    a(f"v_xor_b32 v17, v17, v18")
    a(f"v_lshlrev_b32 {v(vD0)}, 10, v16")
    a(f"v_lshl_add_u32 {v(vD0)}, v17, 4, {v(vD0)}")
    a(f"v_xor_b32 {v(vD1)}, 128, {v(vD0)}")
    a(f"s_lshl_b32 {s(sWo)}, {s(sJ)}, 8")
    def wo_issue():
        for u in range(16):
            a(f"s_add_u32 m0, {s(sStg)}, {u*1024}")
            a(f"s_nop 0")
            a(f"buffer_load_dwordx4 {v(vD1 if (u>>1)&1 else vD0)}, {s(rWA,4)}, {s(sWo)} offen lds")
            a(f"s_add_u32 {s(sWo)}, {s(sWo)}, 4096")
    wo_issue()
    a(f"v_subrev_u32 v0, 256, v0")
    zero_lds(a, L_O, L_CNT + 64 - L_O, 256)
    a(f"v_lshrrev_b32 v16, 4, v1")
    a(f"v_bfe_u32 v17, v1, 2, 2")
    a(f"v_lshl_add_u32 v18, v16, 3, v17")
    a(f"v_lshlrev_b32 v18, 8, v18")
    a(f"v_and_b32 v19, 3, v1")
    a(f"v_lshl_add_u32 v18, v19, 3, v18")
    a(f"v_add_u32 v18, {s(sStg)}, v18")
    a(f"v_and_b32 v16, 1, v16")
    a(f"v_lshl_add_u32 v17, v16, 2, v17")
    for ct in range(8):
        a(f"v_xor_b32 v19, {ct}, v17")
        a(f"v_lshl_add_u32 {v(TR+ct)}, v19, 5, v18")
    a(f"v_lshrrev_b32 v17, 5, v1")
    a(f"v_and_b32 v18, 7, v1")
    a(f"v_lshl_add_u32 v17, v17, 3, v18")
    a(f"v_mul_u32_u24 v6, {O_STRIDE}, v17")
    a(f"v_lshl_add_u32 {v(vOR)}, v16, 5, v6")
    a(f"v_mov_b32 {v(vCN)}, {L_CNT}")
    for i in range(32):
        a(f"v_mov_b32 {v(ACC+i)}, 0")
    a(f"s_waitcnt lgkmcnt(0)")
    a(f"s_barrier")
    a(f"s_mov_b32 {s(sP)}, 0")
    a.label("K2_gp")
    gstart = len(a.lines)
    a(f"s_waitcnt vmcnt(0)")
    for ks in range(2):
        for ct in range(8):
            d = WFR + 32*ks + 4*ct
            a(f"ds_read_b64_tr_b16 {v(d,2)}, {v(TR+ct)} offset:{ks*8192}")
            a(f"ds_read_b64_tr_b16 {v(d+2,2)}, {v(TR+ct)} offset:{ks*8192+1024}")
            if ct % 4 == 3: a(f"s_waitcnt lgkmcnt(0)")
    a(f"s_cmp_ge_u32 {s(sP)}, 7")
    a(f"s_cbranch_scc1 K2_noissue")
    wo_issue()
    a.label("K2_noissue")
    a.label("K2_wait")
    a(f"ds_read_b32 v7, {v(vCN)}")
    a(f"s_waitcnt lgkmcnt(0)")
    a(f"v_readfirstlane_b32 s6, v7")
    a(f"s_cmp_ge_u32 s6, 4")
    a(f"s_cbranch_scc1 K2_go")
    a(f"s_sleep 2")
    a(f"s_branch K2_wait")
    a.label("K2_go")
    for ks in range(2):
        o = L_O + ks*16*O_STRIDE
        a(f"ds_read_b128 {v(OB+8*ks,4)}, {v(vOR)} offset:{o}")
        a(f"ds_read_b128 {v(OB+8*ks+4,4)}, {v(vOR)} offset:{o+16}")
        a(f"ds_read_b32 {v(OB+16+2*ks)}, v6 offset:{o+64}")
    a(f"s_waitcnt lgkmcnt(0)")
    for ks in range(2):
        a(f"v_rcp_f32 {v(OB+16+2*ks)}, {v(OB+16+2*ks)}")
    a(f"s_nop 0")
    for ks in range(2):
        for i in range(4):
            r = OB + 8*ks + 2*i
            a(f"v_pk_mul_f32 {v(r,2)}, {v(r,2)}, {v(OB+16+2*ks,2)} op_sel_hi:[1,0]")
        for i in range(4):
            r = OB + 8*ks + 2*i
            a(f"v_cvt_pk_bf16_f32 {v(BFR+4*ks+i)}, {v(r)}, {v(r+1)}")
    a(f"v_add_u32 {v(vOR)}, {32*O_STRIDE}, {v(vOR)}")
    a(f"v_add_u32 v6, {32*O_STRIDE}, v6")
    a(f"v_add_u32 {v(vCN)}, 4, {v(vCN)}")
    for ks in range(2):
        for ct in range(8):
            a(f"v_mfma_f32_16x16x32_bf16 {v(ACC+4*ct,4)}, {v(WFR+32*ks+4*ct,4)}, {v(BFR+4*ks,4)}, {v(ACC+4*ct,4)}")
    a(f"s_add_u32 {s(sP)}, {s(sP)}, 1")
    a(f"s_cmp_lt_u32 {s(sP)}, 8")
    a(f"s_cbranch_scc1 K2_gp")
    gbody = a.lines[gstart:]
    pr = check_hazards(gbody + gbody, "gemm-loop")
    assert not pr, "\n".join(pr)
    a(f"v_and_b32 v16, 7, v1")
    a(f"v_lshrrev_b32 v17, 4, v1")
    a(f"v_lshlrev_b32 v18, 11, v16")
    a(f"v_lshl_add_u32 v18, v17, 4, v18")
    a(f"v_lshrrev_b32 v19, 1, v18")
    a(f"s_lshl_b32 s6, {s(sC)}, 14")
    a(f"s_lshl_b32 s7, {s(sJ)}, 9")
    a(f"s_add_u32 s6, s6, s7")
    a(f"s_lshr_b32 s7, s6, 1")
    a(f"s_add_u32 s6, s6, {FP}")
    a(f"s_mov_b32 exec_lo, 0x00ff00ff")
    a(f"s_mov_b32 exec_hi, 0x00ff00ff")
    for ct in range(8):
        a(f"buffer_load_dwordx4 {v(EX+4*ct,4)}, v18, {s(rWS,4)}, s6 offen offset:{64*ct}")
        a(f"buffer_load_dwordx2 {v(EX+32+2*ct,2)}, v19, {s(rX,4)}, s7 offen offset:{32*ct}")
    for ct in range(8):
        a(f"s_waitcnt vmcnt({2*(7-ct)})" if ct == 0 else f"s_waitcnt vmcnt({2*(7-ct) + ct})")
        for i in range(2):
            a(f"v_pk_add_f32 {v(ACC+4*ct+2*i,2)}, {v(ACC+4*ct+2*i,2)}, {v(EX+4*ct+2*i,2)}")
            x = EX + 32 + 2*ct + i
            a(f"v_lshlrev_b32 v20, 16, {v(x)}")
            a(f"v_and_b32 v21, 0xffff0000, {v(x)}")
            a(f"v_pk_add_f32 {v(ACC+4*ct+2*i,2)}, {v(ACC+4*ct+2*i,2)}, v[20:21]")
            a(f"v_cvt_pk_bf16_f32 {v(x)}, {v(ACC+4*ct+2*i)}, {v(ACC+4*ct+2*i+1)}")
        a(f"buffer_store_dwordx2 {v(EX+32+2*ct,2)}, v19, {s(rOUT,4)}, s7 offen offset:{32*ct}")
    a.label("K2_end")
    a(f"s_endpgm")
    return name

K2_LDS_TOTAL = K2_LDS

def main(out):
    hdr = open("cdna_kernels/" + NAME + ".s.ref").read().split("; Override")[0]
    a = Asm()
    names = []
    a('.amdgcn_target "amdgcn-amd-amdhsa--gfx950"')
    a(".text")
    for g in (gen_k1, gen_k1b, gen_k2):
        st = len(a.lines)
        names.append(g(a))
        pr = check_hazards(a.lines[st:], names[-1])
        for p in pr: print("HAZARD", p)
    launch = (f"; @launch kernel=k1_kernel grid=(256,1,1) block=(512,1,1) lds={K1_LDS}\n"
              f"; @launch kernel=k1b_kernel grid=(256,1,1) block=(256,1,1) lds={K2_LDS}\n"
              f"; @launch kernel=k2_kernel grid=(256,1,1) block=(512,1,1) lds={K2_LDS_TOTAL}\n")
    txt = hdr + launch + a.text() + '.section .rodata,"a"\n' + "".join(".p2align 6\n" + descriptor(n) for n in names)
    open(out, "w").write(txt)
    print("wrote", out, len(txt), "bytes; LDS", K1_LDS, K2_LDS, K2_LDS_TOTAL)

if __name__ == "__main__":
    main(sys.argv[1] if len(sys.argv) > 1 else "cdna_kernels/" + NAME + ".s")
```

```python
import sys, struct
from asmlib import Asm, v, s, check_hazards

NAME = "parallel_sum__grouped_kv_mqa__dense_activation_relu__prompt"
QF, KF, VF, FL, EP, HF, FP = 0x000000, 0x200000, 0x210000, 0x220000, 0x228000, 0x300000, 0x900000
FL_KV, FL_Q, FL_H, FL_F = FL, FL + 4096, FL + 8192, FL + 12288
HSTR = 88
WS_SIZE = 0x1000000
CSCALE = 0x3eb8aa3b
BIAS = 88.0
def f2u(x): return struct.unpack("<I", struct.pack("<f", x))[0]
def opt(name, default):
    for a_ in sys.argv[1:]:
        if a_.startswith("--" + name + "="): return int(a_.split("=")[1])
    return default
PROF = "--prof" in sys.argv
PROF_OFF = 0xF00000
FORCE_FB = "--forcefb" in sys.argv
DPRE = opt("dpre", 9)
SPIN_MAX = 1 << 15
APRIO = opt("aprio", 1)
GHI = opt("ghi", 3)
GLO = opt("glo", 0)
PSLEEP = opt("psleep", 0)
W1PRE = opt("w1pre", 32)

sW, sB, sG = 3, 4, 5
sPX, sPWQ, sPWK, sPWV, sPWO, sPBX, sPW1, sPW2 = 8, 10, 12, 14, 16, 18, 20, 22
sPOUT, sPDBG, sPWS = 24, 26, 28
sC, sJ = 30, 31
rX, rWA, rWB, rWS, rOUT = 32, 36, 40, 44, 48
sTAG = 52
sSPIN = 54
T = 56

XN_STRIDE = 1040
L_L = 0
L_QO = 9216
L_QT = L_QO + 7 * 8192
assert L_QT == 64 * XN_STRIDE
L_R2 = L_QT + 8192
L_KROT = L_R2
L_STG3 = L_R2 + 65536
L_C = L_STG3 + 16384
L_SY = L_C + 4096
LDS_TOTAL = L_SY + 1024
SY_WQFREE, SY_KVRDY, SY_QRDY, SY_GRDY, SY_QCNT, SY_HCNT, SY_FCNT, SY_XFREE = 0, 4, 8, 12, 16, 20, 24, 28
SY_CF, SY_RED1, SY_RED2, SY_GF, SY_RS = 32, 48, 52, 64, 256

class VM:
    def __init__(self, a): self.a, self.q = a, []
    def issue(self, tag, txt):
        self.a(txt); self.q.append(tag)
        assert len(self.q) < 4000
    def n_after(self, tags):
        if not isinstance(tags, (list, set)): tags = [tags]
        idx = max(i for i, t in enumerate(self.q) if t in tags)
        return len(self.q) - 1 - idx
    def wait(self, tags, extra=""):
        n = self.n_after(tags)
        assert n <= 63, n
        self.a(f"s_waitcnt vmcnt({n}){extra}")
    def drained(self): self.q = []

def stamp(a, i):
    if PROF: a(f"s_memrealtime {s(70+2*i,2)}")
def endpgm(a, n):
    if PROF:
        a("s_waitcnt vmcnt(0)")
        stamp(a, n); n += 1
        a("s_waitcnt lgkmcnt(0)")
        a("s_mov_b64 exec, 1")
        for i in range(15):
            a(f"v_mov_b32 {v(240+i)}, {s(70+2*i)}")
        a(f"v_mov_b32 v255, 15")
        a(f"s_lshl_b32 s6, s2, 3")
        a(f"s_add_u32 s6, s6, {s(sW)}")
        a(f"s_lshl_b32 s6, s6, 6")
        a(f"s_add_u32 s6, s6, {PROF_OFF}")
        a(f"v_mov_b32 v239, 0")
        for q in range(4):
            a(f"buffer_store_dwordx4 {v(240+4*q,4)}, v239, {s(rWS,4)}, s6 offen offset:{16*q}")
    a("s_endpgm")

def srd(a, r, ptr, size):
    a(f"s_mov_b32 {s(r)}, {s(ptr)}")
    a(f"s_and_b32 {s(r+1)}, {s(ptr+1)}, 0xffff")
    a(f"s_mov_b32 {s(r+2)}, {size}")
    a(f"s_mov_b32 {s(r+3)}, 0x20000")

def ids(a):
    a(f"s_and_b32 s6, s2, 7")
    a(f"s_lshr_b32 s7, s2, 3")
    a(f"s_and_b32 {s(sG)}, s7, 7")
    a(f"s_lshr_b32 s7, s7, 3")
    a(f"s_lshl2_add_u32 {s(sB)}, s6, s7")
    a(f"s_lshl3_add_u32 {s(sC)}, {s(sB)}, {s(sG)}")
    a(f"v_and_b32 v1, 63, v0")
    a(f"s_waitcnt lgkmcnt(0)")
    a(f"s_add_u32 s6, {s(sPWS)}, {EP}")
    a(f"s_addc_u32 s7, {s(sPWS+1)}, 0")
    a(f"s_load_dwordx2 {s(sTAG,2)}, s[6:7], 0")

def fix_tag(a):
    a(f"s_add_u32 {s(sTAG)}, {s(sTAG)}, 1")
    a(f"s_addc_u32 {s(sTAG+1)}, {s(sTAG+1)}, 0")

def spin_begin(a, name):
    a(f"s_mov_b32 {s(sSPIN)}, {SPIN_MAX}")
    a.label(name + "_top")
def spin_retry(a, name, sleep=1):
    a(f"s_sleep {sleep}")
    a(f"s_sub_u32 {s(sSPIN)}, {s(sSPIN)}, 1")
    a(f"s_cmp_lg_u32 {s(sSPIN)}, 0")
    a(f"s_cbranch_scc1 {name}_top")
    a.label(name + "_ok")

def lds_wait(a, name, vaddr, off, val, vt, sleep=1):
    spin_begin(a, name)
    a(f"ds_read_b32 {v(vt)}, {v(vaddr)} offset:{off}")
    a(f"s_waitcnt lgkmcnt(0)")
    a(f"v_readfirstlane_b32 s6, {v(vt)}")
    a(f"s_cmp_ge_u32 s6, {val}")
    a(f"s_cbranch_scc1 {name}_ok")
    spin_retry(a, name, sleep)

def lds_inc(a, vsy, off, vone):
    a(f"s_mov_b64 exec, 1")
    a(f"ds_add_u32 {v(vsy)}, {v(vone)} offset:{off}")
    a(f"s_mov_b64 exec, -1")

def publish(a, name, vsy, off, last, vone, vt, flbase):
    a(f"s_lshl_b32 s6, {s(sB)}, 7")
    a(f"s_lshl3_add_u32 s6, {s(sG)}, s6")
    a(f"s_add_u32 s7, s6, {flbase}")
    a(f"v_mov_b32 {v(vt)}, {s(sTAG)}")
    a(f"v_mov_b32 {v(vt+1)}, {s(sTAG+1)}")
    a(f"s_mov_b64 exec, 1")
    a(f"s_waitcnt vmcnt(0)")
    if last > 0:
        a(f"ds_add_rtn_u32 {v(vt+2)}, {v(vsy)}, {v(vone)} offset:{off}")
        a(f"s_waitcnt lgkmcnt(0)")
        a(f"v_readfirstlane_b32 s6, {v(vt+2)}")
        a(f"s_cmp_eq_u32 s6, {last}")
        a(f"s_cbranch_scc0 {name}_skip")
    a(f"buffer_store_dwordx2 {v(vt,2)}, off, {s(rWS,4)}, s7 sc1")
    a.label(name + "_skip")
    a(f"s_mov_b64 exec, -1")

def gen_a(a):
    vm = VM(a)
    a("s_setprio 3")
    ids(a)
    srd(a, rX, sPX, 2097152)
    vXL, vXW, vSY, vONE, vTR, vXR = 2, 3, 6, 7, 4, 5
    XRAW, TMP = 16, 96
    a(f"v_lshrrev_b32 v8, 3, v1")
    a(f"v_and_b32 v9, 7, v1")
    a(f"v_lshlrev_b32 {v(vXL)}, 10, v8")
    a(f"v_lshl_add_u32 {v(vXL)}, v9, 4, {v(vXL)}")
    a(f"s_lshl_b32 s6, {s(sB)}, 16")
    a(f"s_lshl_b32 s7, {s(sW)}, 14")
    a(f"s_add_u32 s6, s6, s7")
    a(f"s_add_u32 s7, s6, 8192")
    for st in range(2):
        for j in range(8):
            vm.issue(("x", st, j), f"buffer_load_dwordx4 {v(XRAW+32*st+4*j,4)}, {v(vXL)}, {s(rX,4)}, s{6+st} offen offset:{128*j}")
    srd(a, rWS, sPWS, WS_SIZE)
    a(f"s_lshl_b32 s6, {s(sW)}, 4")
    a(f"v_add_u32 v8, s6, v8")
    a(f"v_mul_u32_u24 {v(vXW)}, {XN_STRIDE}, v8")
    a(f"v_lshl_add_u32 {v(vXW)}, v9, 4, {v(vXW)}")
    a(f"v_mov_b32 {v(vSY)}, {L_SY}")
    a(f"v_lshl_add_u32 v10, v8, 2, {v(vSY)}")
    a(f"v_mov_b32 {v(vONE)}, 1")
    a(f"v_lshrrev_b32 v11, 5, v1")
    a(f"v_bfe_u32 v12, v1, 2, 2")
    a(f"v_lshlrev_b32 {v(vTR)}, 10, v11")
    a(f"v_lshl_add_u32 {v(vTR)}, v12, 7, {v(vTR)}")
    a(f"v_bfe_u32 v13, v1, 4, 1")
    a(f"v_lshl_add_u32 {v(vTR)}, v13, 5, {v(vTR)}")
    a(f"v_and_b32 v13, 3, v1")
    a(f"v_lshl_add_u32 {v(vTR)}, v13, 3, {v(vTR)}")
    a(f"v_lshrrev_b32 v12, 1, v12")
    a(f"s_and_b32 {s(T)}, {s(sW)}, 1")
    a(f"s_lshr_b32 {s(T+1)}, {s(sW)}, 1")
    a(f"v_xor_b32 v12, {s(T)}, v12")
    a(f"v_lshl_add_u32 {v(vTR)}, v12, 6, {v(vTR)}")
    a(f"v_add_u32 {v(vTR)}, {L_R2}, {v(vTR)}")
    a(f"v_and_b32 v14, 31, v1")
    a(f"s_lshl_b32 s6, {s(T+1)}, 5")
    a(f"v_add_u32 v14, s6, v14")
    a(f"v_mul_u32_u24 {v(vXR)}, {XN_STRIDE}, v14")
    a(f"v_lshl_add_u32 {v(vXR)}, v11, 4, {v(vXR)}")
    a(f"v_lshl_add_u32 v14, v14, 2, {v(vSY)}")
    a(f"v_bfe_u32 v12, v1, 3, 2")
    a(f"v_lshlrev_b32 v15, 13, v12")
    a(f"v_lshl_add_u32 v15, v11, 9, v15")
    a(f"v_lshl_add_u32 v15, v9, 4, v15")
    sONES, sLO, sHI = T+2, T+3, T+4
    a(f"s_mov_b32 {s(sONES)}, 0x3f803f80")
    a(f"s_mov_b32 {s(sLO)}, 0x00003f80")
    a(f"s_mov_b32 {s(sHI)}, 0x3f800000")
    S1, S2 = 80, 82
    for i in range(4): a(f"v_mov_b32 {v(80+i)}, 0")
    for st in range(2):
        for j in range(8):
            vm.wait(("x", st, j))
            for d in range(4):
                x = XRAW + 32*st + 4*j + d
                a(f"v_dot2_f32_bf16 {v(S1+st)}, {v(x)}, {s(sONES)}, {v(S1+st)}")
                a(f"v_dot2_f32_bf16 {v(S2+st)}, {v(x)}, {v(x)}, {v(S2+st)}")
    stamp(a, 1)
    a("s_nop 2")
    for dpp in ("quad_perm:[1,0,3,2]", "quad_perm:[2,3,0,1]", "row_half_mirror"):
        for r in (80, 81, 82, 83):
            a(f"v_add_f32_dpp {v(r)}, {v(r)}, {v(r)} {dpp} row_mask:0xf bank_mask:0xf")
    inv = f2u(1.0/512)
    for r in (80, 81, 82, 83): a(f"v_mul_f32 {v(r)}, {inv:#x}, {v(r)}")
    for st in range(2): a(f"v_fma_f32 {v(S2+st)}, -{v(S1+st)}, {v(S1+st)}, {v(S2+st)}")
    for st in range(2): a(f"v_max_f32 {v(S2+st)}, 0, {v(S2+st)}")
    for st in range(2): a(f"v_cvt_pk_bf16_f32 {v(84+st)}, {v(S1+st)}, {v(S2+st)}")
    for st in range(2): a(f"v_lshlrev_b32 {v(S1+st)}, 16, {v(84+st)}")
    rs_ops = []
    for st in range(2):
        r = 84 + st
        rs_ops.append([f"v_and_b32 {v(r)}, 0xffff0000, {v(r)}",
                       f"v_add_f32 {v(r)}, {f2u(1e-5):#x}, {v(r)}",
                       f"v_cvt_pk_bf16_f32 {v(r)}, {v(r)}, {v(r)}",
                       f"v_and_b32 {v(r)}, 0xffff0000, {v(r)}",
                       f"v_sqrt_f32 {v(r)}, {v(r)}",
                       f"v_cvt_pk_bf16_f32 {v(r)}, {v(r)}, {v(r)}",
                       f"v_and_b32 {v(r)}, 0xffff0000, {v(r)}",
                       f"v_rcp_f32 {v(r)}, {v(r)}"])
    k = 0
    for st in range(2):
        for j in range(8):
            t = TMP + 8*(k % 2); k += 1
            for d in range(4):
                x = XRAW + 32*st + 4*j + d
                a(f"v_dot2_f32_bf16 {v(t+2*d)}, {v(x)}, {s(sLO)}, {v(S1+st)} neg_lo:[0,0,1]")
                a(f"v_dot2_f32_bf16 {v(t+2*d+1)}, {v(x)}, {s(sHI)}, {v(S1+st)} neg_lo:[0,0,1]")
            a(rs_ops[st][j])
            for d in range(4):
                x = XRAW + 32*st + 4*j + d
                a(f"v_cvt_pk_bf16_f32 {v(x)}, {v(t+2*d)}, {v(t+2*d+1)}")
            a(f"ds_write_b128 {v(vXW)}, {v(XRAW+32*st+4*j,4)} offset:{128*j + st*8*XN_STRIDE}")
        a(f"ds_write_b32 v10, {v(84+st)} offset:{SY_RS + 32*st}")
    a(f"s_waitcnt lgkmcnt(0)")
    fix_tag(a)
    stamp(a, 2)
    a(f"s_barrier")
    stamp(a, 3)
    ACC, WF, XF = 64, 16, 40
    LA = 4
    a(f"ds_read_b32 v12, v14 offset:{SY_RS}")
    def rd(st):
        a(f"ds_read_b64_tr_b16 {v(WF+4*(st%6),2)}, {v(vTR)} offset:{2048*st}")
        a(f"ds_read_b64_tr_b16 {v(WF+4*(st%6)+2,2)}, {v(vTR)} offset:{2048*st+512}")
        a(f"ds_read_b128 {v(XF+4*(st%6),4)}, {v(vXR)} offset:{32*st}")
    for st in range(LA): rd(st)
    for st in range(32):
        if st + LA < 32: rd(st + LA)
        a(f"s_waitcnt lgkmcnt({3*min(LA, 31-st)})")
        c = "0" if st == 0 else v(ACC, 16)
        a(f"v_mfma_f32_32x32x16_bf16 {v(ACC,16)}, {v(WF+4*(st%6),4)}, {v(XF+4*(st%6),4)}, {c}")
    lds_inc(a, vSY, SY_WQFREE, vONE)
    a(f"v_mul_f32 v12, {CSCALE:#x}, v12")
    a(f"s_lshl_b32 s6, {s(sB)}, 16")
    a(f"s_lshl_b32 s7, {s(T+1)}, 15")
    a(f"s_add_u32 s6, s6, s7")
    a(f"s_lshl_b32 s7, {s(sG)}, 10")
    a(f"s_add_u32 s6, s6, s7")
    a(f"s_lshl_b32 s7, {s(T)}, 8")
    a(f"s_add_u32 s6, s6, s7")
    a.nop(2)
    assert QF == 0
    for hh in range(2):
        d = 16 + 4*hh
        for i in range(4):
            r = ACC + 8*hh + 2*i
            a(f"v_pk_mul_f32 {v(r,2)}, {v(r,2)}, v[12:13] op_sel_hi:[1,0]")
        for i in range(4):
            r = ACC + 8*hh + 2*i
            a(f"v_cvt_pk_bf16_f32 {v(d+i)}, {v(r)}, {v(r+1)}")
        a(f"buffer_store_dwordx4 {v(d,4)}, v15, {s(rWS,4)}, s6 offen offset:{128*hh} sc1")
    stamp(a, 4)
    vKR, vQO, vIDX, vCA, vQV = 2, 3, 4, 6, 7
    Q, KROT, S0, S1_, C, O, KR, VR = 8, 12, 16, 32, 48, 64, 80, 128
    rot = (0, 4, 8, 12)
    res = [t for t in range(16) if t not in rot]
    kreg = lambda t: KROT if t in rot else KR + 4*res.index(t)
    sMASK, sKB, sVB, sKD = T, T+2, T+6, T+10
    sPH = T + 11
    a(f"s_mov_b32 {s(sMASK)}, 0x0000ffff")
    a(f"s_mov_b32 {s(sMASK+1)}, 0x0000ffff")
    a(f"v_and_b32 v33, 31, v1")
    a(f"v_cmp_eq_u32 vcc, 16, v33")
    a(f"v_mov_b32 v32, 0x3f803f80")
    a(f"v_mov_b32 v40, {v(vSY)}")
    a(f"v_cndmask_b32 v32, 0, v32, vcc")
    a(f"v_mov_b32 v41, {v(vONE)}")
    for r in range(64): a(f"v_mov_b32 {v(VR+r)}, v32")
    publish(a, "A_pubq", 40, SY_QCNT, 3, 41, 44, FL_Q)
    stamp(a, 5)
    for r in range(64, 128): a(f"v_mov_b32 {v(VR+r)}, v32")
    a(f"s_lshl_b32 {s(sKD)}, {s(sW)}, 12")
    a(f"s_add_u32 {s(sKD)}, {s(sKD)}, {L_KROT}")
    a(f"v_lshlrev_b32 v34, 4, v1")
    a(f"v_add_u32 {v(vKR)}, {s(sKD)}, v34")
    a(f"s_lshl_b32 s6, {s(sW)}, 11")
    a(f"s_add_u32 s7, s6, {L_QO}")
    a(f"v_add_u32 {v(vQO)}, s7, v34")
    a(f"s_add_u32 s7, s6, {L_QT}")
    a(f"v_add_u32 v35, s7, v34")
    a(f"v_add_u32 v36, {L_QT}, v34")
    a(f"v_mov_b32 {v(vIDX)}, 0xdddddddd")
    a(f"v_mov_b32 {v(vIDX+1)}, 0xdddddddd")
    a(f"v_lshlrev_b32 {v(vCA)}, 4, v33")
    a(f"v_add_u32 {v(vCA)}, {L_C}, {v(vCA)}")
    a(f"v_and_b32 v37, 15, v1")
    a(f"v_lshrrev_b32 v38, 5, v1")
    a(f"v_lshlrev_b32 {v(vQV)}, 4, v37")
    a(f"v_lshl_add_u32 {v(vQV)}, v38, 8, {v(vQV)}")
    a(f"s_lshl_b32 s6, {s(sW)}, 14")
    a(f"s_add_u32 {s(sVB)}, s6, {VF}")
    a(f"s_add_u32 {s(sKB)}, s6, {KF}")
    a(f"s_sub_u32 {s(sKB)}, {s(sKB)}, {s(sKD)}")
    for i in range(1, 4):
        a(f"s_add_u32 {s(sKB+i)}, {s(sKB)}, {4096*i}")
        a(f"s_add_u32 {s(sVB+i)}, {s(sVB)}, {4096*i}")
    a(f"v_cmp_eq_u32 vcc, 20, v1")
    a(f"v_mov_b32 v0, 0x3f80")
    a(f"v_and_b32 v39, 3, v1")
    a(f"v_cndmask_b32 v0, 0, v0, vcc")
    a(f"v_lshl_add_u32 v39, v39, 2, v40")
    a(f"v_mov_b32 v1, 0")
    spin_begin(a, "A_kv")
    a(f"ds_read_b64 v[42:43], v40 offset:{SY_WQFREE}")
    a(f"s_waitcnt lgkmcnt(0)")
    a(f"v_add_u32 v42, v42, v43")
    a(f"s_nop 0")
    a(f"v_readfirstlane_b32 s6, v42")
    a(f"s_cmp_ge_u32 s6, 5")
    a(f"s_cbranch_scc1 A_kv_ok")
    spin_retry(a, "A_kv")
    stamp(a, 6)
    a(f"s_setprio {GHI}")
    vm.drained()
    def ldK(t, tag):
        vm.issue(tag, f"buffer_load_dwordx4 {v(kreg(t),4)}, {v(vKR)}, {s(rWS,4)}, {s(sKB+t//4)} offen offset:{(t%4)*1024} sc1")
    def dmaK(t, tag):
        a(f"s_add_u32 m0, {s(sKD)}, {(t//4)*1024}")
        a(f"s_nop 0")
        vm.issue(tag, f"buffer_load_dwordx4 {v(vKR)}, {s(rWS,4)}, {s(sKB+t//4)} offen sc1 lds")
    def group(t):
        tag = ("g", t)
        if t == 9: dmaK(0, tag)
        if t + 2 in rot: dmaK(t + 2, tag)
        if t + 1 in res and t + 1 > 2: ldK(t + 1, tag)
        a(f"s_mov_b64 exec, {s(sMASK,2)}")
        for t2 in range(2):
            vm.issue(tag, f"buffer_load_dwordx4 {v(VR+8*t+4*t2,4)}, {v(vQV)}, {s(rWS,4)}, {s(sVB+t//4)} offen offset:{(t%4)*1024+t2*512} sc1")
        a(f"s_mov_b64 exec, -1")
    ldK(1, "k12"); ldK(2, "k12"); ldK(0, "k0")
    for t in range(DPRE): group(t)
    stamp(a, 7)
    lds_wait(a, "A_q", 40, SY_QRDY, 1, 42)
    stamp(a, 8)
    QA, QB = kreg(14), kreg(15)
    assert DPRE <= 12
    a(f"ds_read_b128 {v(QA,4)}, v35")
    a(f"ds_read_b128 {v(QB,4)}, v35 offset:1024")
    a(f"ds_read_b128 {v(Q,4)}, v36")
    a(f"s_lshl_b32 s7, {s(sW)}, 10")
    a(f"v_add_u32 {v(kreg(13))}, s7, {v(vCA)}")
    a(f"s_lshl_b32 s7, {s(sW)}, 2")
    a(f"v_add_u32 {v(kreg(13)+1)}, s7, v40")
    a(f"v_mov_b32 {v(kreg(13)+2)}, v39")
    a(f"v_mov_b32 {v(kreg(13)+3)}, 1")
    vCW, vCF, vCP, vO1 = kreg(13), kreg(13)+1, kreg(13)+2, kreg(13)+3
    vm.wait("k12", " lgkmcnt(1)")
    a(f"v_mfma_f32_32x32x16_bf16 {v(S0,16)}, {v(kreg(1),4)}, {v(QA,4)}, 0")
    a(f"v_mfma_f32_32x32x16_bf16 {v(C,16)}, {v(kreg(1),4)}, {v(QB,4)}, 0")
    a(f"v_mfma_f32_32x32x16_bf16 {v(S1_,16)}, {v(kreg(2),4)}, {v(QA,4)}, 0")
    a(f"v_mfma_f32_32x32x16_bf16 {v(O,16)}, {v(kreg(2),4)}, {v(QB,4)}, 0")
    a.nop(9)
    for i in range(0, 30, 2):
        for base in (S0, C):
            a(f"v_max3_f32 {v(base)}, {v(base)}, {v(base+i+1)}, {v(base+i+2)}")
    for base in (S0, C): a(f"v_max_f32 {v(base)}, {v(base)}, {v(base+31)}")
    for base in (S0, C): a(f"v_mov_b32 {v(base+1)}, {v(base)}")
    a(f"s_nop 0")
    for base in (S0, C): a(f"v_permlane32_swap_b32 {v(base)}, {v(base+1)}")
    a(f"v_mfma_f32_32x32x8_bf16 {v(O,16)}, v[0:1], {v(vIDX,2)}, 0")
    for base in (S0, C): a(f"v_max_f32 {v(base)}, {v(base)}, {v(base+1)}")
    for base in (S0, C): a(f"v_sub_f32 {v(base)}, {f2u(-BIAS):#x}, {v(base)}")
    for i in range(1, 4):
        for base in (S0, C): a(f"v_mov_b32 {v(base+i)}, {v(base)}")
    a(f"ds_write_b128 {v(vCW)}, {v(S0,4)}")
    a(f"ds_write_b128 {v(vCW)}, {v(C,4)} offset:512")
    a(f"ds_write_b32 {v(vCF)}, {v(vO1)} offset:{SY_CF}")
    spin_begin(a, "A_c")
    a(f"ds_read_b32 {v(S0)}, {v(vCP)} offset:{SY_CF}")
    for i in range(4): a(f"ds_read_b128 {v(C+4*i,4)}, {v(vCA)}")
    a(f"s_waitcnt lgkmcnt(0)")
    a(f"v_cmp_eq_u32 vcc, 0, {v(S0)}")
    a(f"s_nop 0")
    a(f"s_cbranch_vccz A_c_ok")
    spin_retry(a, "A_c", 0)
    stamp(a, 9)
    def PV(t, half):
        sb = (S0 if t % 2 == 0 else S1_) + 8*half
        a(f"v_smfmac_f32_32x32x32_bf16 {v(O,16)}, {v(VR+8*t+4*half,4)}, {v(sb,8)}, {v(vIDX)}")
    def QK(t):
        sb = S0 if t % 2 == 0 else S1_
        a(f"v_mfma_f32_32x32x16_bf16 {v(sb,16)}, {v(kreg(t),4)}, {v(Q,4)}, {v(C,16)}")
    def rdK(t): a(f"ds_read_b128 {v(KROT,4)}, {v(vKR)} offset:{(t//4)*1024}")
    def rdQC():
        a(f"ds_read_b128 {v(Q,4)}, {v(vQV)} offset:1024")
        for i in range(4): a(f"ds_read_b128 {v(C+4*i,4)}, {v(vCA)} offset:512")
    def flush():
        a(f"ds_write_b128 {v(vQO)}, {v(O,4)}")
        a(f"ds_write_b128 {v(vQO)}, {v(O+4,4)} offset:1024")
        a(f"ds_write_addtid_b32 {v(O+8)}")
    vm.wait("k0")
    a(f"s_setprio {APRIO}")
    QK(0)
    a(f"s_mov_b32 {s(sPH)}, 7")
    a.nop(11)
    for t in range(16):
        cur = S0 if t % 2 == 0 else S1_
        E = lambda i: a(f"v_exp_f32 {v(cur+i)}, {v(cur+i)}")
        E(0); E(1)
        if t > 0: PV(t-1, 1)
        if t + DPRE < 16: group(t + DPRE)
        if t == 16 - DPRE:
            a(f"s_sub_u32 s6, {L_QT}, {s(sKD)}")
            a(f"v_add_u32 {v(vQV)}, s6, {v(vKR)}")
            a(f"s_lshl_b32 m0, {s(sW)}, 8")
        if t == 15:
            a(f"v_readfirstlane_b32 s6, {v(vIDX+1)}")
            a(f"s_cmp_lg_u32 s6, 0")
            a(f"s_cbranch_scc1 A_g_ok")
            lds_wait(a, "A_g", vCA, L_SY + SY_GRDY - L_C, 1, vIDX+1)
            a(f"v_mov_b32 {v(vIDX+1)}, {v(vIDX)}")
        E(2); E(3); E(4)
        nt = (t + 1) % 16
        vm.wait(("g", t), " lgkmcnt(0)" if (nt in rot or t == 14) else "")
        QK(nt)
        if (t + 2) % 16 in rot: rdK((t + 2) % 16)
        if t == 15: rdK(4)
        if t == 13: a(f"ds_read_b32 {v(vIDX+1)}, {v(vCA)} offset:{L_SY + SY_GRDY - L_C}")
        for i in range(5, 10): E(i)
        PV(t, 0)
        if t == 14: rdQC()
        for i in range(10, 16): E(i)
    stamp(a, 10)
    if PROF: a(f"s_memtime {s(70+2*12,2)}")
    a(".p2align 6")
    a.label("A_ph")
    body_start = len(a.lines)
    for t in range(16):
        cur = S0 if t % 2 == 0 else S1_
        E = lambda i: a(f"v_exp_f32 {v(cur+i)}, {v(cur+i)}")
        nt = (t + 1) % 16
        if t == 0:
            E(0); E(1); PV(15, 1); E(2); E(3); E(4); QK(1)
            for i in range(5, 13): E(i)
            flush()
            a(f"v_mfma_f32_32x32x8_bf16 {v(O,16)}, v[0:1], {v(vIDX,2)}, 0")
            a(f"s_add_u32 m0, m0, 1024")
            E(13); E(14); E(15)
            a(f"v_add_u32 {v(vQO)}, 8192, {v(vQO)}")
            PV(0, 0)
            a(f"v_add_u32 {v(vQV)}, 1024, {v(vQV)}")
            continue
        if t == 1:
            E(0); E(1); E(2); PV(0, 1); a(f"v_add_u32 {v(vCA)}, 512, {v(vCA)}"); E(3); E(4)
        else:
            E(0); E(1); PV(t-1, 1); E(2); E(3); E(4)
        if nt in rot: a(f"s_waitcnt lgkmcnt(0)")
        QK(nt)
        if nt in rot: rdK((nt + 4) % 16)
        for i in range(5, 10): E(i)
        PV(t, 0)
        if t == 14: rdQC()
        if t == 15: a(f"s_sub_u32 {s(sPH)}, {s(sPH)}, 1")
        if t == 15: a(f"s_cmp_lg_u32 {s(sPH)}, 0")
        for i in range(10, 16): E(i)
    a(f"s_cbranch_scc1 A_ph")
    if PROF: a(f"s_memtime {s(70+2*13,2)}")
    stamp(a, 14)
    body = a.lines[body_start:]
    pr = check_hazards(body + body, "attn-loop")
    assert not pr, "\n".join(pr)
    a(f"v_lshrrev_b32 {v(Q)}, 4, {v(vKR)}")
    PVtmp = Q
    a(f"v_and_b32 {v(Q)}, 3, {v(Q)}")
    PV(15, 1)
    a(f"v_lshlrev_b32 {v(Q)}, 8, {v(Q)}")
    spin_begin(a, "A_e")
    a(f"ds_read_b32 {v(Q+1)}, {v(Q)} offset:{L_L + 6*1024 + 128}")
    a(f"s_waitcnt lgkmcnt(0)")
    a(f"v_cmp_eq_u32 vcc, 0, {v(Q+1)}")
    a(f"s_nop 0")
    a(f"s_cbranch_vccz A_e_ok")
    spin_retry(a, "A_e", 0)
    a.nop(5)
    flush()
    endpgm(a, 11)

FD = 6
def gen_g(a):
    vm = VM(a)
    ids(a)
    a(f"s_sub_u32 {s(sJ)}, {s(sW)}, 4")
    vSY, vONE, vU = 2, 3, 4
    srd(a, rWA, sPWQ, 524288)
    a(f"v_lshrrev_b32 v8, 3, v1")
    a(f"v_and_b32 v9, 7, v1")
    a(f"v_lshrrev_b32 v10, 2, v1")
    a(f"v_and_b32 v10, 4, v10")
    a(f"v_xor_b32 v10, v9, v10")
    a(f"v_lshlrev_b32 {v(vU)}, 10, v8")
    a(f"v_lshl_add_u32 {v(vU)}, v10, 4, {v(vU)}")
    a(f"s_lshl_b32 s6, {s(sG)}, 7")
    a(f"v_add_u32 {v(vU)}, s6, {v(vU)}")
    a(f"s_cmp_eq_u32 {s(sJ)}, 3")
    a(f"s_cbranch_scc1 G_kv")
    def wq_dma():
        a(f"s_lshl_b32 {s(T)}, {s(sJ)}, 14")
        a(f"s_add_u32 m0, {s(T)}, {L_R2}")
        a(f"s_lshl_b32 {s(T)}, {s(T)}, 3")
        for u in range(16):
            vm.issue("wq", f"buffer_load_dwordx4 {v(vU)}, {s(rWA,4)}, {s(T)} offen lds")
            if u < 15:
                a(f"s_add_u32 m0, m0, 1024")
                a(f"s_add_u32 {s(T)}, {s(T)}, 8192")
    def common_setup():
        srd(a, rWS, sPWS, WS_SIZE)
        a(f"v_mov_b32 {v(vSY)}, {L_SY}")
        a(f"v_mov_b32 {v(vONE)}, 1")
    wq_dma()
    sP, sWo = T+1, T+2
    vW1, vBW, vT0, vT1, vXR = 5, 6, 7, 11, 12
    ACC, AF, XF, ST = 64, 16, 32, 128
    srd(a, rWB, sPW1, 1409024)
    a(f"s_mul_i32 {s(sP)}, {s(sG)}, 3")
    a(f"s_cmp_eq_u32 {s(sG)}, 7")
    a(f"s_cselect_b32 {s(sP)}, 20, {s(sP)}")
    a(f"s_add_u32 {s(sP)}, {s(sP)}, {s(sJ)}")
    a(f"s_lshr_b32 s6, {s(sG)}, 1")
    a(f"s_add_u32 s6, s6, {s(sJ)}")
    a(f"s_cmp_eq_u32 s6, 5")
    a(f"s_cbranch_scc1 G_idle")
    a(f"s_movk_i32 s6, 2752")
    a(f"v_lshlrev_b32 v13, 4, v9")
    a(f"v_mad_u32_u24 {v(vW1)}, v8, s6, v13")
    a(f"s_lshl_b32 {s(sWo)}, {s(sP)}, 7")
    def ldw(u):
        vm.issue(("w1", u), f"buffer_load_dwordx4 {v(ST+4*(u%32),4)}, {v(vW1)}, {s(rWB,4)}, {s(sWo)} offen")
        a(f"s_add_u32 {s(sWo)}, {s(sWo)}, {8*2752}")
    for u in range(32): ldw(u)
    common_setup()
    a(f"s_lshl_b32 s6, {s(sJ)}, 12")
    a(f"s_add_u32 s6, s6, {L_STG3}")
    a(f"v_lshlrev_b32 {v(vBW)}, 7, v8")
    a(f"v_lshl_add_u32 {v(vBW)}, v10, 4, {v(vBW)}")
    a(f"v_add_u32 {v(vBW)}, s6, {v(vBW)}")
    a(f"v_lshrrev_b32 v13, 5, v1")
    a(f"v_bfe_u32 v14, v1, 2, 2")
    a(f"v_lshlrev_b32 {v(vT0)}, 10, v13")
    a(f"v_lshl_add_u32 {v(vT0)}, v14, 7, {v(vT0)}")
    a(f"v_bfe_u32 v15, v1, 4, 1")
    a(f"v_lshl_add_u32 {v(vT0)}, v15, 5, {v(vT0)}")
    a(f"v_and_b32 v15, 3, v1")
    a(f"v_lshl_add_u32 {v(vT0)}, v15, 3, {v(vT0)}")
    a(f"v_lshrrev_b32 v14, 1, v14")
    a(f"v_lshl_add_u32 {v(vT0)}, v14, 6, {v(vT0)}")
    a(f"v_xor_b32 {v(vT1)}, 64, {v(vT0)}")
    a(f"v_add_u32 {v(vT0)}, s6, {v(vT0)}")
    a(f"v_add_u32 {v(vT1)}, s6, {v(vT1)}")
    a(f"v_and_b32 v14, 31, v1")
    a(f"v_mul_u32_u24 {v(vXR)}, {XN_STRIDE}, v14")
    a(f"v_lshl_add_u32 {v(vXR)}, v13, 4, {v(vXR)}")
    def wr(st):
        vm.wait(("w1", 2*st+1))
        for i in range(2):
            u = 2*st + i
            a(f"ds_write_b128 {v(vBW)}, {v(ST+4*(u%32),4)} offset:{(st%2)*2048 + i*1024}")
    def trd(st):
        b = AF + 8*(st % 2); o = (st % 2)*2048
        a(f"ds_read_b64_tr_b16 {v(b,2)}, {v(vT0)} offset:{o}")
        a(f"ds_read_b64_tr_b16 {v(b+2,2)}, {v(vT0)} offset:{o+512}")
        a(f"ds_read_b64_tr_b16 {v(b+4,2)}, {v(vT1)} offset:{o}")
        a(f"ds_read_b64_tr_b16 {v(b+6,2)}, {v(vT1)} offset:{o+512}")
    def xrd(st):
        for rt in range(2):
            a(f"ds_read_b128 {v(XF+8*(st%2)+4*rt,4)}, {v(vXR)} offset:{32*st + rt*32*XN_STRIDE}")
    wr(0); wr(1); trd(0)
    ldw(32); ldw(33); ldw(34); ldw(35)
    a(f"s_waitcnt lgkmcnt(0)")
    fix_tag(a)
    stamp(a, 1)
    a(f"s_barrier")
    stamp(a, 2)
    xrd(0)
    for st in range(32):
        n = 0
        if st + 1 < 32:
            trd(st + 1); xrd(st + 1); n += 6
        if st + 2 < 32:
            wr(st + 2); n += 2
            if 2*(st+2) + 32 < 64:
                ldw(2*(st+2) + 32); ldw(2*(st+2) + 33)
        a(f"s_waitcnt lgkmcnt({n})")
        if st == 10: stamp(a, 13)
        if st == 20: stamp(a, 14)
        for ct in range(2):
            for rt in range(2):
                acc = ACC + 32*ct + 16*rt
                c = "0" if st == 0 else v(acc, 16)
                a(f"v_mfma_f32_32x32x16_bf16 {v(acc,16)}, {v(AF+8*(st%2)+4*ct,4)}, {v(XF+8*(st%2)+4*rt,4)}, {c}")
    stamp(a, 3)
    a(f"s_setprio {GHI}")
    lds_inc(a, vSY, SY_XFREE, vONE)
    a(f"v_lshlrev_b32 v8, 4, v1")
    a(f"s_mul_i32 s6, {s(sB)}, {2*HSTR}")
    a(f"s_lshl2_add_u32 s6, {s(sP)}, s6")
    a(f"s_lshl_b32 s6, s6, 10")
    a(f"s_add_u32 s6, s6, {HF}")
    a(f"s_add_u32 s7, s6, {HSTR*1024}")
    k = 0
    for ct in range(2):
        for rt in range(2):
            for hh in range(2):
                d = ST + 4*k; k += 1
                for i in range(4):
                    r = ACC + 32*ct + 16*rt + 8*hh + 2*i
                    a(f"v_cvt_pk_bf16_f32 {v(d+i)}, {v(r)}, {v(r+1)}")
                for i in range(4):
                    a(f"v_pk_max_i16 {v(d+i)}, {v(d+i)}, 0")
                a(f"buffer_store_dwordx4 {v(d,4)}, v8, {s(rWS,4)}, s{6+rt} offen offset:{1024*(2*ct+hh)} sc1")
    a.label("G_hpub")
    publish(a, "G_pubh", vSY, SY_HCNT, 2, vONE, 16, FL_H)
    stamp(a, 4)
    lds_wait(a, "G_wqf", vSY, SY_WQFREE, 4, 16)
    a(f"s_lshl_b32 {s(T)}, {s(sJ)}, 14")
    a(f"s_add_u32 {s(T)}, {s(T)}, {L_R2 + 16384}")
    a.label("G_ffn2")
    a(f"s_setprio {GHI}")
    assert L_R2 + 16384 + 3*16384 == L_STG3
    vm.drained()
    sStg, sWo, sHo = T, T+2, T+3
    vA1, vB0, vB1, vT0, vT1 = 5, 6, 7, 11, 12
    ACC, AF, BF, XD = 64, 128, 144, 192
    srd(a, rWA, sPW2, 1409024)
    srd(a, rX, sPX, 2097152)
    a(f"v_add_u32 {v(vA1)}, {8192-1024}, {v(vU)}")
    a(f"s_lshl_b32 {s(sWo)}, {s(sJ)}, 14")
    def issueW(i):
        a(f"s_add_u32 m0, {s(sStg)}, {(i % FD)*2048}")
        a(f"s_nop 0")
        vm.issue(("f", i), f"buffer_load_dwordx4 {v(vU)}, {s(rWA,4)}, {s(sWo)} offen lds")
        vm.issue(("f", i), f"buffer_load_dwordx4 {v(vA1)}, {s(rWA,4)}, {s(sWo)} offen offset:1024 lds")
        a(f"s_add_u32 {s(sWo)}, {s(sWo)}, {4*16384}")
    def issueH(i):
        vm.issue(("f", i), f"buffer_load_dwordx4 {v(BF+8*(i%FD),4)}, {v(vB0)}, {s(rWS,4)}, {s(sHo)} offen sc1")
        vm.issue(("f", i), f"buffer_load_dwordx4 {v(BF+8*(i%FD)+4,4)}, {v(vB1)}, {s(rWS,4)}, {s(sHo)} offen sc1")
        a(f"s_add_u32 {s(sHo)}, {s(sHo)}, 4096")
    for i in range(FD - 1): issueW(i)
    sCT, sRT = T+4, T+5
    a(f"s_and_b32 {s(sCT)}, {s(sJ)}, 1")
    a(f"s_lshr_b32 {s(sRT)}, {s(sJ)}, 1")
    a(f"v_and_b32 v8, 31, v1")
    a(f"v_lshrrev_b32 v9, 5, v1")
    a(f"v_lshlrev_b32 v10, 10, v8")
    a(f"v_lshl_add_u32 v10, v9, 3, v10")
    a(f"s_lshl_b32 s6, {s(sB)}, 16")
    a(f"s_lshl_b32 s7, {s(sRT)}, 15")
    a(f"s_add_u32 {s(T+6)}, s6, s7")
    a(f"s_lshl_b32 s6, {s(sG)}, 7")
    a(f"s_lshl_b32 s7, {s(sCT)}, 6")
    a(f"s_add_u32 {s(T+7)}, s6, s7")
    a(f"s_add_u32 s6, {s(T+6)}, {s(T+7)}")
    for q in range(4):
        vm.issue("xd", f"buffer_load_dwordx2 {v(XD+2*q,2)}, v10, {s(rX,4)}, s6 offen offset:{16*q}")
    a(f"v_lshlrev_b32 v13, 4, v1")
    a(f"s_mul_i32 s6, {s(sRT)}, {HSTR*1024}")
    a(f"v_add_u32 {v(vB0)}, s6, v13")
    a(f"s_sub_u32 s6, {HSTR*1024}, s6")
    a(f"v_add_u32 {v(vB1)}, s6, v13")
    a(f"s_mul_i32 {s(sHo)}, {s(sB)}, {2*HSTR*1024}")
    a(f"s_lshl_b32 s6, {s(sJ)}, 10")
    a(f"s_add_u32 {s(sHo)}, {s(sHo)}, s6")
    a(f"s_add_u32 {s(sHo)}, {s(sHo)}, {HF}")
    a(f"v_bfe_u32 v14, v1, 2, 2")
    a(f"v_lshl_add_u32 {v(vT0)}, v9, 2, v14")
    a(f"v_lshlrev_b32 {v(vT0)}, 7, {v(vT0)}")
    a(f"v_bfe_u32 v15, v1, 4, 1")
    a(f"v_lshl_add_u32 {v(vT0)}, v15, 5, {v(vT0)}")
    a(f"v_and_b32 v15, 3, v1")
    a(f"v_lshl_add_u32 {v(vT0)}, v15, 3, {v(vT0)}")
    a(f"v_lshrrev_b32 v14, 1, v14")
    a(f"v_xor_b32 v14, {s(sCT)}, v14")
    a(f"v_lshl_add_u32 {v(vT0)}, v14, 6, {v(vT0)}")
    a(f"v_xor_b32 {v(vT1)}, 64, {v(vT0)}")
    a(f"v_add_u32 {v(vT0)}, {s(sStg)}, {v(vT0)}")
    a(f"v_add_u32 {v(vT1)}, {s(sStg)}, {v(vT1)}")
    a(f"v_and_b32 v14, 7, v1")
    a(f"v_lshlrev_b32 v14, 3, v14")
    a(f"s_lshl_b32 {s(T+8)}, {s(sB)}, 7")
    a(f"s_add_u32 s7, {s(T+8)}, {FL_H}")
    spin_begin(a, "G_h")
    a(f"buffer_load_dwordx2 v[16:17], v14, {s(rWS,4)}, s7 offen sc1")
    a(f"s_waitcnt vmcnt(0)")
    a(f"v_cmp_ne_u64 vcc, {s(sTAG,2)}, v[16:17]")
    a(f"s_nop 0")
    a(f"s_cbranch_vccz G_h_ok")
    spin_retry(a, "G_h", 2)
    stamp(a, 5)
    vm.drained()
    for i in range(FD - 1): issueH(i)
    N = 22
    def aread(i):
        vm.wait(("f", i))
        base = AF + 8*(i % 2); o = (i % FD)*2048
        a(f"ds_read_b64_tr_b16 {v(base,2)}, {v(vT0)} offset:{o}")
        a(f"ds_read_b64_tr_b16 {v(base+2,2)}, {v(vT0)} offset:{o+1024}")
        a(f"ds_read_b64_tr_b16 {v(base+4,2)}, {v(vT1)} offset:{o}")
        a(f"ds_read_b64_tr_b16 {v(base+6,2)}, {v(vT1)} offset:{o+1024}")
    aread(0)
    a(f"s_setprio {GLO}")
    for i in range(N):
        if i + FD - 1 < N:
            issueW(i + FD - 1); issueH(i + FD - 1)
        if i + 1 < N:
            aread(i + 1)
            a(f"s_waitcnt lgkmcnt(4)")
        else:
            a(f"s_waitcnt lgkmcnt(0)")
        for rt in (1, 0):
            for ct in (1, 0):
                acc = ACC + 16*(2*rt + ct)
                c = "0" if i == 0 else v(acc, 16)
                a(f"v_mfma_f32_32x32x16_bf16 {v(acc,16)}, {v(AF+8*(i%2)+4*ct,4)}, {v(BF+8*(i%FD)+4*rt,4)}, {c}")
    stamp(a, 6)
    a(f"s_setprio {GHI}")
    a(f"v_add_u32 v16, {s(sStg)}, v13")
    for lam in range(1, 4):
        a(f"s_xor_b32 s6, {s(sJ)}, {lam}")
        a(f"s_lshl_b32 s6, s6, 14")
        a(f"s_add_u32 s6, s6, {L_R2 + 16384}")
        a(f"v_add_u32 {v(16+lam)}, s6, v13")
    a(f"s_lshl_b32 s6, {s(sRT)}, 7")
    a(f"v_lshl_add_u32 v20, v8, 2, {v(vSY)}")
    a(f"v_add_u32 v20, s6, v20")
    for lam in (3, 2, 1):
        for q in range(4):
            a(f"ds_write_b128 v16, {v(ACC+16*lam+4*q,4)} offset:{(lam-1)*4096 + q*1024}")
    lds_inc(a, vSY, SY_RED1, vONE)
    a(f"ds_read_b32 v22, v20 offset:{SY_RS}")
    XU = 208
    for q in range(8):
        a(f"v_lshlrev_b32 {v(XU+2*q)}, 16, {v(XD+q)}")
        a(f"v_and_b32 {v(XU+2*q+1)}, 0xffff0000, {v(XD+q)}")
    lds_wait(a, "G_r1", vSY, SY_RED1, 4, 21)
    for lam in range(1, 4):
        for q in range(4):
            a(f"ds_read_b128 {v(ACC+16*lam+4*q,4)}, {v(16+lam)} offset:{(lam-1)*4096 + q*1024}")
    lds_inc(a, vSY, SY_RED2, vONE)
    a(f"v_bfe_u32 v14, v1, 3, 2")
    a(f"v_lshlrev_b32 v14, 13, v14")
    a(f"v_lshl_add_u32 v14, v9, 7, v14")
    a(f"v_and_b32 v15, 7, v1")
    a(f"v_lshl_add_u32 v14, v15, 4, v14")
    a(f"s_lshl_b32 s7, {s(T+7)}, 3")
    a(f"s_add_u32 s7, s7, {s(T+6)}")
    a(f"s_add_u32 {s(T+9)}, s7, {FP}")
    a(f"s_waitcnt lgkmcnt(5)")
    for i in range(8):
        a(f"v_pk_add_f32 {v(ACC+2*i,2)}, {v(ACC+2*i,2)}, {v(ACC+16+2*i,2)}")
    for i in range(8):
        a(f"v_pk_add_f32 {v(ACC+2*i,2)}, {v(ACC+2*i,2)}, {v(ACC+32+2*i,2)}")
    a(f"s_waitcnt lgkmcnt(0)")
    for i in range(8):
        a(f"v_pk_add_f32 {v(ACC+2*i,2)}, {v(ACC+2*i,2)}, {v(ACC+48+2*i,2)}")
    for i in range(8):
        a(f"v_pk_fma_f32 {v(ACC+2*i,2)}, {v(ACC+2*i,2)}, v[22:23], {v(XU+2*i,2)} op_sel_hi:[1,0,1]")
    for i in range(8):
        a(f"v_cvt_pk_bf16_f32 {v(XD+i)}, {v(ACC+2*i)}, {v(ACC+2*i+1)}")
    for hh in range(2):
        a(f"buffer_store_dwordx4 {v(XD+4*hh,4)}, v14, {s(rWS,4)}, {s(T+9)} offen offset:{256*hh} sc1")
    publish(a, "G_pubf", vSY, SY_FCNT, 3, vONE, 16, FL_F)
    lds_wait(a, "G_r2", vSY, SY_RED2, 4, 21)
    stamp(a, 7)
    vm.drained()
    vD, vOR, vLR, vFL, vOW, vBR, vGP, vGF = 4, 5, 6, 7, 12, 13, 14, 15
    TR = 8
    ACC, WFR, OB, BFR, SEL, FPB = 64, 128, 24, 40, 48, 96
    srd(a, rWA, sPWO, 524288)
    srd(a, rOUT, sPOUT, 2097152)
    a(f"v_lshrrev_b32 v16, 4, v1")
    a(f"v_and_b32 v17, 15, v1")
    a(f"v_lshlrev_b32 v18, 2, v16")
    a(f"v_xor_b32 v18, v17, v18")
    a(f"v_lshlrev_b32 {v(vD)}, 10, v16")
    a(f"v_lshl_add_u32 {v(vD)}, v18, 4, {v(vD)}")
    a(f"s_lshl_b32 {s(sWo)}, {s(sJ)}, 8")
    def wo_issue(p, ks):
        for u in range(8):
            a(f"s_add_u32 m0, {s(sStg)}, {(8*ks+u)*1024}")
            a(f"s_nop 0")
            vm.issue(("wo", p, ks), f"buffer_load_dwordx4 {v(vD)}, {s(rWA,4)}, {s(sWo)} offen lds")
            a(f"s_add_u32 {s(sWo)}, {s(sWo)}, 4096")
    wo_issue(0, 0); wo_issue(0, 1)
    a(f"v_bfe_u32 v18, v1, 2, 2")
    a(f"v_and_b32 v19, 3, v1")
    a(f"v_lshlrev_b32 v20, 11, v16")
    a(f"v_lshl_add_u32 v20, v18, 8, v20")
    a(f"v_lshl_add_u32 v20, v19, 4, v20")
    a(f"v_add_u32 v20, {s(sStg)}, v20")
    for c2 in range(4):
        a(f"v_xor_b32 v21, {c2}, v18")
        a(f"v_lshl_add_u32 {v(TR+c2)}, v21, 6, v20")
    a(f"v_bfe_u32 v20, v1, 1, 3")
    a(f"s_lshl_b32 s6, {s(sJ)}, 3")
    a(f"v_add_u32 v20, s6, v20")
    a(f"v_lshlrev_b32 {v(vLR)}, 2, v20")
    a(f"v_lshlrev_b32 v20, 4, v20")
    a(f"v_add_u32 v20, {L_QO}, v20")
    a(f"v_and_b32 v21, 1, v1")
    a(f"v_lshl_add_u32 {v(vOR)}, v16, 9, v20")
    a(f"v_lshl_add_u32 {v(vOR)}, v21, 3, {v(vOR)}")
    a(f"v_lshrrev_b32 v22, 5, v1")
    a(f"v_and_b32 v23, 1, v16")
    a(f"v_lshl_add_u32 {v(vOW)}, v22, 9, v20")
    a(f"v_lshl_add_u32 {v(vOW)}, v23, 3, {v(vOW)}")
    a(f"v_lshl_add_u32 {v(vOW)}, v21, 2, {v(vOW)}")
    a(f"v_lshlrev_b32 {v(vFL)}, 8, v19")
    a(f"v_and_b32 v21, 7, v1")
    a(f"v_lshl_add_u32 v20, v22, 3, v21")
    a(f"v_lshlrev_b32 v20, 4, v20")
    a(f"v_lshl_add_u32 {v(vBR)}, v23, 9, v20")
    a(f"v_add_u32 {v(vBR)}, {L_QO}, {v(vBR)}")
    a(f"v_lshl_add_u32 {v(vGP)}, v19, 2, {v(vSY)}")
    a(f"s_lshl_b32 s6, {s(sJ)}, 2")
    a(f"v_add_u32 {v(vGF)}, s6, {v(vSY)}")
    a(f"s_mov_b32 {s(T+4)}, {f2u(2.0**120):#x}")
    for p in range(8):
        for ks in range(2):
            vm.wait(("wo", p, ks))
            for c2 in range(4):
                for e in range(2):
                    d = WFR + 32*ks + 8*c2 + 4*e
                    a(f"ds_read_b64_tr_b16 {v(d,2)}, {v(TR+c2)} offset:{ks*8192 + 8*e}")
                    a(f"ds_read_b64_tr_b16 {v(d+2,2)}, {v(TR+c2)} offset:{ks*8192 + 1024 + 8*e}")
                if c2 == 2: a(f"s_waitcnt lgkmcnt(4)")
            a(f"s_waitcnt lgkmcnt(0)")
            if p < 7: wo_issue(p + 1, ks)
        if p == 6:
            a(f"v_and_b32 v16, 1, v1")
            a(f"v_lshlrev_b32 v16, 3, v16")
            a(f"s_lshl_b32 s7, {s(sJ)}, 4")
            a(f"s_add_u32 s7, s7, {s(T+8)}")
            a(f"s_add_u32 s7, s7, {FL_F}")
            spin_begin(a, "G_f")
            a(f"buffer_load_dwordx2 v[18:19], v16, {s(rWS,4)}, s7 offen sc1")
            a(f"s_waitcnt vmcnt(0)")
            a(f"v_cmp_ne_u64 vcc, {s(sTAG,2)}, v[18:19]")
            a(f"s_nop 0")
            a(f"s_cbranch_vccz G_f_ok")
            spin_retry(a, "G_f", 2)
            a(f"v_lshrrev_b32 v16, 4, v1")
            a(f"v_and_b32 v17, 7, v1")
            a(f"v_lshlrev_b32 v17, 4, v17")
            a(f"v_lshl_add_u32 v17, v16, 7, v17")
            a(f"s_lshl_b32 s6, {s(sC)}, 13")
            a(f"s_lshl_b32 s7, {s(sJ)}, 11")
            a(f"s_add_u32 s6, s6, s7")
            a(f"s_add_u32 s6, s6, {FP}")
            for c2 in range(4):
                vm.issue("fp", f"buffer_load_dwordx4 {v(FPB+4*c2,4)}, v17, {s(rWS,4)}, s6 offen offset:{512*c2} sc1")
            a(f"v_and_b32 v17, 1, v1")
            a(f"v_lshlrev_b32 v17, 4, v17")
            a(f"v_mov_b32 v18, 0x3f80")
            a(f"v_lshlrev_b32 v17, v17, v18")
            a(f"v_bfe_u32 v18, v1, 1, 3")
            a(f"v_lshrrev_b32 v19, 1, v16")
            a(f"v_lshlrev_b32 v19, 2, v19")
            a(f"v_xor_b32 v18, v18, v19")
            a(f"v_and_b32 v19, 1, v16")
            a(f"v_lshl_add_u32 v18, v19, 3, v18")
            for e in range(2):
                for jj in range(4):
                    a(f"v_cmp_eq_u32 vcc, {jj + 8*e}, v18")
                    a(f"s_nop 1")
                    a(f"v_cndmask_b32 {v(SEL+4*e+jj)}, 0, v17, vcc")
        o = p * 8192
        spin_begin(a, f"G_o{p}")
        a(f"ds_read_b32 {v(OB+12)}, {v(vFL)} offset:{L_L + p*1024 + 128}")
        for w in range(4):
            a(f"ds_read_b64 {v(OB+2*w,2)}, {v(vOR)} offset:{o + 2048*w}")
        a(f"ds_read2st64_b32 {v(OB+8,2)}, {v(vLR)} offset0:{4*p} offset1:{4*p+1}")
        a(f"ds_read2st64_b32 {v(OB+10,2)}, {v(vLR)} offset0:{4*p+2} offset1:{4*p+3}")
        a(f"s_waitcnt lgkmcnt(0)")
        a(f"v_cmp_eq_u32 vcc, 0, {v(OB+12)}")
        a(f"s_nop 0")
        a(f"s_cbranch_vccz G_o{p}_ok")
        spin_retry(a, f"G_o{p}", 1 if p == 7 else 3)
        assert L_L == 0
        a(f"v_pk_add_f32 {v(OB+8,2)}, {v(OB+8,2)}, {v(OB+10,2)}")
        a(f"v_pk_add_f32 {v(OB,2)}, {v(OB,2)}, {v(OB+2,2)}")
        a(f"v_add_f32 {v(OB+8)}, {v(OB+8)}, {v(OB+9)}")
        a(f"v_pk_add_f32 {v(OB+4,2)}, {v(OB+4,2)}, {v(OB+6,2)}")
        a(f"v_rcp_f32 {v(OB+10)}, {v(OB+8)}")
        a(f"v_pk_add_f32 {v(OB,2)}, {v(OB,2)}, {v(OB+4,2)}")
        a(f"s_mov_b32 {s(T+5)}, {p}")
        a(f"v_maximum3_f32 {v(OB+9)}, |{v(OB)}|, |{v(OB+1)}|, {v(OB+8)}")
        a(f"v_cmp_ngt_f32 vcc, {s(T+4)}, {v(OB+9)}")
        a(f"s_nop 0")
        if FORCE_FB and p % 3 == 1: a(f"s_branch G_fb")
        else: a(f"s_cbranch_vccnz G_fb")
        a.label(f"G_ret{p}")
        a(f"v_pk_mul_f32 {v(OB,2)}, {v(OB,2)}, {v(OB+10,2)} op_sel_hi:[1,0]")
        a(f"v_cvt_pk_bf16_f32 {v(OB)}, {v(OB)}, {v(OB+1)}")
        a(f"ds_write_b32 {v(vOW)}, {v(OB)} offset:{o}")
        a(f"s_mov_b64 exec, 1")
        a(f"ds_write_b32 {v(vGF)}, {v(vONE)} offset:{SY_GF + 16*p}")
        a(f"s_mov_b64 exec, -1")
        if p == 6:
            vm.wait("fp")
            for c2 in range(4):
                for e in range(2):
                    t = 2*c2 + e
                    a(f"v_mfma_f32_16x16x32_bf16 {v(ACC+4*t,4)}, {v(SEL+4*e,4)}, {v(FPB+4*c2,4)}, {v(ACC+4*t,4)}")
        if p == 7:
            a(f"v_and_b32 v16, 7, v1")
            a(f"v_lshrrev_b32 v17, 4, v1")
            a(f"v_lshlrev_b32 v16, 10, v16")
            a(f"v_lshl_add_u32 v16, v17, 4, v16")
            a(f"s_lshl_b32 {s(T+6)}, {s(sC)}, 13")
            a(f"s_lshl_b32 s7, {s(sJ)}, 8")
            a(f"s_add_u32 {s(T+6)}, {s(T+6)}, s7")
        spin_begin(a, f"G_b{p}")
        a(f"ds_read_b32 {v(OB+12)}, {v(vGP)} offset:{SY_GF + 16*p}")
        for ks in range(2):
            a(f"ds_read_b128 {v(BFR+4*ks,4)}, {v(vBR)} offset:{o + 256*ks}")
        a(f"s_waitcnt lgkmcnt(0)")
        a(f"v_cmp_eq_u32 vcc, 0, {v(OB+12)}")
        a(f"s_nop 0")
        a(f"s_cbranch_vccz G_b{p}_ok")
        spin_retry(a, f"G_b{p}", 0 if p == 7 else 1)
        if p < 7: a(f"s_setprio {GLO}")
        for ks in range(2):
            for t in range(8):
                c = "0" if (p == 0 and ks == 0) else v(ACC+4*t, 4)
                a(f"v_mfma_f32_16x16x32_bf16 {v(ACC+4*t,4)}, {v(WFR+32*ks+4*t,4)}, {v(BFR+4*ks,4)}, {c}")
        if p < 7: a(f"s_setprio {GHI}")
        if p in (0, 3, 6): stamp(a, {0: 8, 3: 9, 6: 10}[p])
    stamp(a, 11)
    a(f"s_mov_b32 exec_lo, 0x00ff00ff")
    a(f"s_mov_b32 exec_hi, 0x00ff00ff")
    for c2 in range(4):
        if c2 == 3: a("s_nop 0")
        for i in range(4):
            a(f"v_cvt_pk_bf16_f32 {v(FPB+4*c2+i)}, {v(ACC+8*c2+2*i)}, {v(ACC+8*c2+2*i+1)}")
        a(f"buffer_store_dwordx4 {v(FPB+4*c2,4)}, v16, {s(rOUT,4)}, {s(T+6)} offen offset:{64*c2}")
    a(f"s_add_u32 s6, s2, {s(sJ)}")
    a(f"s_cmp_eq_u32 s6, 0")
    a(f"s_cbranch_scc0 G_end")
    a(f"s_mov_b64 exec, 1")
    a(f"v_mov_b32 v18, {s(sTAG)}")
    a(f"v_mov_b32 v19, {s(sTAG+1)}")
    a(f"s_mov_b32 s6, {EP}")
    a(f"buffer_store_dwordx2 v[18:19], off, {s(rWS,4)}, s6 sc1")
    a.label("G_end")
    endpgm(a, 12)

    a.label("G_fb")
    FS, FC, FO, FK, FV, FQ, FI, FA_, FVo = 192, 208, 224, 240, 244, 252, 56, 57, 58
    a(f"v_lshlrev_b32 {v(FA_)}, 4, v1")
    a(f"s_lshl_b32 s6, {s(sC)}, 13")
    a(f"s_lshl_b32 s7, {s(T+5)}, 10")
    a(f"s_add_u32 s6, s6, s7")
    a(f"buffer_load_dwordx4 {v(FQ,4)}, {v(FA_)}, {s(rWS,4)}, s6 offen sc1")
    a(f"v_mov_b32 {v(FI)}, 0xdddddddd")
    a(f"v_mov_b32 {v(FC)}, 0xff800000")
    a(f"s_mov_b32 s6, {KF}")
    a.label("G_fb1")
    a(f"buffer_load_dwordx4 {v(FK,4)}, {v(FA_)}, {s(rWS,4)}, s6 offen sc1")
    a(f"s_waitcnt vmcnt(0)")
    a(f"v_mfma_f32_32x32x16_bf16 {v(FS,16)}, {v(FK,4)}, {v(FQ,4)}, 0")
    a.nop(12)
    for i in range(8):
        a(f"v_maximum3_f32 {v(FC)}, {v(FC)}, {v(FS+2*i)}, {v(FS+2*i+1)}")
    a(f"s_add_u32 s6, s6, 1024")
    a(f"s_cmp_lt_u32 s6, {KF + 65536}")
    a(f"s_cbranch_scc1 G_fb1")
    a(f"v_mov_b32 {v(FC+1)}, {v(FC)}")
    a(f"s_nop 1")
    a(f"v_permlane32_swap_b32 {v(FC)}, {v(FC+1)}")
    a(f"v_and_b32 {v(FVo)}, 31, v1")
    a(f"v_cmp_eq_u32 vcc, 16, {v(FVo)}")
    a(f"v_maximum3_f32 {v(FC)}, {v(FC)}, {v(FC+1)}, {v(FC+1)}")
    a(f"v_mov_b32 {v(FV)}, 0x3f803f80")
    a(f"v_cndmask_b32 {v(FV)}, 0, {v(FV)}, vcc")
    a(f"v_sub_f32 {v(FC)}, 0, {v(FC)}")
    for i in range(1, 8): a(f"v_mov_b32 {v(FV+i)}, {v(FV)}")
    for i in range(1, 16): a(f"v_mov_b32 {v(FC+i)}, {v(FC)}")
    for i in range(16): a(f"v_mov_b32 {v(FO+i)}, 0")
    a(f"v_and_b32 {v(FVo)}, 15, v1")
    a(f"v_lshrrev_b32 {v(FS)}, 5, v1")
    a(f"v_lshlrev_b32 {v(FVo)}, 4, {v(FVo)}")
    a(f"v_lshl_add_u32 {v(FVo)}, {v(FS)}, 8, {v(FVo)}")
    a(f"s_mov_b32 s6, {KF}")
    a.label("G_fb2")
    a(f"s_add_u32 s7, s6, {VF - KF}")
    a(f"buffer_load_dwordx4 {v(FK,4)}, {v(FA_)}, {s(rWS,4)}, s6 offen sc1")
    a(f"s_mov_b32 exec_lo, 0xffff")
    a(f"s_mov_b32 exec_hi, 0xffff")
    a(f"buffer_load_dwordx4 {v(FV,4)}, {v(FVo)}, {s(rWS,4)}, s7 offen sc1")
    a(f"buffer_load_dwordx4 {v(FV+4,4)}, {v(FVo)}, {s(rWS,4)}, s7 offen offset:512 sc1")
    a(f"s_mov_b64 exec, -1")
    a(f"s_waitcnt vmcnt(0)")
    a(f"v_mfma_f32_32x32x16_bf16 {v(FS,16)}, {v(FK,4)}, {v(FQ,4)}, {v(FC,16)}")
    a.nop(12)
    for i in range(16): a(f"v_exp_f32 {v(FS+i)}, {v(FS+i)}")
    a(f"s_nop 1")
    a(f"v_smfmac_f32_32x32x32_bf16 {v(FO,16)}, {v(FV,4)}, {v(FS,8)}, {v(FI)}")
    a(f"v_smfmac_f32_32x32x32_bf16 {v(FO,16)}, {v(FV+4,4)}, {v(FS+8,8)}, {v(FI)}")
    a.nop(16)
    a(f"s_add_u32 s6, s6, 1024")
    a(f"s_cmp_lt_u32 s6, {KF + 65536}")
    a(f"s_cbranch_scc1 G_fb2")
    a(f"s_lshl_b32 s6, {s(T+5)}, 13")
    a(f"s_add_u32 s7, s6, {L_QO}")
    a(f"v_add_u32 {v(FA_)}, s7, {v(FA_)}")
    a(f"v_add_u32 {v(FS)}, s6, {v(vOR)}")
    a(f"s_lshl_b32 s6, {s(T+5)}, 10")
    a(f"v_add_u32 {v(FS+1)}, s6, {v(vLR)}")
    a(f"v_lshlrev_b32 {v(FS+2)}, 2, v1")
    a(f"v_add_u32 {v(FS+2)}, s6, {v(FS+2)}")
    a(f"s_lshl_b32 s6, {s(sJ)}, 3")
    a(f"s_lshl_b32 exec_lo, 0xff, s6")
    a(f"s_mov_b32 exec_hi, exec_lo")
    a(f"ds_write_b128 {v(FA_)}, {v(FO,4)}")
    a(f"ds_write_b128 {v(FA_)}, {v(FO+4,4)} offset:1024")
    a(f"s_mov_b32 exec_hi, 0")
    a(f"ds_write_b32 {v(FS+2)}, {v(FO+8)}")
    a(f"s_mov_b64 exec, -1")
    a(f"ds_read_b64 {v(OB,2)}, {v(FS)}")
    a(f"ds_read_b32 {v(OB+8)}, {v(FS+1)}")
    a(f"s_waitcnt lgkmcnt(0)")
    a(f"v_rcp_f32 {v(OB+10)}, {v(OB+8)}")
    for p in range(7):
        a(f"s_cmp_eq_u32 {s(T+5)}, {p}")
        a(f"s_cbranch_scc1 G_ret{p}")
    a(f"s_branch G_ret7")

    a.label("G_idle")
    common_setup()
    a(f"s_waitcnt vmcnt(0) lgkmcnt(0)")
    fix_tag(a)
    stamp(a, 1)
    a(f"s_barrier")
    stamp(a, 2)
    stamp(a, 3)
    lds_inc(a, vSY, SY_XFREE, vONE)
    a(f"s_branch G_hpub")

    a.label("G_kv")
    vm.drained()
    a("s_setprio 3")
    WK, XK = 128, 64
    vL16, vBW, vTk, vXk = 5, 6, 7, 11
    a(f"s_cmp_ge_u32 {s(sG)}, 4")
    a(f"s_cselect_b32 s6, {s(sPWV)}, {s(sPWK)}")
    a(f"s_cselect_b32 s7, {s(sPWV+1)}, {s(sPWK+1)}")
    srd(a, rWB, 6, 16384)
    a(f"v_lshlrev_b32 {v(vL16)}, 4, v1")
    for u in range(16):
        if u % 4 == 0: a(f"s_movk_i32 s6, {u*1024}")
        vm.issue(("wk", u), f"buffer_load_dwordx4 {v(WK+4*u,4)}, {v(vL16)}, {s(rWB,4)}, s6 offen offset:{(u%4)*1024}")
    wq_dma()
    common_setup()
    a(f"v_lshl_add_u32 v12, v1, 2, {v(vSY)}")
    a(f"v_mov_b32 v13, 0")
    a(f"ds_write_b32 v12, v13")
    a(f"v_add_u32 {v(vBW)}, {L_STG3 + 3*4096}, {v(vL16)}")
    a(f"v_lshrrev_b32 v12, 4, v1")
    a(f"v_bfe_u32 v13, v1, 2, 2")
    a(f"v_lshl_add_u32 v13, v12, 3, v13")
    a(f"v_and_b32 v14, 3, v1")
    a(f"v_lshlrev_b32 v14, 3, v14")
    a(f"v_lshl_add_u32 {v(vTk)}, v13, 5, v14")
    a(f"v_add_u32 {v(vTk)}, {L_STG3 + 3*4096}, {v(vTk)}")
    sTG = T + 1
    a(f"s_and_b32 {s(sTG)}, {s(sG)}, 3")
    a(f"s_lshl_b32 s6, {s(sTG)}, 4")
    a(f"v_and_b32 v13, 15, v1")
    a(f"v_add_u32 v14, s6, v13")
    a(f"v_mul_u32_u24 {v(vXk)}, {XN_STRIDE}, v14")
    a(f"v_lshl_add_u32 {v(vXk)}, v12, 4, {v(vXk)}")
    a(f"v_lshl_add_u32 v16, v14, 2, {v(vSY)}")
    a(f"s_lshl_b32 s6, {s(sTG)}, 6")
    a(f"v_lshl_add_u32 v17, v12, 4, {v(vSY)}")
    a(f"v_add_u32 v17, s6, v17")
    a(f"v_and_b32 v14, 1, v12")
    a(f"v_lshrrev_b32 v15, 1, v12")
    a(f"v_lshlrev_b32 v13, 4, v13")
    a(f"v_lshl_add_u32 v18, v14, 9, v13")
    a(f"v_lshl_add_u32 v18, v15, 3, v18")
    a(f"v_lshl_add_u32 v19, v15, 8, v13")
    a(f"v_lshl_add_u32 v19, v14, 3, v19")
    a(f"s_lshr_b32 s7, {s(sTG)}, 1")
    a(f"s_lshl1_add_u32 s7, {s(sB)}, s7")
    a(f"s_lshl_b32 s7, s7, 10")
    a(f"s_and_b32 s6, {s(sTG)}, 1")
    a(f"s_lshl_b32 {s(T+2)}, s6, 8")
    a(f"s_add_u32 {s(T+2)}, {s(T+2)}, s7")
    a(f"s_add_u32 {s(T+2)}, {s(T+2)}, {KF}")
    a(f"s_lshl_b32 {s(T+3)}, s6, 9")
    a(f"s_add_u32 {s(T+3)}, {s(T+3)}, s7")
    a(f"s_add_u32 {s(T+3)}, {s(T+3)}, {VF}")
    for u in range(16):
        vm.wait(("wk", u))
        a(f"ds_write_b128 {v(vBW)}, {v(WK+4*u,4)} offset:{(u%4)*1024}")
        a(f"ds_read_b64_tr_b16 {v(WK+4*u,2)}, {v(vTk)} offset:{(u%4)*1024}")
        a(f"ds_read_b64_tr_b16 {v(WK+4*u+2,2)}, {v(vTk)} offset:{(u%4)*1024+128}")
        if u % 4 == 3: a(f"s_waitcnt lgkmcnt(0)")
    a(f"s_waitcnt vmcnt(0) lgkmcnt(0)")
    fix_tag(a)
    a(f"s_cmp_ge_u32 {s(sG)}, 4")
    stamp(a, 1)
    a(f"s_barrier")
    stamp(a, 2)
    for u in range(14):
        a(f"ds_read_b128 {v(XK+4*u,4)}, {v(vXk)} offset:{64*u}")
    a(f"s_cbranch_scc1 G_v")
    for isv in range(2):
        if isv: a.label("G_v")
        for u in range(16):
            if u == 2:
                for uu in (14, 15): a(f"ds_read_b128 {v(XK+4*uu,4)}, {v(vXk)} offset:{64*uu}")
                if isv: a(f"ds_read_b128 v[24:27], v17 offset:{SY_RS}")
                else: a(f"ds_read_b32 v24, v16 offset:{SY_RS}")
            a(f"s_waitcnt lgkmcnt({13-u if u < 2 else 16-u})")
            c = "0" if u == 0 else "v[20:23]"
            if isv: a(f"v_mfma_f32_16x16x32_bf16 v[20:23], {v(XK+4*u,4)}, {v(WK+4*u,4)}, {c}")
            else:   a(f"v_mfma_f32_16x16x32_bf16 v[20:23], {v(WK+4*u,4)}, {v(XK+4*u,4)}, {c}")
        a(f"s_waitcnt lgkmcnt(0)")
        a.nop(7)
        if isv:
            a(f"v_pk_mul_f32 v[20:21], v[20:21], v[24:25]")
            a(f"v_pk_mul_f32 v[22:23], v[22:23], v[26:27]")
        else:
            a(f"v_pk_mul_f32 v[20:21], v[20:21], v[24:25] op_sel_hi:[1,0]")
            a(f"v_pk_mul_f32 v[22:23], v[22:23], v[24:25] op_sel_hi:[1,0]")
        a(f"v_cvt_pk_bf16_f32 v20, v20, v21")
        a(f"v_cvt_pk_bf16_f32 v21, v22, v23")
        a(f"buffer_store_dwordx2 v[20:21], v{18+isv}, {s(rWS,4)}, {s(T+2+isv)} offen sc1")
        if not isv: a(f"s_branch G_kvd")
    a.label("G_kvd")
    publish(a, "G_pubkv", vSY, 0, 0, vONE, 24, FL_KV)
    stamp(a, 3)
    a(f"v_lshrrev_b32 v12, 2, v1")
    a(f"v_and_b32 v13, 3, v1")
    a(f"v_lshlrev_b32 v12, 7, v12")
    a(f"v_lshl_add_u32 v12, v13, 4, v12")
    a(f"v_and_b32 v13, 7, v1")
    a(f"v_lshlrev_b32 v13, 3, v13")
    a(f"s_mov_b32 {s(T+1)}, {FL_KV}")
    a(f"s_lshl_b32 {s(T+2)}, {s(sB)}, 7")
    a(f"s_add_u32 {s(T+2)}, {s(T+2)}, {FL_Q}")
    spin_begin(a, "G_pk")
    a(f"buffer_load_dwordx4 v[16:19], v12, {s(rWS,4)}, {s(T+1)} offen sc1")
    a(f"buffer_load_dwordx4 v[20:23], v12, {s(rWS,4)}, {s(T+1)} offen offset:2048 sc1")
    a(f"s_waitcnt vmcnt(0)")
    a(f"v_cmp_ne_u64 vcc, {s(sTAG,2)}, v[16:17]")
    a(f"v_cmp_ne_u64 s[6:7], {s(sTAG,2)}, v[18:19]")
    a(f"v_cmp_ne_u64 {s(T+4,2)}, {s(sTAG,2)}, v[20:21]")
    a(f"v_cmp_ne_u64 {s(T+6,2)}, {s(sTAG,2)}, v[22:23]")
    a(f"s_or_b64 s[6:7], s[6:7], vcc")
    a(f"s_or_b64 s[6:7], s[6:7], {s(T+4,2)}")
    a(f"s_or_b64 s[6:7], s[6:7], {s(T+6,2)}")
    a(f"s_cbranch_scc0 G_pk_ok")
    spin_retry(a, "G_pk", PSLEEP)
    a(f"ds_write_b32 {v(vSY)}, {v(vONE)} offset:{SY_KVRDY}")
    stamp(a, 13)
    spin_begin(a, "G_pq")
    a(f"buffer_load_dwordx2 v[16:17], v13, {s(rWS,4)}, {s(T+2)} offen sc1")
    a(f"s_waitcnt vmcnt(0)")
    a(f"v_cmp_ne_u64 vcc, {s(sTAG,2)}, v[16:17]")
    a(f"s_nop 0")
    a(f"s_cbranch_vccz G_pq_ok")
    spin_retry(a, "G_pq", 0)
    a(f"s_lshl_b32 s6, {s(sC)}, 13")
    a(f"s_mov_b32 m0, {L_QT}")
    a(f"s_add_u32 s7, s6, 4096")
    for p in range(8):
        if p == 4:
            a(f"s_mov_b32 m0, {L_QT + 4096}")
            a(f"s_nop 0")
        a(f"buffer_load_dwordx4 {v(vL16)}, {s(rWS,4)}, s{6 + p//4} offen offset:{(p%4)*1024} sc1 lds")
    a(f"s_waitcnt vmcnt(0)")
    a(f"ds_write_b32 {v(vSY)}, {v(vONE)} offset:{SY_QRDY}")
    stamp(a, 14)
    lds_wait(a, "G_xf", vSY, SY_XFREE, 3, 16, 2)
    lds_wait(a, "G_wq3", vSY, SY_WQFREE, 4, 16)
    for i in range(4): a(f"v_mov_b32 {v(16+i)}, 0")
    for i in range(8): a(f"ds_write_b128 {v(vL16)}, v[16:19] offset:{L_L + 1024*i}")
    a(f"ds_write_b32 {v(vSY)}, {v(vONE)} offset:{SY_GRDY}")
    a(f"s_mov_b32 {s(T)}, {L_STG3}")
    stamp(a, 4)
    a(f"s_branch G_ffn2")

def descriptor(name, vgpr=256, sgpr=102):
    return f""".amdhsa_kernel {name}
  .amdhsa_next_free_vgpr {vgpr}
  .amdhsa_next_free_sgpr {sgpr}
  .amdhsa_accum_offset {min(256, (vgpr+3)//4*4)}
  .amdhsa_group_segment_fixed_size 0
  .amdhsa_kernarg_size 88
  .amdhsa_user_sgpr_count 2
  .amdhsa_user_sgpr_kernarg_segment_ptr 1
  .amdhsa_system_sgpr_workgroup_id_x 1
.end_amdhsa_kernel
"""

def main(out):
    hdr = open("cdna_kernels/" + NAME + ".s.ref").read().split("; Override")[0]
    a = Asm()
    name = NAME + "_kernel"
    a('.amdgcn_target "amdgcn-amd-amdhsa--gfx950"')
    a(".text")
    a(f".globl {name}")
    a(f".p2align 8")
    a(f".type {name},@function")
    a.label(name)
    a(f"s_cmp_ge_u32 s2, 256")
    a(f"s_cbranch_scc1 K_exit")
    stamp(a, 0)
    if PROF:
        for i in range(1, 15): a(f"s_mov_b32 {s(70+2*i)}, 0")
    a(f"s_load_dwordx16 s[8:23], s[0:1], 0")
    a(f"s_load_dwordx4 s[24:27], s[0:1], 64")
    a(f"s_load_dwordx2 s[28:29], s[0:1], 80")
    a(f"v_lshrrev_b32 v1, 6, v0")
    a(f"s_nop 0")
    a(f"v_readfirstlane_b32 {s(sW)}, v1")
    a(f"s_cmp_ge_u32 {s(sW)}, 4")
    a(f"s_cbranch_scc1 G_start")
    gen_a(a)
    a.label("K_exit")
    a("s_endpgm")
    a(".p2align 6")
    a.label("G_start")
    gen_g(a)
    pr = check_hazards(a.lines, name)
    for p in pr: print("HAZARD", p)
    launch = f"; @launch grid=(256,1,1) block=(512,1,1) lds={LDS_TOTAL}\n"
    txt = hdr + launch + a.text() + '.section .rodata,"a"\n.p2align 6\n' + descriptor(name)
    open(out, "w").write(txt)
    print("wrote", out, len(txt), "bytes; LDS", LDS_TOTAL)

if __name__ == "__main__":
    main(sys.argv[1] if len(sys.argv) > 1 and not sys.argv[1].startswith("--") else "cdna_kernels/" + NAME + ".s")
```

```python
import sys, struct
from asmlib import Asm, v, s, check_hazards

NAME = "parallel_sum__grouped_kv_mqa__dense_activation_relu__prompt"
QF, KF, VF, FL_KV, FL_H, EP, OF, HF = 0x040000, 0x300000, 0x310000, 0x320000, 0x328000, 0x32A000, 0x400000, 0x600000
HSTR = 88
WS_SIZE = 0x1000000
CSCALE = 0x3eb8aa3b
BIAS = 88.0
def f2u(x): return struct.unpack("<I", struct.pack("<f", x))[0]
def opt(name, default):
    for a_ in sys.argv[1:]:
        if a_.startswith("--" + name + "="): return int(a_.split("=")[1])
    return default
PROF = "--prof" in sys.argv
PROF_OFF = 0xF00000
FORCE_FB = "--forcefb" in sys.argv
DPRE = opt("dpre", 9)
SPIN_MAX = 1 << 15
APRIO = opt("aprio", 1)
GHI = opt("ghi", 3)
GLO = opt("glo", 0)
PSLEEP = opt("psleep", 0)
W1D = opt("w1d", 10)
W1ROT = opt("w1rot", 7)
KVFIRST = opt("kvfirst", 1)
KVROT = opt("kvrot", 1)
F2ROT = opt("f2rot", 1)
MAP84 = opt("map84", 1)
FD = opt("fd", 6)

sW, sB, sG = 3, 4, 5
sPX, sPWQ, sPWK, sPWV, sPWO, sPBX, sPW1, sPW2 = 8, 10, 12, 14, 16, 18, 20, 22
sPOUT, sPDBG, sPWS = 24, 26, 28
sC, sJ = 30, 31
rX, rWA, rWB, rWS, rOUT = 32, 36, 40, 44, 48
sTAG = 52
sSPIN = 54
T = 56

XN_STRIDE = 1040
L_L = 0
L_QO = 9216
L_QT = L_QO + 7 * 8192
assert L_QT == 64 * XN_STRIDE
L_R2 = L_QT + 8192
L_KROT = L_R2
L_STG = L_R2 + 16384
L_STG3 = L_R2 + 65536
L_C = L_STG3 + 16384
L_SY = L_C + 4096
LDS_TOTAL = L_SY + 1024
SY_LN, SY_WQ, SY_QCNT, SY_KVRDY, SY_GRDY, SY_HCNT, SY_XFREE, SY_RED1 = 0, 4, 8, 12, 16, 20, 24, 28
SY_CF, SY_RED2, SY_WO, SY_RS = 32, 48, 52, 256

class VM:
    def __init__(self, a): self.a, self.q = a, []
    def issue(self, tag, txt):
        self.a(txt); self.q.append(tag)
        assert len(self.q) < 4000
    def n_after(self, tags):
        if not isinstance(tags, (list, set)): tags = [tags]
        idx = max(i for i, t in enumerate(self.q) if t in tags)
        return len(self.q) - 1 - idx
    def wait(self, tags, extra=""):
        n = self.n_after(tags)
        assert n <= 63, n
        self.a(f"s_waitcnt vmcnt({n}){extra}")
    def drained(self): self.q = []

def stamp(a, i):
    if PROF: a(f"s_memrealtime {s(70+2*i,2)}")
def endpgm(a, n):
    if PROF:
        a("s_waitcnt vmcnt(0)")
        stamp(a, n); n += 1
        a("s_waitcnt lgkmcnt(0)")
        a("s_mov_b64 exec, 1")
        for i in range(15):
            a(f"v_mov_b32 {v(240+i)}, {s(70+2*i)}")
        a(f"v_mov_b32 v255, 15")
        a(f"s_lshl_b32 s6, s2, 3")
        a(f"s_add_u32 s6, s6, {s(sW)}")
        a(f"s_lshl_b32 s6, s6, 6")
        a(f"s_add_u32 s6, s6, {PROF_OFF}")
        a(f"v_mov_b32 v239, 0")
        for q in range(4):
            a(f"buffer_store_dwordx4 {v(240+4*q,4)}, v239, {s(rWS,4)}, s6 offen offset:{16*q}")
    a("s_endpgm")

def srd(a, r, ptr, size):
    a(f"s_mov_b32 {s(r)}, {s(ptr)}")
    a(f"s_and_b32 {s(r+1)}, {s(ptr+1)}, 0xffff")
    a(f"s_mov_b32 {s(r+2)}, {size}")
    a(f"s_mov_b32 {s(r+3)}, 0x20000")

def ids(a):
    a(f"s_and_b32 s6, s2, 7")
    a(f"s_lshr_b32 s7, s2, 3")
    if MAP84:
        a(f"s_and_b32 {s(sG)}, s7, 3")
        a(f"s_and_b32 {s(sB)}, s6, 1")
        a(f"s_lshl2_add_u32 {s(sG)}, {s(sB)}, {s(sG)}")
        a(f"s_lshr_b32 s6, s6, 1")
        a(f"s_lshr_b32 s7, s7, 2")
        a(f"s_lshl3_add_u32 {s(sB)}, s6, s7")
    else:
        a(f"s_and_b32 {s(sG)}, s7, 7")
        a(f"s_lshr_b32 s7, s7, 3")
        a(f"s_lshl2_add_u32 {s(sB)}, s6, s7")
    a(f"s_lshl3_add_u32 {s(sC)}, {s(sB)}, {s(sG)}")
    a(f"v_and_b32 v1, 63, v0")

def args_ready(a):
    a(f"s_waitcnt lgkmcnt(0)")
    a(f"s_barrier")
    a(f"s_add_u32 s6, {s(sPWS)}, {EP}")
    a(f"s_addc_u32 s7, {s(sPWS+1)}, 0")
    a(f"s_load_dwordx2 {s(sTAG,2)}, s[6:7], 0")

def fix_tag(a):
    a(f"s_add_u32 {s(sTAG)}, {s(sTAG)}, 1")
    a(f"s_addc_u32 {s(sTAG+1)}, {s(sTAG+1)}, 0")

def spin_begin(a, name):
    a(f"s_mov_b32 {s(sSPIN)}, {SPIN_MAX}")
    a.label(name + "_top")
def spin_retry(a, name, sleep=1):
    a(f"s_sleep {sleep}")
    a(f"s_sub_u32 {s(sSPIN)}, {s(sSPIN)}, 1")
    a(f"s_cmp_lg_u32 {s(sSPIN)}, 0")
    a(f"s_cbranch_scc1 {name}_top")
    a.label(name + "_ok")

def lds_wait(a, name, vaddr, off, val, vt, sleep=1):
    spin_begin(a, name)
    a(f"ds_read_b32 {v(vt)}, {v(vaddr)} offset:{off}")
    a(f"s_waitcnt lgkmcnt(0)")
    a(f"v_readfirstlane_b32 s6, {v(vt)}")
    a(f"s_cmp_ge_u32 s6, {val}")
    a(f"s_cbranch_scc1 {name}_ok")
    spin_retry(a, name, sleep)

def lds_inc(a, vsy, off, vone):
    a(f"s_mov_b64 exec, 1")
    a(f"ds_add_u32 {v(vsy)}, {v(vone)} offset:{off}")
    a(f"s_mov_b64 exec, -1")

def publish(a, name, vsy, off, last, vone, vt, flbase):
    a(f"s_lshl_b32 s6, {s(sB)}, 7")
    a(f"s_lshl3_add_u32 s6, {s(sG)}, s6")
    a(f"s_add_u32 s7, s6, {flbase}")
    a(f"v_mov_b32 {v(vt)}, {s(sTAG)}")
    a(f"v_mov_b32 {v(vt+1)}, {s(sTAG+1)}")
    a(f"s_mov_b64 exec, 1")
    a(f"s_waitcnt vmcnt(0)")
    if last > 0:
        a(f"ds_add_rtn_u32 {v(vt+2)}, {v(vsy)}, {v(vone)} offset:{off}")
        a(f"s_waitcnt lgkmcnt(0)")
        a(f"v_readfirstlane_b32 s6, {v(vt+2)}")
        a(f"s_cmp_eq_u32 s6, {last}")
        a(f"s_cbranch_scc0 {name}_skip")
    a(f"buffer_store_dwordx2 {v(vt,2)}, off, {s(rWS,4)}, s7 sc1")
    a.label(name + "_skip")
    a(f"s_mov_b64 exec, -1")

def gen_a(a):
    vm = VM(a)
    a("s_setprio 2")
    ids(a)
    vXL, vXW, vSY, vONE, vTR, vXR, vU = 2, 3, 6, 7, 4, 5, 90
    XRAW, TMP = 16, 96
    a(f"v_lshrrev_b32 v8, 3, v1")
    a(f"v_and_b32 v9, 7, v1")
    a(f"v_lshlrev_b32 {v(vXL)}, 10, v8")
    a(f"v_lshl_add_u32 {v(vXL)}, v9, 4, {v(vXL)}")
    a(f"s_lshl_b32 s6, {s(sB)}, 16")
    a(f"s_lshl_b32 s7, {s(sW)}, 14")
    a(f"s_add_u32 s6, s6, s7")
    a(f"s_add_u32 s7, s6, 8192")
    a(f"s_waitcnt lgkmcnt(0)")
    a(f"s_barrier")
    srd(a, rX, sPX, 2097152)
    for st in range(2):
        for j in range(8):
            vm.issue(("x", st, j), f"buffer_load_dwordx4 {v(XRAW+32*st+4*j,4)}, {v(vXL)}, {s(rX,4)}, s{6+st} offen offset:{128*j}")
    srd(a, rWS, sPWS, WS_SIZE)
    srd(a, rWA, sPWQ, 524288)
    a(f"v_lshrrev_b32 v10, 2, v1")
    a(f"v_and_b32 v10, 4, v10")
    a(f"v_xor_b32 v10, v9, v10")
    a(f"v_lshlrev_b32 {v(vU)}, 10, v8")
    a(f"v_lshl_add_u32 {v(vU)}, v10, 4, {v(vU)}")
    a(f"s_lshl_b32 s6, {s(sG)}, 7")
    a(f"v_add_u32 {v(vU)}, s6, {v(vU)}")
    sWQ, sWR = T + 5, T + 6
    a(f"s_and_b32 {s(sWR)}, {s(sB)}, {W1ROT}")
    a(f"s_lshl2_add_u32 {s(sWR)}, {s(sWR)}, {s(sW)}")
    a(f"s_lshl_b32 {s(sWR)}, {s(sWR)}, 11")
    def wq_unit(i):
        a(f"s_xor_b32 {s(sWQ)}, {s(sWR)}, {(i//2)*8192 + (i%2)*1024}")
        a(f"s_add_u32 m0, {s(sWQ)}, {L_R2}")
        a(f"s_lshl_b32 {s(sWQ)}, {s(sWQ)}, 3")
        vm.issue("wq", f"buffer_load_dwordx4 {v(vU)}, {s(rWA,4)}, {s(sWQ)} offen lds")
    a(f"s_lshl_b32 s6, {s(sW)}, 4")
    a(f"v_add_u32 v8, s6, v8")
    a(f"v_mul_u32_u24 {v(vXW)}, {XN_STRIDE}, v8")
    a(f"v_lshl_add_u32 {v(vXW)}, v9, 4, {v(vXW)}")
    a(f"v_mov_b32 {v(vSY)}, {L_SY}")
    a(f"v_lshl_add_u32 v10, v8, 2, {v(vSY)}")
    a(f"v_mov_b32 {v(vONE)}, 1")
    a(f"v_lshrrev_b32 v11, 5, v1")
    a(f"v_bfe_u32 v12, v1, 2, 2")
    a(f"v_lshlrev_b32 {v(vTR)}, 10, v11")
    a(f"v_lshl_add_u32 {v(vTR)}, v12, 7, {v(vTR)}")
    a(f"v_bfe_u32 v13, v1, 4, 1")
    a(f"v_lshl_add_u32 {v(vTR)}, v13, 5, {v(vTR)}")
    a(f"v_and_b32 v13, 3, v1")
    a(f"v_lshl_add_u32 {v(vTR)}, v13, 3, {v(vTR)}")
    a(f"v_lshrrev_b32 v12, 1, v12")
    a(f"s_and_b32 {s(T)}, {s(sW)}, 1")
    a(f"s_lshr_b32 {s(T+1)}, {s(sW)}, 1")
    a(f"v_xor_b32 v12, {s(T)}, v12")
    a(f"v_lshl_add_u32 {v(vTR)}, v12, 6, {v(vTR)}")
    a(f"v_add_u32 {v(vTR)}, {L_R2}, {v(vTR)}")
    a(f"v_and_b32 v14, 31, v1")
    a(f"s_lshl_b32 s6, {s(T+1)}, 5")
    a(f"v_add_u32 v14, s6, v14")
    a(f"v_mul_u32_u24 {v(vXR)}, {XN_STRIDE}, v14")
    a(f"v_lshl_add_u32 {v(vXR)}, v11, 4, {v(vXR)}")
    a(f"v_lshl_add_u32 v14, v14, 2, {v(vSY)}")
    a(f"s_lshl2_add_u32 s6, {s(T)}, {s(T+1)}")
    a(f"s_lshl_b32 s6, s6, 10")
    a(f"s_add_u32 s6, s6, {L_QT}")
    a(f"v_lshlrev_b32 v15, 4, v1")
    a(f"v_add_u32 v15, s6, v15")
    sONES, sLO, sHI = T+2, T+3, T+4
    a(f"s_mov_b32 {s(sONES)}, 0x3f803f80")
    a(f"s_mov_b32 {s(sLO)}, 0x00003f80")
    a(f"s_mov_b32 {s(sHI)}, 0x3f800000")
    a(f"v_and_b32 v92, 31, v1")
    a(f"v_cmp_eq_u32 vcc, 16, v92")
    a(f"v_mov_b32 v92, 0x3f803f80")
    a(f"s_nop 0")
    a(f"v_cndmask_b32 v92, 0, v92, vcc")
    a(f"v_mov_b32 v93, v92")
    for r in range(128, 256, 2): a(f"v_pk_mov_b32 {v(r,2)}, v[92:93], v[92:93]")
    S1, S2 = 80, 82
    for i in range(4): a(f"v_mov_b32 {v(80+i)}, 0")
    for st in range(2):
        for j in range(8):
            vm.wait(("x", st, j))
            for d in range(4):
                x = XRAW + 32*st + 4*j + d
                a(f"v_dot2_f32_bf16 {v(S1+st)}, {v(x)}, {s(sONES)}, {v(S1+st)}")
                a(f"v_dot2_f32_bf16 {v(S2+st)}, {v(x)}, {v(x)}, {v(S2+st)}")
            wq_unit(8*st + j)
    stamp(a, 1)
    a("s_nop 2")
    for dpp in ("quad_perm:[1,0,3,2]", "quad_perm:[2,3,0,1]", "row_half_mirror"):
        for r in (80, 81, 82, 83):
            a(f"v_add_f32_dpp {v(r)}, {v(r)}, {v(r)} {dpp} row_mask:0xf bank_mask:0xf")
    inv = f2u(1.0/512)
    for r in (80, 81, 82, 83): a(f"v_mul_f32 {v(r)}, {inv:#x}, {v(r)}")
    for st in range(2): a(f"v_fma_f32 {v(S2+st)}, -{v(S1+st)}, {v(S1+st)}, {v(S2+st)}")
    for st in range(2): a(f"v_max_f32 {v(S2+st)}, 0, {v(S2+st)}")
    for st in range(2): a(f"v_cvt_pk_bf16_f32 {v(84+st)}, {v(S1+st)}, {v(S2+st)}")
    for st in range(2): a(f"v_lshlrev_b32 {v(S1+st)}, 16, {v(84+st)}")
    rs_ops = []
    for st in range(2):
        r = 84 + st
        rs_ops.append([f"v_and_b32 {v(r)}, 0xffff0000, {v(r)}",
                       f"v_add_f32 {v(r)}, {f2u(1e-5):#x}, {v(r)}",
                       f"v_cvt_pk_bf16_f32 {v(r)}, {v(r)}, {v(r)}",
                       f"v_and_b32 {v(r)}, 0xffff0000, {v(r)}",
                       f"v_sqrt_f32 {v(r)}, {v(r)}",
                       f"v_cvt_pk_bf16_f32 {v(r)}, {v(r)}, {v(r)}",
                       f"v_and_b32 {v(r)}, 0xffff0000, {v(r)}",
                       f"v_rcp_f32 {v(r)}, {v(r)}"])
    k = 0
    for st in range(2):
        for j in range(8):
            t = TMP + 8*(k % 2); k += 1
            for d in range(4):
                x = XRAW + 32*st + 4*j + d
                a(f"v_dot2_f32_bf16 {v(t+2*d)}, {v(x)}, {s(sLO)}, {v(S1+st)} neg_lo:[0,0,1]")
                a(f"v_dot2_f32_bf16 {v(t+2*d+1)}, {v(x)}, {s(sHI)}, {v(S1+st)} neg_lo:[0,0,1]")
            a(rs_ops[st][j])
            for d in range(4):
                x = XRAW + 32*st + 4*j + d
                a(f"v_cvt_pk_bf16_f32 {v(x)}, {v(t+2*d)}, {v(t+2*d+1)}")
            a(f"ds_write_b128 {v(vXW)}, {v(XRAW+32*st+4*j,4)} offset:{128*j + st*8*XN_STRIDE}")
        a(f"ds_write_b32 v10, {v(84+st)} offset:{SY_RS + 32*st}")
    lds_inc(a, vSY, SY_LN, vONE)
    stamp(a, 2)
    a(f"s_waitcnt vmcnt(0)")
    lds_inc(a, vSY, SY_WQ, vONE)
    spin_begin(a, "A_ln")
    a(f"ds_read_b64 v[12:13], {v(vSY)} offset:{SY_LN}")
    a(f"s_waitcnt lgkmcnt(0)")
    a(f"v_add_u32 v12, v12, v13")
    a(f"s_nop 0")
    a(f"v_readfirstlane_b32 s6, v12")
    a(f"s_cmp_ge_u32 s6, 8")
    a(f"s_cbranch_scc1 A_ln_ok")
    spin_retry(a, "A_ln", 0)
    stamp(a, 3)
    ACC, WF, XF = 64, 16, 40
    LA = 4
    a(f"ds_read_b32 v12, v14 offset:{SY_RS}")
    def rd(st):
        a(f"ds_read_b64_tr_b16 {v(WF+4*(st%6),2)}, {v(vTR)} offset:{2048*st}")
        a(f"ds_read_b64_tr_b16 {v(WF+4*(st%6)+2,2)}, {v(vTR)} offset:{2048*st+512}")
        a(f"ds_read_b128 {v(XF+4*(st%6),4)}, {v(vXR)} offset:{32*st}")
    for st in range(LA): rd(st)
    for st in range(32):
        if st + LA < 32: rd(st + LA)
        a(f"s_waitcnt lgkmcnt({3*min(LA, 31-st)})")
        c = "0" if st == 0 else v(ACC, 16)
        a(f"v_mfma_f32_32x32x16_bf16 {v(ACC,16)}, {v(WF+4*(st%6),4)}, {v(XF+4*(st%6),4)}, {c}")
    a(f"v_mul_f32 v12, {CSCALE:#x}, v12")
    a(f"s_lshl_b32 s6, {s(sC)}, 13")
    a(f"s_add_u32 s6, s6, {QF - L_QT}")
    a.nop(9)
    for hh in range(2):
        d = 16 + 4*hh
        for i in range(4):
            r = ACC + 8*hh + 2*i
            a(f"v_pk_mul_f32 {v(r,2)}, {v(r,2)}, v[12:13] op_sel_hi:[1,0]")
        for i in range(4):
            r = ACC + 8*hh + 2*i
            a(f"v_cvt_pk_bf16_f32 {v(d+i)}, {v(r)}, {v(r+1)}")
        a(f"ds_write_b128 v15, {v(d,4)} offset:{2048*hh}")
        a(f"buffer_store_dwordx4 {v(d,4)}, v15, {s(rWS,4)}, s6 offen offset:{2048*hh} sc1")
    lds_inc(a, vSY, SY_QCNT, vONE)
    stamp(a, 4)
    vKR, vQO, vIDX, vCA, vQV = 2, 3, 4, 6, 7
    Q, KROT, S0, S1_, C, O, KR, VR = 8, 12, 16, 32, 48, 64, 80, 128
    rot = (0, 4, 8, 12)
    res = [t for t in range(16) if t not in rot]
    kreg = lambda t: KROT if t in rot else KR + 4*res.index(t)
    sMASK, sKB, sVB, sKD = T, T+2, T+6, T+10
    sPH = T + 11
    a(f"s_mov_b32 {s(sMASK)}, 0x0000ffff")
    a(f"s_mov_b32 {s(sMASK+1)}, 0x0000ffff")
    a(f"v_and_b32 v33, 31, v1")
    a(f"v_mov_b32 v40, {v(vSY)}")
    a(f"s_lshl_b32 {s(sKD)}, {s(sW)}, 12")
    a(f"s_add_u32 {s(sKD)}, {s(sKD)}, {L_KROT}")
    a(f"v_lshlrev_b32 v34, 4, v1")
    a(f"v_add_u32 {v(vKR)}, {s(sKD)}, v34")
    a(f"s_lshl_b32 s6, {s(sW)}, 11")
    a(f"s_add_u32 s7, s6, {L_QO}")
    a(f"v_add_u32 {v(vQO)}, s7, v34")
    a(f"s_add_u32 s7, s6, {L_QT}")
    a(f"v_add_u32 v35, s7, v34")
    a(f"v_add_u32 v36, {L_QT}, v34")
    a(f"v_mov_b32 {v(vIDX)}, 0xdddddddd")
    a(f"v_mov_b32 {v(vIDX+1)}, 0xdddddddd")
    a(f"v_lshlrev_b32 {v(vCA)}, 4, v33")
    a(f"v_add_u32 {v(vCA)}, {L_C}, {v(vCA)}")
    a(f"v_and_b32 v37, 15, v1")
    a(f"v_lshrrev_b32 v38, 5, v1")
    a(f"v_lshlrev_b32 {v(vQV)}, 4, v37")
    a(f"v_lshl_add_u32 {v(vQV)}, v38, 8, {v(vQV)}")
    a(f"s_lshl_b32 s6, {s(sW)}, 14")
    a(f"s_add_u32 {s(sVB)}, s6, {VF}")
    a(f"s_add_u32 {s(sKB)}, s6, {KF}")
    a(f"s_sub_u32 {s(sKB)}, {s(sKB)}, {s(sKD)}")
    if KVROT:
        a(f"s_and_b32 s7, {s(sG)}, 3")
        a(f"s_lshl_b32 s7, s7, 12")
    else:
        a(f"s_mov_b32 s7, 0")
    for i in (3, 2, 1, 0):
        a(f"s_xor_b32 s6, s7, {4096*i}")
        a(f"s_add_u32 {s(sKB+i)}, {s(sKB)}, s6")
        a(f"s_add_u32 {s(sVB+i)}, {s(sVB)}, s6")
    a(f"v_cmp_eq_u32 vcc, 20, v1")
    a(f"v_mov_b32 v0, 0x3f80")
    a(f"v_and_b32 v39, 3, v1")
    a(f"v_cndmask_b32 v0, 0, v0, vcc")
    a(f"v_lshl_add_u32 v39, v39, 2, v40")
    a(f"v_mov_b32 v1, 0")
    a(f"s_waitcnt vmcnt(0)")
    stamp(a, 5)
    spin_begin(a, "A_kv")
    a(f"ds_read_b64 v[42:43], v40 offset:{SY_QCNT}")
    a(f"s_waitcnt lgkmcnt(0)")
    a(f"v_add_u32 v42, v42, v43")
    a(f"s_nop 0")
    a(f"v_readfirstlane_b32 s6, v42")
    a(f"s_cmp_ge_u32 s6, 5")
    a(f"s_cbranch_scc1 A_kv_ok")
    spin_retry(a, "A_kv")
    stamp(a, 6)
    a(f"s_setprio {GHI}")
    vm.drained()
    def ldK(t, tag):
        vm.issue(tag, f"buffer_load_dwordx4 {v(kreg(t),4)}, {v(vKR)}, {s(rWS,4)}, {s(sKB+t//4)} offen offset:{(t%4)*1024} sc1")
    def dmaK(t, tag):
        a(f"s_add_u32 m0, {s(sKD)}, {(t//4)*1024}")
        a(f"s_nop 0")
        vm.issue(tag, f"buffer_load_dwordx4 {v(vKR)}, {s(rWS,4)}, {s(sKB+t//4)} offen sc1 lds")
    def group(t):
        tag = ("g", t)
        if t == 9: dmaK(0, tag)
        if t + 2 in rot: dmaK(t + 2, tag)
        if t + 1 in res and t + 1 > 2: ldK(t + 1, tag)
        a(f"s_mov_b64 exec, {s(sMASK,2)}")
        for t2 in range(2):
            vm.issue(tag, f"buffer_load_dwordx4 {v(VR+8*t+4*t2,4)}, {v(vQV)}, {s(rWS,4)}, {s(sVB+t//4)} offen offset:{(t%4)*1024+t2*512} sc1")
        a(f"s_mov_b64 exec, -1")
    ldK(1, "k12"); ldK(2, "k12"); ldK(0, "k0")
    for t in range(DPRE): group(t)
    stamp(a, 7)
    QA, QB = kreg(14), kreg(15)
    assert DPRE <= 12
    a(f"ds_read_b128 {v(QA,4)}, v35")
    a(f"ds_read_b128 {v(QB,4)}, v35 offset:1024")
    a(f"ds_read_b128 {v(Q,4)}, v36")
    a(f"s_lshl_b32 s7, {s(sW)}, 10")
    a(f"v_add_u32 {v(kreg(13))}, s7, {v(vCA)}")
    a(f"s_lshl_b32 s7, {s(sW)}, 2")
    a(f"v_add_u32 {v(kreg(13)+1)}, s7, v40")
    a(f"v_mov_b32 {v(kreg(13)+2)}, v39")
    a(f"v_mov_b32 {v(kreg(13)+3)}, 1")
    vCW, vCF, vCP, vO1 = kreg(13), kreg(13)+1, kreg(13)+2, kreg(13)+3
    vm.wait("k12", " lgkmcnt(1)")
    a(f"v_mfma_f32_32x32x16_bf16 {v(S0,16)}, {v(kreg(1),4)}, {v(QA,4)}, 0")
    a(f"v_mfma_f32_32x32x16_bf16 {v(C,16)}, {v(kreg(1),4)}, {v(QB,4)}, 0")
    a(f"v_mfma_f32_32x32x16_bf16 {v(S1_,16)}, {v(kreg(2),4)}, {v(QA,4)}, 0")
    a(f"v_mfma_f32_32x32x16_bf16 {v(O,16)}, {v(kreg(2),4)}, {v(QB,4)}, 0")
    a.nop(9)
    for i in range(0, 30, 2):
        for base in (S0, C):
            a(f"v_max3_f32 {v(base)}, {v(base)}, {v(base+i+1)}, {v(base+i+2)}")
    for base in (S0, C): a(f"v_max_f32 {v(base)}, {v(base)}, {v(base+31)}")
    for base in (S0, C): a(f"v_mov_b32 {v(base+1)}, {v(base)}")
    a(f"s_nop 0")
    for base in (S0, C): a(f"v_permlane32_swap_b32 {v(base)}, {v(base+1)}")
    a(f"v_mfma_f32_32x32x8_bf16 {v(O,16)}, v[0:1], {v(vIDX,2)}, 0")
    for base in (S0, C): a(f"v_max_f32 {v(base)}, {v(base)}, {v(base+1)}")
    for base in (S0, C): a(f"v_sub_f32 {v(base)}, {f2u(-BIAS):#x}, {v(base)}")
    for i in range(1, 4):
        for base in (S0, C): a(f"v_mov_b32 {v(base+i)}, {v(base)}")
    a(f"ds_write_b128 {v(vCW)}, {v(S0,4)}")
    a(f"ds_write_b128 {v(vCW)}, {v(C,4)} offset:512")
    a(f"ds_write_b32 {v(vCF)}, {v(vO1)} offset:{SY_CF}")
    spin_begin(a, "A_c")
    a(f"ds_read_b32 {v(S0)}, {v(vCP)} offset:{SY_CF}")
    for i in range(4): a(f"ds_read_b128 {v(C+4*i,4)}, {v(vCA)}")
    a(f"s_waitcnt lgkmcnt(0)")
    a(f"v_cmp_eq_u32 vcc, 0, {v(S0)}")
    a(f"s_nop 0")
    a(f"s_cbranch_vccz A_c_ok")
    spin_retry(a, "A_c", 0)
    stamp(a, 9)
    def PV(t, half):
        sb = (S0 if t % 2 == 0 else S1_) + 8*half
        a(f"v_smfmac_f32_32x32x32_bf16 {v(O,16)}, {v(VR+8*t+4*half,4)}, {v(sb,8)}, {v(vIDX)}")
    def QK(t):
        sb = S0 if t % 2 == 0 else S1_
        a(f"v_mfma_f32_32x32x16_bf16 {v(sb,16)}, {v(kreg(t),4)}, {v(Q,4)}, {v(C,16)}")
    def rdK(t): a(f"ds_read_b128 {v(KROT,4)}, {v(vKR)} offset:{(t//4)*1024}")
    def rdQC():
        a(f"ds_read_b128 {v(Q,4)}, {v(vQV)} offset:1024")
        for i in range(4): a(f"ds_read_b128 {v(C+4*i,4)}, {v(vCA)} offset:512")
    def flush():
        a(f"ds_write_b128 {v(vQO)}, {v(O,4)}")
        a(f"ds_write_b128 {v(vQO)}, {v(O+4,4)} offset:1024")
        a(f"ds_write_addtid_b32 {v(O+8)}")
    vm.wait("k0")
    a(f"s_setprio {APRIO}")
    QK(0)
    a(f"s_mov_b32 {s(sPH)}, 7")
    a.nop(11)
    for t in range(16):
        cur = S0 if t % 2 == 0 else S1_
        E = lambda i: a(f"v_exp_f32 {v(cur+i)}, {v(cur+i)}")
        E(0); E(1)
        if t > 0: PV(t-1, 1)
        if t + DPRE < 16: group(t + DPRE)
        if t == 16 - DPRE:
            a(f"s_sub_u32 s6, {L_QT}, {s(sKD)}")
            a(f"v_add_u32 {v(vQV)}, s6, {v(vKR)}")
            a(f"s_lshl_b32 m0, {s(sW)}, 8")
        if t == 15:
            a(f"v_readfirstlane_b32 s6, {v(vIDX+1)}")
            a(f"s_cmp_lg_u32 s6, 0")
            a(f"s_cbranch_scc1 A_g_ok")
            lds_wait(a, "A_g", vCA, L_SY + SY_GRDY - L_C, 1, vIDX+1)
            a(f"v_mov_b32 {v(vIDX+1)}, {v(vIDX)}")
        E(2); E(3); E(4)
        nt = (t + 1) % 16
        vm.wait(("g", t), " lgkmcnt(0)" if (nt in rot or t == 14) else "")
        QK(nt)
        if (t + 2) % 16 in rot: rdK((t + 2) % 16)
        if t == 15: rdK(4)
        if t == 13: a(f"ds_read_b32 {v(vIDX+1)}, {v(vCA)} offset:{L_SY + SY_GRDY - L_C}")
        for i in range(5, 10): E(i)
        PV(t, 0)
        if t == 14: rdQC()
        for i in range(10, 16): E(i)
    stamp(a, 10)
    if PROF: a(f"s_memtime {s(70+2*12,2)}")
    a(".p2align 6")
    a.label("A_ph")
    body_start = len(a.lines)
    for t in range(16):
        cur = S0 if t % 2 == 0 else S1_
        E = lambda i: a(f"v_exp_f32 {v(cur+i)}, {v(cur+i)}")
        nt = (t + 1) % 16
        if t == 0:
            E(0); E(1); PV(15, 1); E(2); E(3); E(4); QK(1)
            for i in range(5, 13): E(i)
            flush()
            a(f"v_mfma_f32_32x32x8_bf16 {v(O,16)}, v[0:1], {v(vIDX,2)}, 0")
            a(f"s_add_u32 m0, m0, 1024")
            E(13); E(14); E(15)
            a(f"v_add_u32 {v(vQO)}, 8192, {v(vQO)}")
            PV(0, 0)
            a(f"v_add_u32 {v(vQV)}, 1024, {v(vQV)}")
            continue
        if t == 1:
            E(0); E(1); E(2); PV(0, 1); a(f"v_add_u32 {v(vCA)}, 512, {v(vCA)}"); E(3); E(4)
        else:
            E(0); E(1); PV(t-1, 1); E(2); E(3); E(4)
        if nt in rot: a(f"s_waitcnt lgkmcnt(0)")
        QK(nt)
        if nt in rot: rdK((nt + 4) % 16)
        for i in range(5, 10): E(i)
        PV(t, 0)
        if t == 14: rdQC()
        if t == 15: a(f"s_sub_u32 {s(sPH)}, {s(sPH)}, 1")
        if t == 15: a(f"s_cmp_lg_u32 {s(sPH)}, 0")
        for i in range(10, 16): E(i)
    a(f"s_cbranch_scc1 A_ph")
    if PROF: a(f"s_memtime {s(70+2*13,2)}")
    stamp(a, 14)
    body = a.lines[body_start:]
    pr = check_hazards(body + body, "attn-loop")
    assert not pr, "\n".join(pr)
    a(f"v_lshrrev_b32 {v(Q)}, 4, {v(vKR)}")
    PVtmp = Q
    a(f"v_and_b32 {v(Q)}, 3, {v(Q)}")
    PV(15, 1)
    a(f"v_lshlrev_b32 {v(Q)}, 8, {v(Q)}")
    spin_begin(a, "A_e")
    a(f"ds_read_b32 {v(Q+1)}, {v(Q)} offset:{L_L + 6*1024 + 128}")
    a(f"s_waitcnt lgkmcnt(0)")
    a(f"v_cmp_eq_u32 vcc, 0, {v(Q+1)}")
    a(f"s_nop 0")
    a(f"s_cbranch_vccz A_e_ok")
    spin_retry(a, "A_e", 0)
    a.nop(5)
    flush()
    endpgm(a, 11)

def gen_g(a):
    vm = VM(a)
    ids(a)
    a(f"s_sub_u32 {s(sJ)}, {s(sW)}, 4")
    vSY, vONE, vU = 2, 3, 4
    a(f"v_mov_b32 {v(vSY)}, {L_SY}")
    a(f"s_cmp_eq_u32 {s(sJ)}, 3")
    a(f"s_cbranch_scc1 G_kv")
    a(f"v_lshl_add_u32 v12, v1, 2, {v(vSY)}")
    a(f"v_mov_b32 v13, 0")
    a(f"ds_write_b32 v12, v13")
    def setup_u():
        a(f"v_lshrrev_b32 v8, 3, v1")
        a(f"v_and_b32 v9, 7, v1")
        a(f"v_lshrrev_b32 v10, 2, v1")
        a(f"v_and_b32 v10, 4, v10")
        a(f"v_xor_b32 v10, v9, v10")
        a(f"v_lshlrev_b32 {v(vU)}, 10, v8")
        a(f"v_lshl_add_u32 {v(vU)}, v10, 4, {v(vU)}")
        a(f"s_lshl_b32 s6, {s(sG)}, 7")
        a(f"v_add_u32 {v(vU)}, s6, {v(vU)}")
        a(f"v_mov_b32 {v(vONE)}, 1")
    setup_u()
    sP, sWo, sRho, sW0 = T+1, T+2, T+3, T+4
    vW1, vBW, vT0, vT1, vXR, vX0 = 5, 6, 7, 11, 12, 48
    ACC, AF, XF, ST = 64, 16, 32, 128
    a(f"s_mul_i32 {s(sP)}, {s(sG)}, 3")
    a(f"s_cmp_eq_u32 {s(sG)}, 7")
    a(f"s_cselect_b32 {s(sP)}, 20, {s(sP)}")
    a(f"s_add_u32 {s(sP)}, {s(sP)}, {s(sJ)}")
    a(f"s_movk_i32 s6, 2752")
    a(f"v_lshlrev_b32 v13, 4, v9")
    a(f"v_mad_u32_u24 {v(vW1)}, v8, s6, v13")
    a(f"s_lshl_b32 {s(sW0)}, {s(sP)}, 7")
    a(f"s_and_b32 {s(sRho)}, {s(sB)}, {W1ROT}")
    args_ready(a)
    srd(a, rWB, sPW1, 1409024)
    srd(a, rWS, sPWS, WS_SIZE)
    a(f"s_lshr_b32 s6, {s(sG)}, 1")
    a(f"s_add_u32 s6, s6, {s(sJ)}")
    a(f"s_cmp_eq_u32 s6, 5")
    a(f"s_cbranch_scc1 G_idle")
    R = W1D
    assert R % 2 == 0 and 4 <= R <= 32
    def ldw(u):
        if u % 8 == 0:
            a(f"s_xor_b32 s6, {s(sRho)}, {u//8}")
            a(f"s_mul_i32 s6, s6, {64*2752}")
            a(f"s_add_u32 {s(sWo)}, {s(sW0)}, s6")
        vm.issue(("w1", u), f"buffer_load_dwordx4 {v(ST+4*(u%R),4)}, {v(vW1)}, {s(rWB,4)}, {s(sWo)} offen")
        if u % 8 != 7: a(f"s_add_u32 {s(sWo)}, {s(sWo)}, {8*2752}")
    for u in range(R): ldw(u)
    a(f"s_lshl_b32 s6, {s(sJ)}, 12")
    a(f"s_add_u32 s6, s6, {L_STG3}")
    a(f"v_lshlrev_b32 {v(vBW)}, 7, v8")
    a(f"v_lshl_add_u32 {v(vBW)}, v10, 4, {v(vBW)}")
    a(f"v_add_u32 {v(vBW)}, s6, {v(vBW)}")
    a(f"v_lshrrev_b32 v13, 5, v1")
    a(f"v_bfe_u32 v14, v1, 2, 2")
    a(f"v_lshlrev_b32 {v(vT0)}, 10, v13")
    a(f"v_lshl_add_u32 {v(vT0)}, v14, 7, {v(vT0)}")
    a(f"v_bfe_u32 v15, v1, 4, 1")
    a(f"v_lshl_add_u32 {v(vT0)}, v15, 5, {v(vT0)}")
    a(f"v_and_b32 v15, 3, v1")
    a(f"v_lshl_add_u32 {v(vT0)}, v15, 3, {v(vT0)}")
    a(f"v_lshrrev_b32 v14, 1, v14")
    a(f"v_lshl_add_u32 {v(vT0)}, v14, 6, {v(vT0)}")
    a(f"v_xor_b32 {v(vT1)}, 64, {v(vT0)}")
    a(f"v_add_u32 {v(vT0)}, s6, {v(vT0)}")
    a(f"v_add_u32 {v(vT1)}, s6, {v(vT1)}")
    a(f"v_and_b32 v14, 31, v1")
    a(f"v_mul_u32_u24 {v(vXR)}, {XN_STRIDE}, v14")
    a(f"v_lshl_add_u32 {v(vXR)}, v13, 4, {v(vXR)}")
    for q in range(8):
        a(f"s_xor_b32 s6, {s(sRho)}, {q}")
        a(f"s_lshl_b32 s6, s6, 7")
        a(f"v_add_u32 {v(vX0+q)}, s6, {v(vXR)}")
    for i in range(4): a(f"v_mov_b32 {v(56+i)}, -1")
    a(f"v_lshlrev_b32 v60, 4, v1")
    a(f"s_lshl1_add_u32 {s(T+5)}, {s(sC)}, {s(sJ)}")
    a(f"s_lshl_b32 {s(T+5)}, {s(T+5)}, 12")
    a(f"s_add_u32 {s(T+5)}, {s(T+5)}, {OF}")
    def wr(st):
        vm.wait(("w1", 2*st+1))
        for i in range(2):
            u = 2*st + i
            a(f"ds_write_b128 {v(vBW)}, {v(ST+4*(u%R),4)} offset:{(st%2)*2048 + i*1024}")
    def trd(st):
        b = AF + 8*(st % 2); o = (st % 2)*2048
        a(f"ds_read_b64_tr_b16 {v(b,2)}, {v(vT0)} offset:{o}")
        a(f"ds_read_b64_tr_b16 {v(b+2,2)}, {v(vT0)} offset:{o+512}")
        a(f"ds_read_b64_tr_b16 {v(b+4,2)}, {v(vT1)} offset:{o}")
        a(f"ds_read_b64_tr_b16 {v(b+6,2)}, {v(vT1)} offset:{o+512}")
    def xrd(st):
        for rt in range(2):
            a(f"ds_read_b128 {v(XF+8*(st%2)+4*rt,4)}, {v(vX0+st//4)} offset:{32*(st%4) + rt*32*XN_STRIDE}")
    wr(0); wr(1); trd(0)
    a(f"s_waitcnt lgkmcnt(0)")
    for u in range(R, R + 4): ldw(u)
    fix_tag(a)
    stamp(a, 1)
    lds_wait(a, "G_ln", vSY, SY_LN, 4, 61, 1)
    stamp(a, 2)
    xrd(0)
    for st in range(32):
        n = 0
        if st + 1 < 32:
            trd(st + 1); xrd(st + 1); n += 6
        if st + 2 < 32:
            wr(st + 2); n += 2
        a(f"s_waitcnt lgkmcnt({n})")
        if st == 10: stamp(a, 13)
        if st == 20: stamp(a, 14)
        k = 0
        for ct in range(2):
            for rt in range(2):
                acc = ACC + 32*ct + 16*rt
                c = "0" if st == 0 else v(acc, 16)
                a(f"v_mfma_f32_32x32x16_bf16 {v(acc,16)}, {v(AF+8*(st%2)+4*ct,4)}, {v(XF+8*(st%2)+4*rt,4)}, {c}")
                k += 1
                if k == 2 and st + 2 < 32 and 2*(st+2) + R < 64:
                    ldw(2*(st+2) + R); ldw(2*(st+2) + R + 1)
    stamp(a, 3)
    a(f"s_setprio {GHI}")
    lds_inc(a, vSY, SY_XFREE, vONE)
    a(f"s_cmp_eq_u32 {s(sJ)}, 2")
    a(f"s_cbranch_scc1 G_nop")
    for p in range(4):
        a(f"buffer_store_dwordx4 v[56:59], v60, {s(rWS,4)}, {s(T+5)} offen offset:{p*1024} sc1")
    a.label("G_nop")
    a(f"v_lshlrev_b32 v8, 4, v1")
    a(f"s_mul_i32 s6, {s(sB)}, {2*HSTR}")
    a(f"s_lshl2_add_u32 s6, {s(sP)}, s6")
    a(f"s_lshl_b32 s6, s6, 10")
    a(f"s_add_u32 s6, s6, {HF}")
    a(f"s_add_u32 s7, s6, {HSTR*1024}")
    k = 0
    for ct in range(2):
        for rt in range(2):
            for hh in range(2):
                d = ST + 4*k; k += 1
                for i in range(4):
                    r = ACC + 32*ct + 16*rt + 8*hh + 2*i
                    a(f"v_cvt_pk_bf16_f32 {v(d+i)}, {v(r)}, {v(r+1)}")
                for i in range(4):
                    a(f"v_pk_max_i16 {v(d+i)}, {v(d+i)}, 0")
                a(f"buffer_store_dwordx4 {v(d,4)}, v8, {s(rWS,4)}, s{6+rt} offen offset:{1024*(2*ct+hh)} sc1")
    a.label("G_hpub")
    publish(a, "G_pubh", vSY, SY_HCNT, 2, vONE, 16, FL_H)
    stamp(a, 4)
    lds_wait(a, "G_wqf", vSY, SY_QCNT, 4, 16)
    a.label("G_ffn2")
    a(f"s_setprio {GHI}")
    vm.drained()
    sStg, sWo, sHo, sCT, sRT, sXO, sWj, sHb = T, T+2, T+3, T+4, T+5, T+6, T+7, T+9
    vA1, vB0, vB1, vT0, vT1, vXO = 5, 6, 7, 11, 12, 10
    ACC, AF, BF, XD = 64, 128, 144, 192
    assert BF + 8*FD <= XD and FD*2048 <= 16384
    a(f"s_lshl_b32 {s(sWj)}, {s(sJ)}, 14")
    a(f"s_add_u32 {s(sStg)}, {s(sWj)}, {L_STG}")
    srd(a, rWA, sPW2, 1409024)
    srd(a, rX, sPX, 2097152)
    a(f"v_add_u32 {v(vA1)}, {8192-1024}, {v(vU)}")
    N = 22
    if F2ROT:
        a(f"s_lshl1_add_u32 s6, {s(sG)}, {s(sB)}")
        a(f"s_and_b32 s6, s6, 7")
        a(f"s_mul_i32 s6, s6, 11")
        a(f"s_lshr_b32 s6, s6, 2")
    else:
        a(f"s_mov_b32 s6, 0")
    a(f"s_lshl_b32 {s(sHo)}, s6, 12")
    a(f"s_lshl_b32 {s(sWo)}, s6, 16")
    a(f"s_add_u32 {s(sWo)}, {s(sWo)}, {s(sWj)}")
    def issueW(i):
        a(f"s_add_u32 m0, {s(sStg)}, {(i % FD)*2048}")
        a(f"s_nop 0")
        vm.issue(("f", i), f"buffer_load_dwordx4 {v(vU)}, {s(rWA,4)}, {s(sWo)} offen lds")
        vm.issue(("f", i), f"buffer_load_dwordx4 {v(vA1)}, {s(rWA,4)}, {s(sWo)} offen offset:1024 lds")
        a(f"s_add_u32 {s(sWo)}, {s(sWo)}, {4*16384}")
        a(f"s_cmp_ge_u32 {s(sWo)}, {N*65536}")
        a(f"s_cselect_b32 {s(sWo)}, {s(sWj)}, {s(sWo)}")
    def issueH(i):
        vm.issue(("f", i), f"buffer_load_dwordx4 {v(BF+8*(i%FD),4)}, {v(vB0)}, {s(rWS,4)}, {s(sHo)} offen sc1")
        vm.issue(("f", i), f"buffer_load_dwordx4 {v(BF+8*(i%FD)+4,4)}, {v(vB1)}, {s(rWS,4)}, {s(sHo)} offen sc1")
        a(f"s_add_u32 {s(sHo)}, {s(sHo)}, 4096")
        a(f"s_cmp_ge_u32 {s(sHo)}, {N*4096}")
        a(f"s_cselect_b32 {s(sHo)}, 0, {s(sHo)}")
    for i in range(FD - 1): issueW(i)
    a(f"s_and_b32 {s(sCT)}, {s(sJ)}, 1")
    a(f"s_lshr_b32 {s(sRT)}, {s(sJ)}, 1")
    a(f"v_and_b32 v8, 31, v1")
    a(f"v_lshrrev_b32 v9, 5, v1")
    a(f"v_lshlrev_b32 {v(vXO)}, 10, v8")
    a(f"v_lshl_add_u32 {v(vXO)}, v9, 5, {v(vXO)}")
    a(f"s_lshl_b32 s6, {s(sB)}, 16")
    a(f"s_lshl_b32 s7, {s(sRT)}, 15")
    a(f"s_add_u32 {s(sXO)}, s6, s7")
    a(f"s_lshl_b32 s6, {s(sG)}, 7")
    a(f"s_lshl_b32 s7, {s(sCT)}, 6")
    a(f"s_add_u32 s6, s6, s7")
    a(f"s_add_u32 {s(sXO)}, {s(sXO)}, s6")
    for q in range(2):
        vm.issue("xd", f"buffer_load_dwordx4 {v(XD+4*q,4)}, {v(vXO)}, {s(rX,4)}, {s(sXO)} offen offset:{16*q}")
    a(f"v_lshlrev_b32 v13, 4, v1")
    a(f"s_mul_i32 {s(sHb)}, {s(sB)}, {2*HSTR*1024}")
    a(f"s_lshl_b32 s6, {s(sJ)}, 10")
    a(f"s_add_u32 {s(sHb)}, {s(sHb)}, s6")
    a(f"s_add_u32 {s(sHb)}, {s(sHb)}, {HF}")
    a(f"s_mul_i32 s6, {s(sRT)}, {HSTR*1024}")
    a(f"s_add_u32 s7, s6, {s(sHb)}")
    a(f"v_add_u32 {v(vB0)}, s7, v13")
    a(f"s_sub_u32 s6, {HSTR*1024}, s6")
    a(f"s_add_u32 s7, s6, {s(sHb)}")
    a(f"v_add_u32 {v(vB1)}, s7, v13")
    a(f"v_bfe_u32 v14, v1, 2, 2")
    a(f"v_lshl_add_u32 {v(vT0)}, v9, 2, v14")
    a(f"v_lshlrev_b32 {v(vT0)}, 7, {v(vT0)}")
    a(f"v_bfe_u32 v15, v1, 4, 1")
    a(f"v_lshl_add_u32 {v(vT0)}, v15, 4, {v(vT0)}")
    a(f"v_and_b32 v15, 1, v1")
    a(f"v_lshl_add_u32 {v(vT0)}, v15, 5, {v(vT0)}")
    a(f"v_bfe_u32 v15, v1, 1, 1")
    a(f"v_lshl_add_u32 {v(vT0)}, v15, 3, {v(vT0)}")
    a(f"v_lshrrev_b32 v14, 1, v14")
    a(f"v_xor_b32 v14, {s(sCT)}, v14")
    a(f"v_lshl_add_u32 {v(vT0)}, v14, 6, {v(vT0)}")
    a(f"v_xor_b32 {v(vT1)}, 64, {v(vT0)}")
    a(f"v_add_u32 {v(vT0)}, {s(sStg)}, {v(vT0)}")
    a(f"v_add_u32 {v(vT1)}, {s(sStg)}, {v(vT1)}")
    a(f"v_and_b32 v14, 7, v1")
    a(f"v_lshlrev_b32 v14, 3, v14")
    a(f"s_lshl_b32 s7, {s(sB)}, 7")
    a(f"s_add_u32 s7, s7, {FL_H}")
    spin_begin(a, "G_h")
    a(f"buffer_load_dwordx2 v[16:17], v14, {s(rWS,4)}, s7 offen sc1")
    a(f"s_waitcnt vmcnt(0)")
    a(f"v_cmp_ne_u64 vcc, {s(sTAG,2)}, v[16:17]")
    a(f"s_nop 0")
    a(f"s_cbranch_vccz G_h_ok")
    spin_retry(a, "G_h", 4)
    stamp(a, 5)
    vm.drained()
    for i in range(FD - 1): issueH(i)
    def aread(i):
        vm.wait(("f", i))
        base = AF + 8*(i % 2); o = (i % FD)*2048
        a(f"ds_read_b64_tr_b16 {v(base,2)}, {v(vT0)} offset:{o}")
        a(f"ds_read_b64_tr_b16 {v(base+2,2)}, {v(vT0)} offset:{o+1024}")
        a(f"ds_read_b64_tr_b16 {v(base+4,2)}, {v(vT1)} offset:{o}")
        a(f"ds_read_b64_tr_b16 {v(base+6,2)}, {v(vT1)} offset:{o+1024}")
    aread(0)
    a(f"s_setprio {GLO}")
    for i in range(N):
        if i + FD - 1 < N:
            issueW(i + FD - 1); issueH(i + FD - 1)
        if i + 1 < N:
            aread(i + 1)
            a(f"s_waitcnt lgkmcnt(4)")
        else:
            a(f"s_waitcnt lgkmcnt(0)")
        for rt in (1, 0):
            for ct in (1, 0):
                acc = ACC + 16*(2*rt + ct)
                c = "0" if i == 0 else v(acc, 16)
                a(f"v_mfma_f32_32x32x16_bf16 {v(acc,16)}, {v(AF+8*(i%2)+4*ct,4)}, {v(BF+8*(i%FD)+4*rt,4)}, {c}")
    stamp(a, 6)
    a(f"s_setprio {GHI}")
    a(f"v_add_u32 v16, {s(sStg)}, v13")
    for lam in range(1, 4):
        a(f"s_xor_b32 s6, {s(sJ)}, {lam}")
        a(f"s_lshl_b32 s6, s6, 14")
        a(f"s_add_u32 s6, s6, {L_STG}")
        a(f"v_add_u32 {v(16+lam)}, s6, v13")
    a(f"s_lshl_b32 s6, {s(sRT)}, 7")
    a(f"v_lshl_add_u32 v20, v8, 2, {v(vSY)}")
    a(f"v_add_u32 v20, s6, v20")
    for lam in (3, 2, 1):
        for q in range(4):
            a(f"ds_write_b128 v16, {v(ACC+16*lam+4*q,4)} offset:{(lam-1)*4096 + q*1024}")
    lds_inc(a, vSY, SY_RED1, vONE)
    a(f"ds_read_b32 v22, v20 offset:{SY_RS}")
    XU = 208
    for q in range(8):
        a(f"v_lshlrev_b32 {v(XU+2*q)}, 16, {v(XD+q)}")
        a(f"v_and_b32 {v(XU+2*q+1)}, 0xffff0000, {v(XD+q)}")
    srd(a, rWA, sPWO, 524288)
    srd(a, rOUT, sPOUT, 2097152)
    lds_wait(a, "G_r1", vSY, SY_RED1, 4, 21)
    for lam in range(1, 4):
        for q in range(4):
            a(f"ds_read_b128 {v(ACC+16*lam+4*q,4)}, {v(16+lam)} offset:{(lam-1)*4096 + q*1024}")
    lds_inc(a, vSY, SY_RED2, vONE)
    a(f"s_waitcnt lgkmcnt(5)")
    for i in range(8):
        a(f"v_pk_add_f32 {v(ACC+2*i,2)}, {v(ACC+2*i,2)}, {v(ACC+16+2*i,2)}")
    for i in range(8):
        a(f"v_pk_add_f32 {v(ACC+2*i,2)}, {v(ACC+2*i,2)}, {v(ACC+32+2*i,2)}")
    a(f"s_waitcnt lgkmcnt(0)")
    for i in range(8):
        a(f"v_pk_add_f32 {v(ACC+2*i,2)}, {v(ACC+2*i,2)}, {v(ACC+48+2*i,2)}")
    for i in range(8):
        a(f"v_pk_fma_f32 {v(ACC+2*i,2)}, {v(ACC+2*i,2)}, v[22:23], {v(XU+2*i,2)} op_sel_hi:[1,0,1]")
    lds_wait(a, "G_r2", vSY, SY_RED2, 4, 21)
    stamp(a, 7)
    vm.drained()
    a(f"s_mov_b32 m0, {s(sStg)}")
    a(f"s_lshl_b32 {s(sWo)}, {s(sJ)}, 17")
    for u in range(16):
        a(f"buffer_load_dwordx4 {v(vU)}, {s(rWA,4)}, {s(sWo)} offen lds")
        if u < 15:
            a(f"s_add_u32 m0, m0, 1024")
            a(f"s_add_u32 {s(sWo)}, {s(sWo)}, 8192")
    vL16, vOR, vLR, vFL, vFG = 13, 5, 6, 7, 14
    WFR, OB, RT_, LV = 128, 80, 16, 48
    sOP, sOC, sLIM, sPHS = T+1, T+3, T+4, T+8
    a(f"s_lshl_b32 s6, {s(sJ)}, 13")
    a(f"s_add_u32 s6, s6, {L_QO}")
    a(f"v_add_u32 {v(vOR)}, s6, {v(vL16)}")
    a(f"s_lshl_b32 s6, {s(sJ)}, 10")
    a(f"v_lshlrev_b32 {v(vLR)}, 2, v8")
    a(f"v_add_u32 {v(vLR)}, s6, {v(vLR)}")
    a(f"v_and_b32 {v(vFG)}, 3, v1")
    a(f"v_lshlrev_b32 {v(vFG)}, 8, {v(vFG)}")
    a(f"v_add_u32 {v(vFL)}, s6, {v(vFG)}")
    a(f"s_lshl_b32 s7, {s(sRT)}, 10")
    a(f"v_add_u32 {v(vFG)}, s7, {v(vFG)}")
    a(f"s_lshl_b32 {s(sOP)}, {s(sC)}, 13")
    a(f"s_add_u32 {s(sOP)}, {s(sOP)}, s6")
    a(f"s_add_u32 {s(sOP)}, {s(sOP)}, {OF}")
    a(f"s_lshl_b32 {s(sOC)}, {s(sB)}, 16")
    a(f"s_add_u32 {s(sOC)}, {s(sOC)}, s7")
    a(f"s_add_u32 {s(sOC)}, {s(sOC)}, {OF}")
    a(f"v_subrev_u32 {v(vT0)}, {s(sWj)}, {v(vT0)}")
    a(f"s_mov_b32 {s(sLIM)}, {f2u(2.0**120):#x}")
    assert L_L == 0
    def red(k):
        spin_begin(a, f"G_o{k}")
        a(f"ds_read_b32 {v(LV+4)}, {v(vFL)} offset:{4096*k + 128}")
        a(f"s_waitcnt lgkmcnt(0)")
        a(f"v_cmp_eq_u32 vcc, 0, {v(LV+4)}")
        a(f"s_nop 0")
        a(f"s_cbranch_vccz G_o{k}_ok")
        spin_retry(a, f"G_o{k}", 2)
        a(f"ds_read2st64_b32 {v(LV,2)}, {v(vLR)} offset0:{16*k} offset1:{16*k+1}")
        a(f"ds_read2st64_b32 {v(LV+2,2)}, {v(vLR)} offset0:{16*k+2} offset1:{16*k+3}")
        for w in range(4):
            for hf in range(2):
                a(f"ds_read_b128 {v(RT_+8*w+4*hf,4)}, {v(vOR)} offset:{32768*k + 2048*w + 1024*hf}")
        a(f"s_add_u32 {s(sPHS)}, {s(sJ)}, {4*k}")
        a(f"s_waitcnt lgkmcnt(8)")
        a(f"v_pk_add_f32 {v(LV,2)}, {v(LV,2)}, {v(LV+2,2)}")
        a(f"s_waitcnt lgkmcnt(4)")
        a(f"v_add_f32 {v(LV)}, {v(LV)}, {v(LV+1)}")
        for i in range(4): a(f"v_pk_add_f32 {v(RT_+2*i,2)}, {v(RT_+2*i,2)}, {v(RT_+8+2*i,2)}")
        a(f"v_rcp_f32 {v(LV+2)}, {v(LV)}")
        a(f"s_waitcnt lgkmcnt(0)")
        for i in range(4): a(f"v_pk_add_f32 {v(RT_+16+2*i,2)}, {v(RT_+16+2*i,2)}, {v(RT_+24+2*i,2)}")
        for i in range(4): a(f"v_pk_add_f32 {v(RT_+2*i,2)}, {v(RT_+2*i,2)}, {v(RT_+16+2*i,2)}")
        for i in range(4): a(f"v_maximum3_f32 {v(LV)}, |{v(RT_+2*i)}|, |{v(RT_+2*i+1)}|, {v(LV)}")
        a(f"v_cmp_ngt_f32 vcc, {s(sLIM)}, {v(LV)}")
        a(f"s_nop 0")
        if FORCE_FB: a(f"s_bitcmp1_b32 {s(sJ)}, 0"); a(f"s_cbranch_scc1 G_fb")
        a(f"s_cbranch_vccnz G_fb")
        a.label(f"G_ret{k}")
        for i in range(4): a(f"v_pk_mul_f32 {v(RT_+2*i,2)}, {v(RT_+2*i,2)}, {v(LV+2,2)} op_sel_hi:[1,0]")
        for i in range(4): a(f"v_cvt_pk_bf16_f32 {v(RT_+8+i)}, {v(RT_+2*i)}, {v(RT_+2*i+1)}")
        if k: a(f"s_add_u32 {s(sOP)}, {s(sOP)}, 4096")
        a(f"buffer_store_dwordx4 {v(RT_+8,4)}, {v(vL16)}, {s(rWS,4)}, {s(sOP)} offen sc1")
    def cons(hh):
        if hh == 3:
            spin_begin(a, f"G_g{hh}")
            a(f"ds_read_b32 {v(LV+4)}, {v(vFG)} offset:{2048*hh + 128}")
            a(f"s_waitcnt lgkmcnt(0)")
            a(f"v_cmp_eq_u32 vcc, 0, {v(LV+4)}")
            a(f"s_nop 0")
            a(f"s_cbranch_vccz G_g{hh}_ok")
            spin_retry(a, f"G_g{hh}", 2)
        spin_begin(a, f"G_c{hh}")
        a(f"s_add_u32 s6, {s(sOC)}, {2048*hh}")
        for g2 in range(8):
            a(f"buffer_load_dwordx4 {v(OB+4*g2,4)}, {v(vL16)}, {s(rWS,4)}, s6 offen sc1")
            if g2 < 7: a(f"s_add_u32 s6, s6, 8192")
        for g2 in range(8):
            a(f"s_waitcnt vmcnt({7-g2})")
            b = OB + 4*g2
            if g2 == 0:
                a(f"v_max3_u32 {v(LV+4)}, {v(b)}, {v(b+1)}, {v(b+2)}")
                a(f"v_max_u32 {v(LV+4)}, {v(LV+4)}, {v(b+3)}")
            else:
                a(f"v_max3_u32 {v(LV+4)}, {v(b)}, {v(b+1)}, {v(LV+4)}")
                a(f"v_max3_u32 {v(LV+4)}, {v(b+2)}, {v(b+3)}, {v(LV+4)}")
        a(f"v_cmp_eq_u32 vcc, -1, {v(LV+4)}")
        a(f"s_nop 0")
        a(f"s_cbranch_vccz G_c{hh}_ok")
        spin_retry(a, f"G_c{hh}", 0 if hh == 3 else 4)
        if hh < 3: a(f"s_setprio {GLO}")
        for g2 in range(8):
            a(f"v_mfma_f32_32x32x16_bf16 {v(ACC,16)}, {v(WFR+4*(4*g2+hh),4)}, {v(OB+4*g2,4)}, {v(ACC,16)}")
        if hh < 3: a(f"s_setprio {GHI}")
    red(0)
    a(f"s_waitcnt vmcnt(1)")
    lds_inc(a, vSY, SY_WO, vONE)
    lds_wait(a, "G_wo", vSY, SY_WO, 4, LV+4)
    for st in range(32):
        a(f"ds_read_b64_tr_b16 {v(WFR+4*st,2)}, {v(vT0)} offset:{2048*st}")
        a(f"ds_read_b64_tr_b16 {v(WFR+4*st+2,2)}, {v(vT0)} offset:{2048*st+1024}")
        if st % 4 == 3: a(f"s_waitcnt lgkmcnt(4)")
    a(f"s_waitcnt lgkmcnt(0)")
    stamp(a, 8)
    cons(0); cons(1)
    stamp(a, 9)
    red(1)
    stamp(a, 10)
    cons(2); cons(3)
    stamp(a, 11)
    a.nop(12)
    for q in range(2):
        for i in range(4):
            a(f"v_cvt_pk_bf16_f32 {v(RT_+4*q+i)}, {v(ACC+8*q+2*i)}, {v(ACC+8*q+2*i+1)}")
        a(f"buffer_store_dwordx4 {v(RT_+4*q,4)}, {v(vXO)}, {s(rOUT,4)}, {s(sXO)} offen offset:{16*q}")
    a(f"s_add_u32 s6, s2, {s(sJ)}")
    a(f"s_cmp_eq_u32 s6, 0")
    a(f"s_cbranch_scc0 G_end")
    a(f"s_mov_b64 exec, 1")
    a(f"v_mov_b32 v56, {s(sTAG)}")
    a(f"v_mov_b32 v57, {s(sTAG+1)}")
    a(f"s_mov_b32 s6, {EP}")
    a(f"buffer_store_dwordx2 v[56:57], off, {s(rWS,4)}, s6 sc1")
    a.label("G_end")
    endpgm(a, 12)

    a.label("G_fb")
    FS, FC, FO, FK, FV, FQ, FI, FVo = 80, 96, RT_, 112, 116, 124, 56, 57
    a(f"s_lshl_b32 s6, {s(sC)}, 13")
    a(f"s_lshl_b32 s7, {s(sPHS)}, 10")
    a(f"s_add_u32 s6, s6, s7")
    a(f"s_add_u32 s6, s6, {QF}")
    a(f"buffer_load_dwordx4 {v(FQ,4)}, {v(vL16)}, {s(rWS,4)}, s6 offen sc1")
    a(f"v_mov_b32 {v(FI)}, 0xdddddddd")
    a(f"v_mov_b32 {v(FC)}, 0xff800000")
    a(f"s_mov_b32 s6, {KF}")
    a.label("G_fb1")
    a(f"buffer_load_dwordx4 {v(FK,4)}, {v(vL16)}, {s(rWS,4)}, s6 offen sc1")
    a(f"s_waitcnt vmcnt(0)")
    a(f"v_mfma_f32_32x32x16_bf16 {v(FS,16)}, {v(FK,4)}, {v(FQ,4)}, 0")
    a.nop(12)
    for i in range(8):
        a(f"v_maximum3_f32 {v(FC)}, {v(FC)}, {v(FS+2*i)}, {v(FS+2*i+1)}")
    a(f"s_add_u32 s6, s6, 1024")
    a(f"s_cmp_lt_u32 s6, {KF + 65536}")
    a(f"s_cbranch_scc1 G_fb1")
    a(f"v_mov_b32 {v(FC+1)}, {v(FC)}")
    a(f"s_nop 1")
    a(f"v_permlane32_swap_b32 {v(FC)}, {v(FC+1)}")
    a(f"v_and_b32 {v(FVo)}, 31, v1")
    a(f"v_cmp_eq_u32 vcc, 16, {v(FVo)}")
    a(f"v_maximum3_f32 {v(FC)}, {v(FC)}, {v(FC+1)}, {v(FC+1)}")
    a(f"v_mov_b32 {v(FV)}, 0x3f803f80")
    a(f"v_cndmask_b32 {v(FV)}, 0, {v(FV)}, vcc")
    a(f"v_sub_f32 {v(FC)}, 0, {v(FC)}")
    for i in range(1, 8): a(f"v_mov_b32 {v(FV+i)}, {v(FV)}")
    for i in range(1, 16): a(f"v_mov_b32 {v(FC+i)}, {v(FC)}")
    for i in range(16): a(f"v_mov_b32 {v(FO+i)}, 0")
    a(f"v_and_b32 {v(FVo)}, 15, v1")
    a(f"v_lshrrev_b32 {v(FS)}, 5, v1")
    a(f"v_lshlrev_b32 {v(FVo)}, 4, {v(FVo)}")
    a(f"v_lshl_add_u32 {v(FVo)}, {v(FS)}, 8, {v(FVo)}")
    a(f"s_mov_b32 s6, {KF}")
    a.label("G_fb2")
    a(f"s_add_u32 s7, s6, {VF - KF}")
    a(f"buffer_load_dwordx4 {v(FK,4)}, {v(vL16)}, {s(rWS,4)}, s6 offen sc1")
    a(f"s_mov_b32 exec_lo, 0xffff")
    a(f"s_mov_b32 exec_hi, 0xffff")
    a(f"buffer_load_dwordx4 {v(FV,4)}, {v(FVo)}, {s(rWS,4)}, s7 offen sc1")
    a(f"buffer_load_dwordx4 {v(FV+4,4)}, {v(FVo)}, {s(rWS,4)}, s7 offen offset:512 sc1")
    a(f"s_mov_b64 exec, -1")
    a(f"s_waitcnt vmcnt(0)")
    a(f"v_mfma_f32_32x32x16_bf16 {v(FS,16)}, {v(FK,4)}, {v(FQ,4)}, {v(FC,16)}")
    a.nop(12)
    for i in range(16): a(f"v_exp_f32 {v(FS+i)}, {v(FS+i)}")
    a(f"s_nop 1")
    a(f"v_smfmac_f32_32x32x32_bf16 {v(FO,16)}, {v(FV,4)}, {v(FS,8)}, {v(FI)}")
    a(f"v_smfmac_f32_32x32x32_bf16 {v(FO,16)}, {v(FV+4,4)}, {v(FS+8,8)}, {v(FI)}")
    a.nop(16)
    a(f"s_add_u32 s6, s6, 1024")
    a(f"s_cmp_lt_u32 s6, {KF + 65536}")
    a(f"s_cbranch_scc1 G_fb2")
    a(f"v_mov_b32 {v(FO+9)}, {v(FO+8)}")
    a(f"s_nop 1")
    a(f"v_permlane32_swap_b32 {v(FO+8)}, {v(FO+9)}")
    a(f"s_nop 1")
    a(f"v_rcp_f32 {v(LV+2)}, {v(FO+8)}")
    a(f"s_cmp_lt_u32 {s(sPHS)}, 4")
    a(f"s_cbranch_scc1 G_ret0")
    a(f"s_branch G_ret1")

    a.label("G_idle")
    a(f"s_waitcnt lgkmcnt(0)")
    fix_tag(a)
    stamp(a, 1)
    stamp(a, 2)
    stamp(a, 3)
    lds_inc(a, vSY, SY_XFREE, vONE)
    a(f"s_branch G_hpub")

    a.label("G_kv")
    vm.drained()
    a("s_setprio 3")
    WK, XK = 128, 64
    vL16, vBW, vTk, vXk = 5, 6, 7, 11
    MA, SX, CS, ON, Q0, Q1 = 20, 24, 28, 32, 36, 37
    sTG = T + 1
    a(f"v_lshlrev_b32 {v(vL16)}, 4, v1")
    a(f"v_lshrrev_b32 v12, 4, v1")
    a(f"v_and_b32 v13, 15, v1")
    a(f"v_lshlrev_b32 {v(vXk)}, 10, v13")
    a(f"v_lshl_add_u32 {v(vXk)}, v12, 4, {v(vXk)}")
    a(f"s_and_b32 {s(sTG)}, {s(sG)}, 3")
    a(f"s_lshl_b32 {s(T+4)}, {s(sB)}, 16")
    a(f"s_lshl_b32 s6, {s(sTG)}, 14")
    a(f"s_add_u32 {s(T+4)}, {s(T+4)}, s6")
    if KVFIRST: a(f"s_waitcnt lgkmcnt(0)")
    else: args_ready(a)
    a(f"s_cmp_ge_u32 {s(sG)}, 4")
    a(f"s_cselect_b32 s6, {s(sPWV)}, {s(sPWK)}")
    a(f"s_cselect_b32 s7, {s(sPWV+1)}, {s(sPWK+1)}")
    srd(a, rWB, 6, 16384)
    srd(a, rX, sPX, 2097152)
    for u in range(16):
        if u % 4 == 0: a(f"s_movk_i32 s6, {u*1024}")
        vm.issue(("wk", u), f"buffer_load_dwordx4 {v(WK+4*u,4)}, {v(vL16)}, {s(rWB,4)}, s6 offen offset:{(u%4)*1024}")
    for u in range(16):
        vm.issue(("xk", u), f"buffer_load_dwordx4 {v(XK+4*u,4)}, {v(vXk)}, {s(rX,4)}, {s(T+4)} offen offset:{64*u}")
    if KVFIRST: args_ready(a)
    srd(a, rWS, sPWS, WS_SIZE)
    setup_u()
    a(f"v_add_u32 {v(vBW)}, {L_STG3 + 3*4096}, {v(vL16)}")
    a(f"v_bfe_u32 v14, v1, 2, 2")
    a(f"v_lshl_add_u32 v14, v12, 3, v14")
    a(f"v_and_b32 v15, 3, v1")
    a(f"v_lshlrev_b32 v15, 3, v15")
    a(f"v_lshl_add_u32 {v(vTk)}, v14, 5, v15")
    a(f"v_add_u32 {v(vTk)}, {L_STG3 + 3*4096}, {v(vTk)}")
    a(f"v_and_b32 v14, 1, v12")
    a(f"v_lshrrev_b32 v15, 1, v12")
    a(f"v_lshlrev_b32 v13, 4, v13")
    a(f"v_lshl_add_u32 v18, v14, 9, v13")
    a(f"v_lshl_add_u32 v18, v15, 3, v18")
    a(f"v_lshl_add_u32 v19, v15, 8, v13")
    a(f"v_lshl_add_u32 v19, v14, 3, v19")
    a(f"s_lshr_b32 s7, {s(sTG)}, 1")
    a(f"s_lshl1_add_u32 s7, {s(sB)}, s7")
    a(f"s_lshl_b32 s7, s7, 10")
    a(f"s_and_b32 s6, {s(sTG)}, 1")
    a(f"s_lshl_b32 {s(T+2)}, s6, 8")
    a(f"s_add_u32 {s(T+2)}, {s(T+2)}, s7")
    a(f"s_add_u32 {s(T+2)}, {s(T+2)}, {KF}")
    a(f"s_lshl_b32 {s(T+3)}, s6, 9")
    a(f"s_add_u32 {s(T+3)}, {s(T+3)}, s7")
    a(f"s_add_u32 {s(T+3)}, {s(T+3)}, {VF}")
    a(f"v_lshlrev_b32 v16, 12, v1")
    a(f"s_and_b32 s6, s2, 7")
    a(f"s_lshr_b32 s7, s2, 3")
    a(f"s_lshl_b32 {s(T+6)}, s6, 12")
    a(f"s_add_u32 {s(T+6)}, {s(T+6)}, {FL_KV}")
    a(f"s_lshl_b32 s6, s6, 5")
    a(f"s_add_u32 s6, s6, s7")
    a(f"s_lshl_b32 s6, s6, 2")
    a(f"s_add_u32 {s(T+5)}, s6, {FL_KV}")
    for i in range(4): a(f"v_mov_b32 {v(ON+i)}, 0x3f803f80")
    a(f"v_mov_b32 {v(Q0)}, 0")
    a(f"v_mov_b32 {v(Q1)}, 0")
    for u in range(16):
        vm.wait(("wk", u))
        a(f"ds_write_b128 {v(vBW)}, {v(WK+4*u,4)} offset:{(u%4)*1024}")
        a(f"ds_read_b64_tr_b16 {v(WK+4*u,2)}, {v(vTk)} offset:{(u%4)*1024}")
        a(f"ds_read_b64_tr_b16 {v(WK+4*u+2,2)}, {v(vTk)} offset:{(u%4)*1024+128}")
        if u % 4 == 3: a(f"s_waitcnt lgkmcnt(0)")
    fix_tag(a)
    stamp(a, 1)
    a(f"s_cmp_ge_u32 {s(sG)}, 4")
    a(f"s_cbranch_scc1 G_v")
    inv = f2u(1.0/512)
    for isv in range(2):
        if isv: a.label("G_v")
        for u in range(16):
            c = lambda r: "0" if u == 0 else v(r, 4)
            if isv: a(f"v_mfma_f32_16x16x32_bf16 {v(CS,4)}, {v(ON,4)}, {v(WK+4*u,4)}, {c(CS)}")
            else:   a(f"v_mfma_f32_16x16x32_bf16 {v(CS,4)}, {v(WK+4*u,4)}, {v(ON,4)}, {c(CS)}")
        for u in range(16):
            c = lambda r: "0" if u == 0 else v(r, 4)
            vm.wait(("xk", u))
            a(f"v_mfma_f32_16x16x32_bf16 {v(SX,4)}, {v(ON,4)}, {v(XK+4*u,4)}, {c(SX)}")
            for d in range(2): a(f"v_dot2_f32_bf16 {v(Q0+d)}, {v(XK+4*u+d)}, {v(XK+4*u+d)}, {v(Q0+d)}")
            if isv: a(f"v_mfma_f32_16x16x32_bf16 {v(MA,4)}, {v(XK+4*u,4)}, {v(WK+4*u,4)}, {c(MA)}")
            else:   a(f"v_mfma_f32_16x16x32_bf16 {v(MA,4)}, {v(WK+4*u,4)}, {v(XK+4*u,4)}, {c(MA)}")
            for d in range(2): a(f"v_dot2_f32_bf16 {v(Q0+d)}, {v(XK+4*u+2+d)}, {v(XK+4*u+2+d)}, {v(Q0+d)}")
        a.nop(3)
        a(f"v_add_f32 {v(Q0)}, {v(Q0)}, {v(Q1)}")
        a(f"v_mov_b32 {v(Q1)}, {v(Q0)}")
        a(f"s_nop 1")
        a(f"v_permlane16_swap_b32 {v(Q0)}, {v(Q1)}")
        a(f"v_mul_f32 {v(SX)}, {inv:#x}, {v(SX)}")
        a(f"v_add_f32 {v(Q0)}, {v(Q0)}, {v(Q1)}")
        a(f"v_mov_b32 {v(Q1)}, {v(Q0)}")
        a(f"v_mul_f32 {v(SX+1)}, {v(SX)}, {v(SX)}")
        a(f"s_nop 0")
        a(f"v_permlane32_swap_b32 {v(Q0)}, {v(Q1)}")
        a(f"v_mov_b32 {v(SX+2)}, {inv:#x}")
        a(f"v_add_f32 {v(Q0)}, {v(Q0)}, {v(Q1)}")
        a(f"v_fma_f32 {v(Q0)}, {v(Q0)}, {v(SX+2)}, -{v(SX+1)}")
        a(f"v_max_f32 {v(Q0)}, 0, {v(Q0)}")
        a(f"v_cvt_pk_bf16_f32 {v(Q0)}, {v(SX)}, {v(Q0)}")
        a(f"v_lshlrev_b32 {v(SX)}, 16, {v(Q0)}")
        a(f"v_and_b32 {v(Q0)}, 0xffff0000, {v(Q0)}")
        a(f"v_add_f32 {v(Q0)}, {f2u(1e-5):#x}, {v(Q0)}")
        a(f"v_cvt_pk_bf16_f32 {v(Q0)}, {v(Q0)}, {v(Q0)}")
        a(f"v_and_b32 {v(Q0)}, 0xffff0000, {v(Q0)}")
        a(f"v_sqrt_f32 {v(Q0)}, {v(Q0)}")
        if isv:
            for G_ in range(4):
                for r in range(4):
                    a(f"v_mov_b32_dpp {v(44+r)}, {v(SX)} row_newbcast:{4*G_+r} row_mask:{1<<G_:#x} bank_mask:0xf")
        else:
            for i in range(2):
                a(f"v_pk_fma_f32 {v(MA+2*i,2)}, {v(CS+2*i,2)}, {v(SX,2)}, {v(MA+2*i,2)} op_sel_hi:[1,0,1] neg_lo:[1,0,0] neg_hi:[1,0,0]")
        a(f"v_cvt_pk_bf16_f32 {v(Q0)}, {v(Q0)}, {v(Q0)}")
        a(f"v_and_b32 {v(Q0)}, 0xffff0000, {v(Q0)}")
        a(f"v_rcp_f32 {v(Q0)}, {v(Q0)}")
        if isv:
            for i in range(2):
                a(f"v_pk_fma_f32 {v(MA+2*i,2)}, {v(CS+2*i,2)}, {v(44+2*i,2)}, {v(MA+2*i,2)} neg_lo:[1,0,0] neg_hi:[1,0,0]")
            for G_ in range(4):
                for r in range(4):
                    a(f"v_mov_b32_dpp {v(44+r)}, {v(Q0)} row_newbcast:{4*G_+r} row_mask:{1<<G_:#x} bank_mask:0xf")
            for i in range(2): a(f"v_pk_mul_f32 {v(MA+2*i,2)}, {v(MA+2*i,2)}, {v(44+2*i,2)}")
        else:
            a(f"s_nop 0")
            for i in range(2): a(f"v_pk_mul_f32 {v(MA+2*i,2)}, {v(MA+2*i,2)}, {v(Q0,2)} op_sel_hi:[1,0]")
        a(f"v_cvt_pk_bf16_f32 {v(MA)}, {v(MA)}, {v(MA+1)}")
        a(f"v_cvt_pk_bf16_f32 {v(MA+1)}, {v(MA+2)}, {v(MA+3)}")
        a(f"buffer_store_dwordx2 {v(MA,2)}, v{18+isv}, {s(rWS,4)}, {s(T+2+isv)} offen sc1")
        if not isv: a(f"s_branch G_kvd")
    a.label("G_kvd")
    stamp(a, 2)
    a(f"v_mov_b32 v17, {s(sTAG)}")
    a(f"s_mov_b64 exec, 0xff")
    a(f"s_waitcnt vmcnt(0)")
    a(f"buffer_store_dword v17, v16, {s(rWS,4)}, {s(T+5)} offen sc1")
    a(f"s_mov_b64 exec, -1")
    stamp(a, 3)
    spin_begin(a, "G_pk")
    a(f"buffer_load_dwordx4 v[20:23], {v(vL16)}, {s(rWS,4)}, {s(T+6)} offen sc1")
    a(f"s_waitcnt vmcnt(0)")
    a(f"v_xor_b32 v20, v20, v17")
    a(f"v_xor_b32 v21, v21, v17")
    a(f"v_xor_b32 v22, v22, v17")
    a(f"v_xor_b32 v23, v23, v17")
    a(f"v_or3_b32 v20, v20, v21, v22")
    a(f"v_or_b32 v20, v20, v23")
    a(f"v_cmp_ne_u32 vcc, 0, v20")
    a(f"s_nop 0")
    a(f"s_cbranch_vccz G_pk_ok")
    spin_retry(a, "G_pk", PSLEEP)
    a(f"ds_write_b32 {v(vSY)}, {v(vONE)} offset:{SY_KVRDY}")
    stamp(a, 13)
    a(f"s_setprio {GLO}")
    lds_wait(a, "G_xf", vSY, SY_XFREE, 3, 16, 2)
    lds_wait(a, "G_wq3", vSY, SY_QCNT, 4, 16)
    a(f"s_setprio {GHI}")
    for i in range(4): a(f"v_mov_b32 {v(16+i)}, 0")
    for i in range(8): a(f"ds_write_b128 {v(vL16)}, v[16:19] offset:{L_L + 1024*i}")
    a(f"ds_write_b32 {v(vSY)}, {v(vONE)} offset:{SY_GRDY}")
    stamp(a, 4)
    a(f"s_branch G_ffn2")

def descriptor(name, vgpr=256, sgpr=102):
    return f""".amdhsa_kernel {name}
  .amdhsa_next_free_vgpr {vgpr}
  .amdhsa_next_free_sgpr {sgpr}
  .amdhsa_accum_offset {min(256, (vgpr+3)//4*4)}
  .amdhsa_group_segment_fixed_size 0
  .amdhsa_kernarg_size 88
  .amdhsa_user_sgpr_count 2
  .amdhsa_user_sgpr_kernarg_segment_ptr 1
  .amdhsa_system_sgpr_workgroup_id_x 1
.end_amdhsa_kernel
"""

def main(out):
    hdr = open("cdna_kernels/" + NAME + ".s.ref").read().split("; Override")[0]
    a = Asm()
    name = NAME + "_kernel"
    a('.amdgcn_target "amdgcn-amd-amdhsa--gfx950"')
    a(".text")
    a(f".globl {name}")
    a(f".p2align 8")
    a(f".type {name},@function")
    a.label(name)
    a(f"s_cmp_ge_u32 s2, 256")
    a(f"s_cbranch_scc1 K_exit")
    stamp(a, 0)
    if PROF:
        for i in range(1, 15): a(f"s_mov_b32 {s(70+2*i)}, 0")
    a(f"s_load_dwordx16 s[8:23], s[0:1], 0")
    a(f"s_load_dwordx4 s[24:27], s[0:1], 64")
    a(f"s_load_dwordx2 s[28:29], s[0:1], 80")
    a(f"v_lshrrev_b32 v1, 6, v0")
    a(f"s_nop 0")
    a(f"v_readfirstlane_b32 {s(sW)}, v1")
    a(f"s_cmp_ge_u32 {s(sW)}, 4")
    a(f"s_cbranch_scc1 G_start")
    gen_a(a)
    a.label("K_exit")
    a("s_endpgm")
    a(".p2align 6")
    a.label("G_start")
    gen_g(a)
    pr = check_hazards(a.lines, name)
    for p in pr: print("HAZARD", p)
    launch = f"; @launch grid=(256,1,1) block=(512,1,1) lds={LDS_TOTAL}\n"
    txt = hdr + launch + a.text() + '.section .rodata,"a"\n.p2align 6\n' + descriptor(name)
    open(out, "w").write(txt)
    print("wrote", out, len(txt), "bytes; LDS", LDS_TOTAL)

if __name__ == "__main__":
    main(sys.argv[1] if len(sys.argv) > 1 and not sys.argv[1].startswith("--") else "cdna_kernels/" + NAME + ".s")
```

```python
import sys, struct
from asmlib import Asm, v, s, check_hazards

NAME = "parallel_sum__grouped_kv_mqa__dense_activation_relu__prompt"
QF, KF, VF, FL_KV, FL_H, EP, OF, HF = 0x040000, 0x300000, 0x310000, 0x320000, 0x328000, 0x32A000, 0x400000, 0x600000
HSTR = 88
WS_SIZE = 0x1000000
CSCALE = 0x3eb8aa3b
BIAS = 88.0
def f2u(x): return struct.unpack("<I", struct.pack("<f", x))[0]
def opt(name, default):
    for a_ in sys.argv[1:]:
        if a_.startswith("--" + name + "="): return int(a_.split("=")[1])
    return default
PROF = "--prof" in sys.argv
PROF_OFF = 0xF00000
FORCE_FB = "--forcefb" in sys.argv
DP0 = opt("dp0", 3)
DPRE = opt("dpre", 7)
SPIN_MAX = 1 << 15
APRIO = opt("aprio", 1)
GHI = opt("ghi", 3)
GLO = opt("glo", 0)
PSLEEP = opt("psleep", 0)
W1D = opt("w1d", 10)
W1ROT = opt("w1rot", 7)
KVFIRST = opt("kvfirst", 1)
DBG = opt("dbg", 0)
F1PRIO = opt("f1prio", 0)
KVROT = opt("kvrot", 1)
F2ROT = opt("f2rot", 1)
MAP84 = opt("map84", 1)
FD = opt("fd", 6)

sW, sB, sG = 3, 4, 5
sPX, sPWQ, sPWK, sPWV, sPWO, sPBX, sPW1, sPW2 = 8, 10, 12, 14, 16, 18, 20, 22
sPOUT, sPDBG, sPWS = 24, 26, 28
sC, sJ = 30, 31
rX, rWA, rWB, rWS, rOUT = 32, 36, 40, 44, 48
sTAG = 52
sSPIN = 54
T = 56

XN_STRIDE = 1040
L_STG = 0
L_R2 = 64 * XN_STRIDE
L_KROT = L_R2
L_L = L_R2 + 16384
L_QO = L_L + 8192
L_BNC = L_QO + 5 * 8192
assert L_BNC == L_R2 + 65536
L_QT = L_QO + 7 * 8192
L_C = L_QT + 8192
L_SY = L_C + 4096
LDS_TOTAL = L_SY + 1024
TID_OFF = 49152
SY_LN, SY_WQ, SY_KVRDY, SY_QCNT, SY_XFREE, SY_HCNT, SY_RED1 = 0, 4, 8, 12, 16, 20, 28
SY_CF, SY_RED2, SY_WO, SY_RS = 32, 48, 52, 256

class VM:
    def __init__(self, a): self.a, self.q = a, []
    def issue(self, tag, txt):
        self.a(txt); self.q.append(tag)
        assert len(self.q) < 4000
    def n_after(self, tags):
        if not isinstance(tags, (list, set)): tags = [tags]
        idx = max(i for i, t in enumerate(self.q) if t in tags)
        return len(self.q) - 1 - idx
    def wait(self, tags, extra=""):
        n = self.n_after(tags)
        assert n <= 63, n
        self.a(f"s_waitcnt vmcnt({n}){extra}")
    def drained(self): self.q = []

def stamp(a, i):
    if PROF: a(f"s_memrealtime {s(70+2*i,2)}")
def endpgm(a, n):
    if PROF:
        a("s_waitcnt vmcnt(0)")
        stamp(a, n); n += 1
        a("s_waitcnt lgkmcnt(0)")
        a("s_mov_b64 exec, 1")
        for i in range(15):
            a(f"v_mov_b32 {v(240+i)}, {s(70+2*i)}")
        a(f"v_mov_b32 v255, 15")
        a(f"s_lshl_b32 s6, s2, 3")
        a(f"s_add_u32 s6, s6, {s(sW)}")
        a(f"s_lshl_b32 s6, s6, 6")
        a(f"s_add_u32 s6, s6, {PROF_OFF}")
        a(f"v_mov_b32 v239, 0")
        for q in range(4):
            a(f"buffer_store_dwordx4 {v(240+4*q,4)}, v239, {s(rWS,4)}, s6 offen offset:{16*q}")
    a("s_endpgm")

def srd(a, r, ptr, size):
    a(f"s_mov_b32 {s(r)}, {s(ptr)}")
    a(f"s_and_b32 {s(r+1)}, {s(ptr+1)}, 0xffff")
    a(f"s_mov_b32 {s(r+2)}, {size}")
    a(f"s_mov_b32 {s(r+3)}, 0x20000")

def ids(a):
    a(f"s_and_b32 s6, s2, 7")
    a(f"s_lshr_b32 s7, s2, 3")
    if MAP84:
        a(f"s_and_b32 {s(sG)}, s7, 3")
        a(f"s_and_b32 {s(sB)}, s6, 1")
        a(f"s_lshl2_add_u32 {s(sG)}, {s(sB)}, {s(sG)}")
        a(f"s_lshr_b32 s6, s6, 1")
        a(f"s_lshr_b32 s7, s7, 2")
        a(f"s_lshl3_add_u32 {s(sB)}, s6, s7")
    else:
        a(f"s_and_b32 {s(sG)}, s7, 7")
        a(f"s_lshr_b32 s7, s7, 3")
        a(f"s_lshl2_add_u32 {s(sB)}, s6, s7")
    a(f"s_lshl3_add_u32 {s(sC)}, {s(sB)}, {s(sG)}")
    a(f"v_and_b32 v1, 63, v0")

def args_ready(a):
    a(f"s_waitcnt lgkmcnt(0)")
    a(f"s_barrier")
    a(f"s_add_u32 s6, {s(sPWS)}, {EP}")
    a(f"s_addc_u32 s7, {s(sPWS+1)}, 0")
    a(f"s_load_dwordx2 {s(sTAG,2)}, s[6:7], 0")

def fix_tag(a):
    a(f"s_add_u32 {s(sTAG)}, {s(sTAG)}, 1")
    a(f"s_addc_u32 {s(sTAG+1)}, {s(sTAG+1)}, 0")

def spin_begin(a, name):
    a(f"s_mov_b32 {s(sSPIN)}, {SPIN_MAX}")
    a.label(name + "_top")
def spin_retry(a, name, sleep=1):
    a(f"s_sleep {sleep}")
    a(f"s_sub_u32 {s(sSPIN)}, {s(sSPIN)}, 1")
    a(f"s_cmp_lg_u32 {s(sSPIN)}, 0")
    a(f"s_cbranch_scc1 {name}_top")
    a.label(name + "_ok")

def lds_wait(a, name, vaddr, off, val, vt, sleep=1):
    spin_begin(a, name)
    a(f"ds_read_b32 {v(vt)}, {v(vaddr)} offset:{off}")
    a(f"s_waitcnt lgkmcnt(0)")
    a(f"v_readfirstlane_b32 s6, {v(vt)}")
    a(f"s_cmp_ge_u32 s6, {val}")
    a(f"s_cbranch_scc1 {name}_ok")
    spin_retry(a, name, sleep)

def lds_inc(a, vsy, off, vone):
    a(f"s_mov_b64 exec, 1")
    a(f"ds_add_u32 {v(vsy)}, {v(vone)} offset:{off}")
    a(f"s_mov_b64 exec, -1")

def publish(a, name, vsy, off, last, vone, vt, flbase):
    a(f"s_lshl_b32 s6, {s(sB)}, 7")
    a(f"s_lshl3_add_u32 s6, {s(sG)}, s6")
    a(f"s_add_u32 s7, s6, {flbase}")
    a(f"v_mov_b32 {v(vt)}, {s(sTAG)}")
    a(f"v_mov_b32 {v(vt+1)}, {s(sTAG+1)}")
    a(f"s_mov_b64 exec, 1")
    a(f"s_waitcnt vmcnt(0)")
    if last > 0:
        a(f"ds_add_rtn_u32 {v(vt+2)}, {v(vsy)}, {v(vone)} offset:{off}")
        a(f"s_waitcnt lgkmcnt(0)")
        a(f"v_readfirstlane_b32 s6, {v(vt+2)}")
        a(f"s_cmp_eq_u32 s6, {last}")
        a(f"s_cbranch_scc0 {name}_skip")
    a(f"buffer_store_dwordx2 {v(vt,2)}, off, {s(rWS,4)}, s7 sc1")
    a.label(name + "_skip")
    a(f"s_mov_b64 exec, -1")

def lds_wait2(a, name, vaddr, off, val, vt, sleep=1):
    spin_begin(a, name)
    a(f"ds_read2_b32 {v(vt,2)}, {v(vaddr)} offset0:{off//4} offset1:{off//4+1}")
    a(f"s_waitcnt lgkmcnt(0)")
    a(f"v_add_u32 {v(vt)}, {v(vt)}, {v(vt+1)}")
    a(f"s_nop 0")
    a(f"v_readfirstlane_b32 s6, {v(vt)}")
    a(f"s_cmp_ge_u32 s6, {val}")
    a(f"s_cbranch_scc1 {name}_ok")
    spin_retry(a, name, sleep)

def gen_a(a):
    vm = VM(a)
    a("s_setprio 2")
    ids(a)
    vKR, vQO, vIDX, vCA, vQV = 2, 3, 4, 6, 7
    Q, KROT, S0, S1_, C, O, KR, VR = 8, 12, 16, 32, 48, 64, 80, 128
    rot = (0, 4, 8, 12)
    res = [t for t in range(16) if t not in rot]
    kreg = lambda t: KROT if t in rot else KR + 4*res.index(t)
    sMASK, sKB, sVB, sKD, sPH = T, T+2, T+6, T+10, T+11
    sONES, sLO, sHI = T+12, T+13, 55
    vXW, vRSW, vTR, vXR, vRSR, vQT, vXL = 8, 9, 10, 11, 12, 14, 15
    vSY, vQ0, vZA = kreg(11), kreg(11)+1, kreg(11)+2
    vCW, vCF, vCP, vONE = kreg(13), kreg(13)+1, kreg(13)+2, kreg(13)+3
    XRAW, TMP = 16, 96
    t0, t1, t2, t3, t4, t5 = 96, 97, 98, 99, 100, 101
    a(f"v_lshrrev_b32 {v(t0)}, 3, v1")
    a(f"v_and_b32 {v(t1)}, 7, v1")
    a(f"v_lshlrev_b32 {v(vXL)}, 10, {v(t0)}")
    a(f"v_lshl_add_u32 {v(vXL)}, {v(t1)}, 4, {v(vXL)}")
    a(f"s_lshl_b32 s6, {s(sW)}, 4")
    a(f"v_add_u32 {v(t0)}, s6, {v(t0)}")
    a(f"v_mul_u32_u24 {v(vXW)}, {XN_STRIDE}, {v(t0)}")
    a(f"v_lshl_add_u32 {v(vXW)}, {v(t1)}, 4, {v(vXW)}")
    a(f"v_mov_b32 {v(vSY)}, {L_SY}")
    a(f"v_lshl_add_u32 {v(vRSW)}, {v(t0)}, 2, {v(vSY)}")
    a(f"v_mov_b32 {v(vONE)}, 1")
    a(f"s_lshl_b32 s6, {s(sW)}, 8")
    a(f"s_add_u32 s6, s6, {L_L + 128}")
    a(f"v_lshlrev_b32 {v(vZA)}, 10, {v(t1)}")
    a(f"v_add_u32 {v(vZA)}, s6, {v(vZA)}")
    a(f"v_lshrrev_b32 {v(t2)}, 5, v1")
    a(f"v_bfe_u32 {v(t3)}, v1, 2, 2")
    a(f"v_lshlrev_b32 {v(vTR)}, 10, {v(t2)}")
    a(f"v_lshl_add_u32 {v(vTR)}, {v(t3)}, 7, {v(vTR)}")
    a(f"v_bfe_u32 {v(t4)}, v1, 4, 1")
    a(f"v_lshl_add_u32 {v(vTR)}, {v(t4)}, 5, {v(vTR)}")
    a(f"v_and_b32 {v(t4)}, 3, v1")
    a(f"v_lshl_add_u32 {v(vTR)}, {v(t4)}, 3, {v(vTR)}")
    a(f"v_lshl_add_u32 {v(vCP)}, {v(t4)}, 2, {v(vSY)}")
    a(f"v_lshrrev_b32 {v(t3)}, 1, {v(t3)}")
    a(f"s_and_b32 s6, {s(sW)}, 1")
    a(f"s_lshr_b32 s7, {s(sW)}, 1")
    a(f"v_xor_b32 {v(t3)}, s6, {v(t3)}")
    a(f"v_lshl_add_u32 {v(vTR)}, {v(t3)}, 6, {v(vTR)}")
    a(f"v_add_u32 {v(vTR)}, {L_R2}, {v(vTR)}")
    a(f"s_lshl2_add_u32 s6, s6, s7")
    a(f"s_lshl_b32 s6, s6, 10")
    a(f"v_lshlrev_b32 {v(t5)}, 4, v1")
    a(f"v_add_u32 {v(vQ0)}, {L_QT}, {v(t5)}")
    a(f"v_add_u32 {v(vQT)}, s6, {v(vQ0)}")
    a(f"v_and_b32 {v(t0)}, 31, v1")
    a(f"s_lshl_b32 s6, s7, 5")
    a(f"v_add_u32 {v(t3)}, s6, {v(t0)}")
    a(f"v_mul_u32_u24 {v(vXR)}, {XN_STRIDE}, {v(t3)}")
    a(f"v_lshl_add_u32 {v(vXR)}, {v(t2)}, 4, {v(vXR)}")
    a(f"v_lshl_add_u32 {v(vRSR)}, {v(t3)}, 2, {v(vSY)}")
    a(f"s_mov_b32 {s(sONES)}, 0x3f803f80")
    a(f"s_mov_b32 {s(sLO)}, 0x00003f80")
    a(f"s_mov_b32 {s(sHI)}, 0x3f800000")
    a(f"s_mov_b32 {s(sMASK)}, 0x0000ffff")
    a(f"s_mov_b32 {s(sMASK+1)}, 0x0000ffff")
    a(f"s_lshl_b32 {s(sKD)}, {s(sW)}, 12")
    a(f"s_add_u32 {s(sKD)}, {s(sKD)}, {L_KROT}")
    a(f"v_add_u32 {v(vKR)}, {s(sKD)}, {v(t5)}")
    a(f"s_lshl_b32 s6, {s(sW)}, 11")
    a(f"s_add_u32 s7, s6, {L_QO}")
    a(f"v_add_u32 {v(vQO)}, s7, {v(t5)}")
    a(f"v_mov_b32 {v(vIDX)}, 0xdddddddd")
    a(f"v_mov_b32 {v(vIDX+1)}, 0xdddddddd")
    a(f"v_lshlrev_b32 {v(vCA)}, 4, {v(t0)}")
    a(f"v_add_u32 {v(vCA)}, {L_C}, {v(vCA)}")
    a(f"s_lshl_b32 s7, {s(sW)}, 10")
    a(f"v_add_u32 {v(vCW)}, s7, {v(vCA)}")
    a(f"s_lshl_b32 s7, {s(sW)}, 2")
    a(f"v_add_u32 {v(vCF)}, s7, {v(vSY)}")
    a(f"v_and_b32 {v(t3)}, 15, v1")
    a(f"v_lshlrev_b32 {v(vQV)}, 4, {v(t3)}")
    a(f"v_lshl_add_u32 {v(vQV)}, {v(t2)}, 8, {v(vQV)}")
    a(f"s_lshl_b32 s6, {s(sW)}, 14")
    a(f"s_add_u32 {s(sVB)}, s6, {VF}")
    a(f"s_add_u32 {s(sKB)}, s6, {KF}")
    a(f"s_sub_u32 {s(sKB)}, {s(sKB)}, {s(sKD)}")
    if KVROT:
        a(f"s_and_b32 s7, {s(sG)}, 3")
        a(f"s_lshl_b32 s7, s7, 12")
    else:
        a(f"s_mov_b32 s7, 0")
    for i in (3, 2, 1, 0):
        a(f"s_xor_b32 s6, s7, {4096*i}")
        a(f"s_add_u32 {s(sKB+i)}, {s(sKB)}, s6")
        a(f"s_add_u32 {s(sVB+i)}, {s(sVB)}, s6")
    a(f"v_cmp_eq_u32 vcc, 20, v1")
    a(f"v_mov_b32 v0, 0x3f80")
    a(f"v_mov_b32 v1, 0")
    a(f"v_cndmask_b32 v0, 0, v0, vcc")
    a(f"v_cmp_eq_u32 vcc, 16, {v(t0)}")
    a(f"v_mov_b32 v92, 0x3f803f80")
    a(f"s_lshl_b32 s6, {s(sB)}, 16")
    a(f"v_cndmask_b32 v92, 0, v92, vcc")
    a(f"v_mov_b32 v93, v92")
    a(f"s_lshl_b32 s7, {s(sW)}, 14")
    a(f"s_add_u32 s6, s6, s7")
    a(f"s_add_u32 s7, s6, 8192")
    a(f"s_waitcnt lgkmcnt(0)")
    srd(a, rX, sPX, 2097152)
    a(f"s_barrier")
    for st in range(2):
        for j in range(8):
            vm.issue(("x", st, j), f"buffer_load_dwordx4 {v(XRAW+32*st+4*j,4)}, {v(vXL)}, {s(rX,4)}, s{6+st} offen offset:{128*j}")
    srd(a, rWS, sPWS, WS_SIZE)
    for r in range(128, 256, 2): a(f"v_pk_mov_b32 {v(r,2)}, v[92:93], v[92:93]")
    S1, S2 = 80, 82
    for i in range(4): a(f"v_mov_b32 {v(80+i)}, 0")
    inv = f2u(1.0/512)
    k = 0
    for st in range(2):
        for j in range(8):
            vm.wait(("x", st, j))
            for d in range(4):
                x = XRAW + 32*st + 4*j + d
                a(f"v_dot2_f32_bf16 {v(S1+st)}, {v(x)}, {s(sONES)}, {v(S1+st)}")
                a(f"v_dot2_f32_bf16 {v(S2+st)}, {v(x)}, {v(x)}, {v(S2+st)}")
        if st == 1: stamp(a, 1)
        a("s_nop 2")
        for dpp in ("quad_perm:[1,0,3,2]", "quad_perm:[2,3,0,1]", "row_half_mirror"):
            for r in (S1+st, S2+st):
                a(f"v_add_f32_dpp {v(r)}, {v(r)}, {v(r)} {dpp} row_mask:0xf bank_mask:0xf")
            a("s_nop 0")
        for r in (S1+st, S2+st): a(f"v_mul_f32 {v(r)}, {inv:#x}, {v(r)}")
        a(f"v_fma_f32 {v(S2+st)}, -{v(S1+st)}, {v(S1+st)}, {v(S2+st)}")
        a(f"v_max_f32 {v(S2+st)}, 0, {v(S2+st)}")
        a(f"v_cvt_pk_bf16_f32 {v(84+st)}, {v(S1+st)}, {v(S2+st)}")
        a(f"v_lshlrev_b32 {v(S1+st)}, 16, {v(84+st)}")
        r = 84 + st
        rs_ops = [f"v_and_b32 {v(r)}, 0xffff0000, {v(r)}",
                  f"v_add_f32 {v(r)}, {f2u(1e-5):#x}, {v(r)}",
                  f"v_cvt_pk_bf16_f32 {v(r)}, {v(r)}, {v(r)}",
                  f"v_and_b32 {v(r)}, 0xffff0000, {v(r)}",
                  f"v_sqrt_f32 {v(r)}, {v(r)}",
                  f"v_cvt_pk_bf16_f32 {v(r)}, {v(r)}, {v(r)}",
                  f"v_and_b32 {v(r)}, 0xffff0000, {v(r)}",
                  f"v_rcp_f32 {v(r)}, {v(r)}"]
        for j in range(8):
            t = TMP + 8*(k % 2); k += 1
            for d in range(4):
                x = XRAW + 32*st + 4*j + d
                a(f"v_dot2_f32_bf16 {v(t+2*d)}, {v(x)}, {s(sLO)}, {v(S1+st)} neg_lo:[0,0,1]")
                a(f"v_dot2_f32_bf16 {v(t+2*d+1)}, {v(x)}, {s(sHI)}, {v(S1+st)} neg_lo:[0,0,1]")
            a(rs_ops[j])
            for d in range(4):
                x = XRAW + 32*st + 4*j + d
                a(f"v_cvt_pk_bf16_f32 {v(x)}, {v(t+2*d)}, {v(t+2*d+1)}")
            a(f"ds_write_b128 {v(vXW)}, {v(XRAW+32*st+4*j,4)} offset:{128*j + st*8*XN_STRIDE}")
        a(f"ds_write_b32 {v(vRSW)}, {v(84+st)} offset:{SY_RS + 32*st}")
    lds_inc(a, vSY, SY_LN, vONE)
    stamp(a, 2)
    lds_wait2(a, "A_ln", vSY, SY_LN, 7, 96, 0)
    stamp(a, 3)
    ACC, WF, XF = 64, 16, 40
    LA = 4
    a(f"ds_read_b32 v12, {v(vRSR)} offset:{SY_RS}")
    def rd(st):
        a(f"ds_read_b64_tr_b16 {v(WF+4*(st%6),2)}, {v(vTR)} offset:{2048*st}")
        a(f"ds_read_b64_tr_b16 {v(WF+4*(st%6)+2,2)}, {v(vTR)} offset:{2048*st+512}")
        a(f"ds_read_b128 {v(XF+4*(st%6),4)}, {v(vXR)} offset:{32*st}")
    for st in range(LA): rd(st)
    for st in range(32):
        if st + LA < 32: rd(st + LA)
        a(f"s_waitcnt lgkmcnt({3*min(LA, 31-st)})")
        c = "0" if st == 0 else v(ACC, 16)
        a(f"v_mfma_f32_32x32x16_bf16 {v(ACC,16)}, {v(WF+4*(st%6),4)}, {v(XF+4*(st%6),4)}, {c}")
    a(f"v_mul_f32 v12, {CSCALE:#x}, v12")
    a.nop(11)
    for hh in range(2):
        d = 16 + 4*hh
        for i in range(4):
            r = ACC + 8*hh + 2*i
            a(f"v_pk_mul_f32 {v(r,2)}, {v(r,2)}, v[12:13] op_sel_hi:[1,0]")
        for i in range(4):
            r = ACC + 8*hh + 2*i
            a(f"v_cvt_pk_bf16_f32 {v(d+i)}, {v(r)}, {v(r+1)}")
        a(f"ds_write_b128 {v(vQT)}, {v(d,4)} offset:{2048*hh}")
    lds_inc(a, vSY, SY_QCNT, vONE)
    stamp(a, 4)
    lds_wait2(a, "A_kv", vSY, SY_KVRDY, 5, 96, 1)
    stamp(a, 6)
    a(f"s_setprio 3")
    vm.drained()
    def ldK(t, tag):
        vm.issue(tag, f"buffer_load_dwordx4 {v(kreg(t),4)}, {v(vKR)}, {s(rWS,4)}, {s(sKB+t//4)} offen offset:{(t%4)*1024} sc1")
    def dmaK(t, tag):
        a(f"s_add_u32 m0, {s(sKD)}, {(t//4)*1024}")
        a(f"s_nop 0")
        vm.issue(tag, f"buffer_load_dwordx4 {v(vKR)}, {s(rWS,4)}, {s(sKB+t//4)} offen sc1 lds")
    def group(t):
        tag = ("g", t)
        if t == 9: dmaK(0, tag)
        if t + 2 in rot: dmaK(t + 2, tag)
        if t + 1 in res and t + 1 > 2: ldK(t + 1, tag)
        a(f"s_mov_b64 exec, {s(sMASK,2)}")
        for t2 in range(2):
            vm.issue(tag, f"buffer_load_dwordx4 {v(VR+8*t+4*t2,4)}, {v(vQV)}, {s(rWS,4)}, {s(sVB+t//4)} offen offset:{(t%4)*1024+t2*512} sc1")
        a(f"s_mov_b64 exec, -1")
    QA, QB = kreg(14), kreg(15)
    assert DPRE <= 10 and DP0 <= DPRE
    ldK(1, "k12"); ldK(2, "k12"); ldK(0, "k0")
    a(f"ds_read_b128 {v(QA,4)}, {v(vQO)} offset:{L_QT - L_QO}")
    a(f"ds_read_b128 {v(QB,4)}, {v(vQO)} offset:{L_QT - L_QO + 1024}")
    a(f"ds_read_b128 {v(Q,4)}, {v(vQ0)}")
    a(f"ds_write_b32 {v(vZA)}, v1")
    for t in range(DP0): group(t)
    stamp(a, 7)
    rest = list(range(DP0, DPRE))
    vm.wait("k12", " lgkmcnt(2)")
    a(f"v_mfma_f32_32x32x16_bf16 {v(S0,16)}, {v(kreg(1),4)}, {v(QA,4)}, 0")
    a(f"v_mfma_f32_32x32x16_bf16 {v(C,16)}, {v(kreg(1),4)}, {v(QB,4)}, 0")
    a(f"v_mfma_f32_32x32x16_bf16 {v(S1_,16)}, {v(kreg(2),4)}, {v(QA,4)}, 0")
    a(f"v_mfma_f32_32x32x16_bf16 {v(O,16)}, {v(kreg(2),4)}, {v(QB,4)}, 0")
    if rest: group(rest.pop(0))
    a.nop(9)
    for i in range(0, 30, 2):
        for base in (S0, C):
            a(f"v_max3_f32 {v(base)}, {v(base)}, {v(base+i+1)}, {v(base+i+2)}")
    for base in (S0, C): a(f"v_max_f32 {v(base)}, {v(base)}, {v(base+31)}")
    for base in (S0, C): a(f"v_mov_b32 {v(base+1)}, {v(base)}")
    a(f"s_nop 0")
    for base in (S0, C): a(f"v_permlane32_swap_b32 {v(base)}, {v(base+1)}")
    a(f"v_mfma_f32_32x32x8_bf16 {v(O,16)}, v[0:1], {v(vIDX,2)}, 0")
    for base in (S0, C): a(f"v_max_f32 {v(base)}, {v(base)}, {v(base+1)}")
    for base in (S0, C): a(f"v_sub_f32 {v(base)}, {f2u(-BIAS):#x}, {v(base)}")
    for i in range(1, 4):
        for base in (S0, C): a(f"v_mov_b32 {v(base+i)}, {v(base)}")
    a(f"ds_write_b128 {v(vCW)}, {v(S0,4)}")
    a(f"ds_write_b128 {v(vCW)}, {v(C,4)} offset:512")
    a(f"ds_write_b32 {v(vCF)}, {v(vONE)} offset:{SY_CF}")
    while rest: group(rest.pop(0))
    spin_begin(a, "A_c")
    a(f"ds_read_b32 {v(S0)}, {v(vCP)} offset:{SY_CF}")
    for i in range(4): a(f"ds_read_b128 {v(C+4*i,4)}, {v(vCA)}")
    a(f"s_waitcnt lgkmcnt(0)")
    a(f"v_cmp_eq_u32 vcc, 0, {v(S0)}")
    a(f"s_nop 0")
    a(f"s_cbranch_vccz A_c_ok")
    spin_retry(a, "A_c", 0)
    stamp(a, 9)
    def PV(t, half):
        sb = (S0 if t % 2 == 0 else S1_) + 8*half
        a(f"v_smfmac_f32_32x32x32_bf16 {v(O,16)}, {v(VR+8*t+4*half,4)}, {v(sb,8)}, {v(vIDX)}")
    def QK(t):
        sb = S0 if t % 2 == 0 else S1_
        a(f"v_mfma_f32_32x32x16_bf16 {v(sb,16)}, {v(kreg(t),4)}, {v(Q,4)}, {v(C,16)}")
    def rdK(t): a(f"ds_read_b128 {v(KROT,4)}, {v(vKR)} offset:{(t//4)*1024}")
    def rdQC():
        a(f"ds_read_b128 {v(Q,4)}, {v(vQV)} offset:1024")
        for i in range(4): a(f"ds_read_b128 {v(C+4*i,4)}, {v(vCA)} offset:512")
    def flush():
        a(f"ds_write_b128 {v(vQO)}, {v(O,4)}")
        a(f"ds_write_b128 {v(vQO)}, {v(O+4,4)} offset:1024")
        a(f"ds_write_addtid_b32 {v(O+8)} offset:{TID_OFF}")
    vm.wait("k0")
    a(f"s_setprio {APRIO}")
    QK(0)
    a(f"s_mov_b32 {s(sPH)}, 7")
    a.nop(11)
    for t in range(16):
        cur = S0 if t % 2 == 0 else S1_
        E = lambda i: a(f"v_exp_f32 {v(cur+i)}, {v(cur+i)}")
        E(0); E(1)
        if t > 0: PV(t-1, 1)
        if t + DPRE < 16: group(t + DPRE)
        if t == 16 - DPRE:
            a(f"s_sub_u32 s6, {L_QT}, {s(sKD)}")
            a(f"v_add_u32 {v(vQV)}, s6, {v(vKR)}")
            a(f"s_lshl_b32 s6, {s(sW)}, 8")
            a(f"s_add_u32 m0, s6, {L_L - TID_OFF}")
        E(2); E(3); E(4)
        nt = (t + 1) % 16
        vm.wait(("g", t), " lgkmcnt(0)" if nt in rot else "")
        QK(nt)
        if (t + 2) % 16 in rot: rdK((t + 2) % 16)
        if t == 15: rdK(4)
        for i in range(5, 10): E(i)
        PV(t, 0)
        if t == 14: rdQC()
        for i in range(10, 16): E(i)
    stamp(a, 10)
    if PROF: a(f"s_memtime {s(70+2*12,2)}")
    a(".p2align 6")
    a.label("A_ph")
    body_start = len(a.lines)
    a(f"s_cmp_eq_u32 {s(sPH)}, 2")
    a(f"s_cbranch_scc1 A_chk")
    a.label("A_back")
    for t in range(16):
        cur = S0 if t % 2 == 0 else S1_
        E = lambda i: a(f"v_exp_f32 {v(cur+i)}, {v(cur+i)}")
        nt = (t + 1) % 16
        if t == 0:
            E(0); E(1); PV(15, 1); E(2); E(3); E(4); QK(1)
            for i in range(5, 13): E(i)
            flush()
            a(f"v_mfma_f32_32x32x8_bf16 {v(O,16)}, v[0:1], {v(vIDX,2)}, 0")
            a(f"s_add_u32 m0, m0, 1024")
            E(13); E(14); E(15)
            a(f"v_add_u32 {v(vQO)}, 8192, {v(vQO)}")
            PV(0, 0)
            a(f"v_add_u32 {v(vQV)}, 1024, {v(vQV)}")
            continue
        if t == 1:
            E(0); E(1); E(2); PV(0, 1); a(f"v_add_u32 {v(vCA)}, 512, {v(vCA)}"); E(3); E(4)
        else:
            E(0); E(1); PV(t-1, 1); E(2); E(3); E(4)
        if nt in rot: a(f"s_waitcnt lgkmcnt(0)")
        QK(nt)
        if nt in rot: rdK((nt + 4) % 16)
        for i in range(5, 10): E(i)
        PV(t, 0)
        if t == 14: rdQC()
        if t == 15: a(f"s_sub_u32 {s(sPH)}, {s(sPH)}, 1")
        if t == 15: a(f"s_cmp_lg_u32 {s(sPH)}, 0")
        for i in range(10, 16): E(i)
    a(f"s_cbranch_scc1 A_ph")
    if PROF: a(f"s_memtime {s(70+2*13,2)}")
    stamp(a, 14)
    body = a.lines[body_start:]
    pr = check_hazards(body + body, "attn-loop")
    assert not pr, "\n".join(pr)
    a(f"v_lshrrev_b32 {v(Q)}, 4, {v(vKR)}")
    a(f"v_and_b32 {v(Q)}, 3, {v(Q)}")
    PV(15, 1)
    a(f"v_lshlrev_b32 {v(Q)}, 8, {v(Q)}")
    a(f"v_add_u32 {v(Q)}, {L_L}, {v(Q)}")
    spin_begin(a, "A_e")
    a(f"ds_read_b32 {v(Q+1)}, {v(Q)} offset:{6*1024 + 128}")
    a(f"s_waitcnt lgkmcnt(0)")
    a(f"v_cmp_eq_u32 vcc, 0, {v(Q+1)}")
    a(f"s_nop 0")
    a(f"s_cbranch_vccz A_e_ok")
    spin_retry(a, "A_e", 0)
    a.nop(5)
    flush()
    endpgm(a, 11)
    a.label("A_chk")
    lds_wait(a, "A_x", vCA, L_SY + SY_XFREE - L_C - 5*512, 4, vIDX+1)
    a(f"v_mov_b32 {v(vIDX+1)}, {v(vIDX)}")
    a(f"s_branch A_back")

def gen_g(a):
    vm = VM(a)
    ids(a)
    a(f"s_sub_u32 {s(sJ)}, {s(sW)}, 4")
    vSY, vONE, vU = 2, 3, 4
    a(f"v_mov_b32 {v(vSY)}, {L_SY}")
    a(f"s_cmp_eq_u32 {s(sJ)}, 3")
    a(f"s_cbranch_scc1 G_kv")
    a(f"v_lshl_add_u32 v12, v1, 2, {v(vSY)}")
    a(f"v_mov_b32 v13, 0")
    a(f"ds_write_b32 v12, v13")
    def setup_u():
        a(f"v_lshrrev_b32 v8, 3, v1")
        a(f"v_and_b32 v9, 7, v1")
        a(f"v_lshrrev_b32 v10, 2, v1")
        a(f"v_and_b32 v10, 4, v10")
        a(f"v_xor_b32 v10, v9, v10")
        a(f"v_lshlrev_b32 {v(vU)}, 10, v8")
        a(f"v_lshl_add_u32 {v(vU)}, v10, 4, {v(vU)}")
        a(f"s_lshl_b32 s6, {s(sG)}, 7")
        a(f"v_add_u32 {v(vU)}, s6, {v(vU)}")
        a(f"v_mov_b32 {v(vONE)}, 1")
    setup_u()
    sP, sWo, sRho, sW0 = T+1, T+2, T+3, T+4
    vW1, vBW, vT0, vT1, vXR, vX0 = 5, 6, 7, 11, 12, 48
    ACC, AF, XF, ST = 64, 16, 32, 128
    a(f"s_mul_i32 {s(sP)}, {s(sG)}, 3")
    a(f"s_cmp_eq_u32 {s(sG)}, 7")
    a(f"s_cselect_b32 {s(sP)}, 20, {s(sP)}")
    a(f"s_add_u32 {s(sP)}, {s(sP)}, {s(sJ)}")
    a(f"s_movk_i32 s6, 2752")
    a(f"v_lshlrev_b32 v13, 4, v9")
    a(f"v_mad_u32_u24 {v(vW1)}, v8, s6, v13")
    a(f"s_lshl_b32 {s(sW0)}, {s(sP)}, 7")
    a(f"s_and_b32 {s(sRho)}, {s(sB)}, {W1ROT}")
    a(f"s_lshl_b32 {s(T+6)}, {s(sRho)}, 13")
    a(f"s_lshl_b32 {s(T+7)}, {s(sJ)}, 10")
    args_ready(a)
    srd(a, rWA, sPWQ, 524288)
    for i in range(22):
        if i == 21: a(f"s_mov_b32 {s(T+7)}, {63*1024}")
        a(f"s_xor_b32 s6, {s(T+7)}, {s(T+6)}")
        a(f"s_add_u32 m0, s6, {L_R2}")
        a(f"s_lshl_b32 s6, s6, 3")
        vm.issue("wq", f"buffer_load_dwordx4 {v(vU)}, {s(rWA,4)}, s6 offen lds")
        if i < 20: a(f"s_add_u32 {s(T+7)}, {s(T+7)}, 3072")
    srd(a, rWB, sPW1, 1409024)
    srd(a, rWS, sPWS, WS_SIZE)
    a(f"s_lshr_b32 s6, {s(sG)}, 1")
    a(f"s_add_u32 s6, s6, {s(sJ)}")
    a(f"s_cmp_eq_u32 s6, 5")
    a(f"s_cbranch_scc1 G_idle")
    R = W1D
    assert R % 2 == 0 and 4 <= R <= 32
    def ldw(u):
        if u % 8 == 0:
            a(f"s_xor_b32 s6, {s(sRho)}, {u//8}")
            a(f"s_mul_i32 s6, s6, {64*2752}")
            a(f"s_add_u32 {s(sWo)}, {s(sW0)}, s6")
        if not (DBG & 2): vm.issue(("w1", u), f"buffer_load_dwordx4 {v(ST+4*(u%R),4)}, {v(vW1)}, {s(rWB,4)}, {s(sWo)} offen")
        if u % 8 != 7: a(f"s_add_u32 {s(sWo)}, {s(sWo)}, {8*2752}")
    for u in range(R): ldw(u)
    a(f"s_lshl_b32 s6, {s(sJ)}, 12")
    a(f"s_add_u32 s6, s6, {L_BNC}")
    a(f"v_lshlrev_b32 {v(vBW)}, 7, v8")
    a(f"v_lshl_add_u32 {v(vBW)}, v10, 4, {v(vBW)}")
    a(f"v_add_u32 {v(vBW)}, s6, {v(vBW)}")
    a(f"v_lshrrev_b32 v13, 5, v1")
    a(f"v_bfe_u32 v14, v1, 2, 2")
    a(f"v_lshlrev_b32 {v(vT0)}, 10, v13")
    a(f"v_lshl_add_u32 {v(vT0)}, v14, 7, {v(vT0)}")
    a(f"v_bfe_u32 v15, v1, 4, 1")
    a(f"v_lshl_add_u32 {v(vT0)}, v15, 5, {v(vT0)}")
    a(f"v_and_b32 v15, 3, v1")
    a(f"v_lshl_add_u32 {v(vT0)}, v15, 3, {v(vT0)}")
    a(f"v_lshrrev_b32 v14, 1, v14")
    a(f"v_lshl_add_u32 {v(vT0)}, v14, 6, {v(vT0)}")
    a(f"v_xor_b32 {v(vT1)}, 64, {v(vT0)}")
    a(f"v_add_u32 {v(vT0)}, s6, {v(vT0)}")
    a(f"v_add_u32 {v(vT1)}, s6, {v(vT1)}")
    a(f"v_and_b32 v14, 31, v1")
    a(f"v_mul_u32_u24 {v(vXR)}, {XN_STRIDE}, v14")
    a(f"v_lshl_add_u32 {v(vXR)}, v13, 4, {v(vXR)}")
    for q in range(8):
        a(f"s_xor_b32 s6, {s(sRho)}, {q}")
        a(f"s_lshl_b32 s6, s6, 7")
        a(f"v_add_u32 {v(vX0+q)}, s6, {v(vXR)}")
    for i in range(4): a(f"v_mov_b32 {v(56+i)}, -1")
    a(f"v_lshlrev_b32 v60, 4, v1")
    a(f"s_lshl1_add_u32 {s(T+5)}, {s(sC)}, {s(sJ)}")
    a(f"s_lshl_b32 {s(T+5)}, {s(T+5)}, 12")
    a(f"s_add_u32 {s(T+5)}, {s(T+5)}, {OF}")
    def wr1(u):
        if not (DBG & 1): vm.wait(("w1", u))
        a(f"ds_write_b128 {v(vBW)}, {v(ST+4*(u%R),4)} offset:{(u%4)*1024}")
    def trd(st, ct):
        b = AF + 8*(st % 2) + 4*ct; o = (st % 2)*2048
        a(f"ds_read_b64_tr_b16 {v(b,2)}, {v(vT1 if ct else vT0)} offset:{o}")
        a(f"ds_read_b64_tr_b16 {v(b+2,2)}, {v(vT1 if ct else vT0)} offset:{o+512}")
    def xrd(st, rt):
        a(f"ds_read_b128 {v(XF+8*(st%2)+4*rt,4)}, {v(vX0+st//4)} offset:{32*(st%4) + rt*32*XN_STRIDE}")
    vm.wait("wq")
    lds_inc(a, vSY, SY_WQ, vONE)
    for u in range(4): wr1(u)
    trd(0, 0); trd(0, 1)
    a(f"s_waitcnt lgkmcnt(0)")
    for u in range(R, R + 4): ldw(u)
    fix_tag(a)
    stamp(a, 1)
    lds_wait(a, "G_ln", vSY, SY_LN, 4, 61, 1)
    stamp(a, 2)
    if F1PRIO: a(f"s_setprio {F1PRIO}")
    xrd(0, 0); xrd(0, 1)
    for st in range(32):
        a(f"s_waitcnt lgkmcnt({2 if 0 < st < 31 else 0})")
        if st == 10: stamp(a, 13)
        if st == 20: stamp(a, 14)
        k = 0
        for ct in range(2):
            for rt in range(2):
                acc = ACC + 32*ct + 16*rt
                c = "0" if st == 0 else v(acc, 16)
                a(f"v_mfma_f32_32x32x16_bf16 {v(acc,16)}, {v(AF+8*(st%2)+4*ct,4)}, {v(XF+8*(st%2)+4*rt,4)}, {c}")
                if k < 2 and st + 1 < 32:
                    trd(st + 1, k); xrd(st + 1, k)
                if k >= 2 and st + 2 < 32:
                    u = 2*(st+2) + k - 2
                    wr1(u)
                    if u + R < 64: ldw(u + R)
                k += 1
    stamp(a, 3)
    a(f"s_setprio {GHI}")
    lds_inc(a, vSY, SY_XFREE, vONE)
    a(f"s_cmp_eq_u32 {s(sJ)}, 2")
    a(f"s_cbranch_scc1 G_nop")
    for p in range(4):
        a(f"buffer_store_dwordx4 v[56:59], v60, {s(rWS,4)}, {s(T+5)} offen offset:{p*1024} sc1")
    a.label("G_nop")
    a(f"v_lshlrev_b32 v8, 4, v1")
    a(f"s_mul_i32 s6, {s(sB)}, {2*HSTR}")
    a(f"s_lshl2_add_u32 s6, {s(sP)}, s6")
    a(f"s_lshl_b32 s6, s6, 10")
    a(f"s_add_u32 s6, s6, {HF}")
    a(f"s_add_u32 s7, s6, {HSTR*1024}")
    k = 0
    for ct in range(2):
        for rt in range(2):
            for hh in range(2):
                d = ST + 4*k; k += 1
                for i in range(4):
                    r = ACC + 32*ct + 16*rt + 8*hh + 2*i
                    a(f"v_cvt_pk_bf16_f32 {v(d+i)}, {v(r)}, {v(r+1)}")
                for i in range(4):
                    a(f"v_pk_max_i16 {v(d+i)}, {v(d+i)}, 0")
                a(f"buffer_store_dwordx4 {v(d,4)}, v8, {s(rWS,4)}, s{6+rt} offen offset:{1024*(2*ct+hh)} sc1")
    a.label("G_hpub")
    publish(a, "G_pubh", vSY, SY_HCNT, 2, vONE, 16, FL_H)
    stamp(a, 4)
    a.label("G_ffn2")
    lds_wait2(a, "G_wqf", vSY, SY_QCNT, 8, 16, 2)
    a(f"s_setprio {GHI}")
    vm.drained()
    sStg, sWo, sHo, sCT, sRT, sXO, sWj, sHb = T, T+2, T+3, T+4, T+5, T+6, T+7, T+9
    vA1, vB0, vB1, vT0, vT1, vXO = 5, 6, 7, 11, 12, 10
    ACC, AF, BF, XD = 64, 128, 144, 192
    assert BF + 8*FD <= XD and FD*2048 <= 16384
    a(f"s_lshl_b32 {s(sWj)}, {s(sJ)}, 14")
    a(f"s_add_u32 {s(sStg)}, {s(sWj)}, {L_STG}")
    srd(a, rWA, sPW2, 1409024)
    srd(a, rX, sPX, 2097152)
    a(f"v_add_u32 {v(vA1)}, {8192-1024}, {v(vU)}")
    N = 22
    if F2ROT:
        a(f"s_lshl1_add_u32 s6, {s(sG)}, {s(sB)}")
        a(f"s_and_b32 s6, s6, 7")
        a(f"s_mul_i32 s6, s6, 11")
        a(f"s_lshr_b32 s6, s6, 2")
    else:
        a(f"s_mov_b32 s6, 0")
    a(f"s_lshl_b32 {s(sHo)}, s6, 12")
    a(f"s_lshl_b32 {s(sWo)}, s6, 16")
    a(f"s_add_u32 {s(sWo)}, {s(sWo)}, {s(sWj)}")
    def issueW(i):
        a(f"s_add_u32 m0, {s(sStg)}, {(i % FD)*2048}")
        a(f"s_nop 0")
        vm.issue(("f", i), f"buffer_load_dwordx4 {v(vU)}, {s(rWA,4)}, {s(sWo)} offen lds")
        vm.issue(("f", i), f"buffer_load_dwordx4 {v(vA1)}, {s(rWA,4)}, {s(sWo)} offen offset:1024 lds")
        a(f"s_add_u32 {s(sWo)}, {s(sWo)}, {4*16384}")
        a(f"s_cmp_ge_u32 {s(sWo)}, {N*65536}")
        a(f"s_cselect_b32 {s(sWo)}, {s(sWj)}, {s(sWo)}")
    def issueH(i):
        vm.issue(("f", i), f"buffer_load_dwordx4 {v(BF+8*(i%FD),4)}, {v(vB0)}, {s(rWS,4)}, {s(sHo)} offen sc1")
        vm.issue(("f", i), f"buffer_load_dwordx4 {v(BF+8*(i%FD)+4,4)}, {v(vB1)}, {s(rWS,4)}, {s(sHo)} offen sc1")
        a(f"s_add_u32 {s(sHo)}, {s(sHo)}, 4096")
        a(f"s_cmp_ge_u32 {s(sHo)}, {N*4096}")
        a(f"s_cselect_b32 {s(sHo)}, 0, {s(sHo)}")
    for i in range(FD - 1): issueW(i)
    a(f"s_and_b32 {s(sCT)}, {s(sJ)}, 1")
    a(f"s_lshr_b32 {s(sRT)}, {s(sJ)}, 1")
    a(f"v_and_b32 v8, 31, v1")
    a(f"v_lshrrev_b32 v9, 5, v1")
    a(f"v_lshlrev_b32 {v(vXO)}, 10, v8")
    a(f"v_lshl_add_u32 {v(vXO)}, v9, 5, {v(vXO)}")
    a(f"s_lshl_b32 s6, {s(sB)}, 16")
    a(f"s_lshl_b32 s7, {s(sRT)}, 15")
    a(f"s_add_u32 {s(sXO)}, s6, s7")
    a(f"s_lshl_b32 s6, {s(sG)}, 7")
    a(f"s_lshl_b32 s7, {s(sCT)}, 6")
    a(f"s_add_u32 s6, s6, s7")
    a(f"s_add_u32 {s(sXO)}, {s(sXO)}, s6")
    for q in range(2):
        vm.issue("xd", f"buffer_load_dwordx4 {v(XD+4*q,4)}, {v(vXO)}, {s(rX,4)}, {s(sXO)} offen offset:{16*q}")
    a(f"v_lshlrev_b32 v13, 4, v1")
    a(f"s_mul_i32 {s(sHb)}, {s(sB)}, {2*HSTR*1024}")
    a(f"s_lshl_b32 s6, {s(sJ)}, 10")
    a(f"s_add_u32 {s(sHb)}, {s(sHb)}, s6")
    a(f"s_add_u32 {s(sHb)}, {s(sHb)}, {HF}")
    a(f"s_mul_i32 s6, {s(sRT)}, {HSTR*1024}")
    a(f"s_add_u32 s7, s6, {s(sHb)}")
    a(f"v_add_u32 {v(vB0)}, s7, v13")
    a(f"s_sub_u32 s6, {HSTR*1024}, s6")
    a(f"s_add_u32 s7, s6, {s(sHb)}")
    a(f"v_add_u32 {v(vB1)}, s7, v13")
    a(f"v_bfe_u32 v14, v1, 2, 2")
    a(f"v_lshl_add_u32 {v(vT0)}, v9, 2, v14")
    a(f"v_lshlrev_b32 {v(vT0)}, 7, {v(vT0)}")
    a(f"v_bfe_u32 v15, v1, 4, 1")
    a(f"v_lshl_add_u32 {v(vT0)}, v15, 4, {v(vT0)}")
    a(f"v_and_b32 v15, 1, v1")
    a(f"v_lshl_add_u32 {v(vT0)}, v15, 5, {v(vT0)}")
    a(f"v_bfe_u32 v15, v1, 1, 1")
    a(f"v_lshl_add_u32 {v(vT0)}, v15, 3, {v(vT0)}")
    a(f"v_lshrrev_b32 v14, 1, v14")
    a(f"v_xor_b32 v14, {s(sCT)}, v14")
    a(f"v_lshl_add_u32 {v(vT0)}, v14, 6, {v(vT0)}")
    a(f"v_xor_b32 {v(vT1)}, 64, {v(vT0)}")
    a(f"v_add_u32 {v(vT0)}, {s(sStg)}, {v(vT0)}")
    a(f"v_add_u32 {v(vT1)}, {s(sStg)}, {v(vT1)}")
    a(f"v_and_b32 v14, 7, v1")
    a(f"v_lshlrev_b32 v14, 3, v14")
    a(f"s_lshl_b32 s7, {s(sB)}, 7")
    a(f"s_add_u32 s7, s7, {FL_H}")
    spin_begin(a, "G_h")
    a(f"buffer_load_dwordx2 v[16:17], v14, {s(rWS,4)}, s7 offen sc1")
    a(f"s_waitcnt vmcnt(0)")
    a(f"v_cmp_ne_u64 vcc, {s(sTAG,2)}, v[16:17]")
    a(f"s_nop 0")
    a(f"s_cbranch_vccz G_h_ok")
    spin_retry(a, "G_h", 4)
    stamp(a, 5)
    vm.drained()
    for i in range(FD - 1): issueH(i)
    def aread(i, ct):
        base = AF + 8*(i % 2) + 4*ct; o = (i % FD)*2048
        a(f"ds_read_b64_tr_b16 {v(base,2)}, {v(vT1 if ct else vT0)} offset:{o}")
        a(f"ds_read_b64_tr_b16 {v(base+2,2)}, {v(vT1 if ct else vT0)} offset:{o+1024}")
    vm.wait(("f", 0))
    aread(0, 1); aread(0, 0)
    a(f"s_setprio {GLO}")
    for i in range(N):
        a(f"s_waitcnt lgkmcnt(0)")
        k = 0
        for rt in (1, 0):
            for ct in (1, 0):
                acc = ACC + 16*(2*rt + ct)
                c = "0" if i == 0 else v(acc, 16)
                a(f"v_mfma_f32_32x32x16_bf16 {v(acc,16)}, {v(AF+8*(i%2)+4*ct,4)}, {v(BF+8*(i%FD)+4*rt,4)}, {c}")
                if k == 0 and i + 1 < N:
                    vm.wait(("f", i + 1)); aread(i + 1, 1)
                if k == 1 and i + 1 < N: aread(i + 1, 0)
                if k == 2 and i + FD - 1 < N: issueW(i + FD - 1)
                if k == 3 and i + FD - 1 < N: issueH(i + FD - 1)
                k += 1
    stamp(a, 6)
    a(f"s_setprio {GHI}")
    a(f"v_add_u32 v16, {s(sStg)}, v13")
    for lam in range(1, 4):
        a(f"s_xor_b32 s6, {s(sJ)}, {lam}")
        a(f"s_lshl_b32 s6, s6, 14")
        a(f"s_add_u32 s6, s6, {L_STG}")
        a(f"v_add_u32 {v(16+lam)}, s6, v13")
    a(f"s_lshl_b32 s6, {s(sRT)}, 7")
    a(f"v_lshl_add_u32 v20, v8, 2, {v(vSY)}")
    a(f"v_add_u32 v20, s6, v20")
    for lam in (3, 2, 1):
        for q in range(4):
            a(f"ds_write_b128 v16, {v(ACC+16*lam+4*q,4)} offset:{(lam-1)*4096 + q*1024}")
    lds_inc(a, vSY, SY_RED1, vONE)
    a(f"ds_read_b32 v22, v20 offset:{SY_RS}")
    XU = 208
    for q in range(8):
        a(f"v_lshlrev_b32 {v(XU+2*q)}, 16, {v(XD+q)}")
        a(f"v_and_b32 {v(XU+2*q+1)}, 0xffff0000, {v(XD+q)}")
    srd(a, rWA, sPWO, 524288)
    srd(a, rOUT, sPOUT, 2097152)
    lds_wait(a, "G_r1", vSY, SY_RED1, 4, 21)
    for lam in range(1, 4):
        for q in range(4):
            a(f"ds_read_b128 {v(ACC+16*lam+4*q,4)}, {v(16+lam)} offset:{(lam-1)*4096 + q*1024}")
    lds_inc(a, vSY, SY_RED2, vONE)
    a(f"s_waitcnt lgkmcnt(5)")
    for i in range(8):
        a(f"v_pk_add_f32 {v(ACC+2*i,2)}, {v(ACC+2*i,2)}, {v(ACC+16+2*i,2)}")
    for i in range(8):
        a(f"v_pk_add_f32 {v(ACC+2*i,2)}, {v(ACC+2*i,2)}, {v(ACC+32+2*i,2)}")
    a(f"s_waitcnt lgkmcnt(0)")
    for i in range(8):
        a(f"v_pk_add_f32 {v(ACC+2*i,2)}, {v(ACC+2*i,2)}, {v(ACC+48+2*i,2)}")
    for i in range(8):
        a(f"v_pk_fma_f32 {v(ACC+2*i,2)}, {v(ACC+2*i,2)}, v[22:23], {v(XU+2*i,2)} op_sel_hi:[1,0,1]")
    lds_wait(a, "G_r2", vSY, SY_RED2, 4, 21)
    stamp(a, 7)
    vm.drained()
    a(f"s_mov_b32 m0, {s(sStg)}")
    a(f"s_lshl_b32 {s(sWo)}, {s(sJ)}, 17")
    for u in range(16):
        a(f"buffer_load_dwordx4 {v(vU)}, {s(rWA,4)}, {s(sWo)} offen lds")
        if u < 15:
            a(f"s_add_u32 m0, m0, 1024")
            a(f"s_add_u32 {s(sWo)}, {s(sWo)}, 8192")
    vL16, vOR, vLR, vFL, vFG = 13, 5, 6, 7, 14
    WFR, OB, RT_, LV = 128, 80, 16, 48
    sOP, sOC, sLIM, sPHS = T+1, T+3, T+4, T+8
    a(f"s_lshl_b32 s6, {s(sJ)}, 13")
    a(f"s_add_u32 s6, s6, {L_QO}")
    a(f"v_add_u32 {v(vOR)}, s6, {v(vL16)}")
    a(f"s_lshl_b32 s6, {s(sJ)}, 10")
    a(f"v_lshlrev_b32 {v(vLR)}, 2, v8")
    a(f"v_add_u32 {v(vLR)}, s6, {v(vLR)}")
    a(f"v_add_u32 {v(vLR)}, {L_L}, {v(vLR)}")
    a(f"v_and_b32 {v(vFG)}, 3, v1")
    a(f"v_lshl_add_u32 v15, {v(vFG)}, 2, {v(vSY)}")
    a(f"v_lshlrev_b32 {v(vFG)}, 8, {v(vFG)}")
    a(f"v_add_u32 {v(vFG)}, {L_L}, {v(vFG)}")
    a(f"v_add_u32 {v(vFL)}, s6, {v(vFG)}")
    a(f"s_lshl_b32 s7, {s(sRT)}, 10")
    a(f"v_add_u32 {v(vFG)}, s7, {v(vFG)}")
    a(f"s_lshl_b32 {s(sOP)}, {s(sC)}, 13")
    a(f"s_add_u32 {s(sOP)}, {s(sOP)}, s6")
    a(f"s_add_u32 {s(sOP)}, {s(sOP)}, {OF}")
    a(f"s_lshl_b32 {s(sOC)}, {s(sB)}, 16")
    a(f"s_add_u32 {s(sOC)}, {s(sOC)}, s7")
    a(f"s_add_u32 {s(sOC)}, {s(sOC)}, {OF}")
    a(f"v_subrev_u32 {v(vT0)}, {s(sWj)}, {v(vT0)}")
    a(f"s_mov_b32 {s(sLIM)}, {f2u(2.0**120):#x}")
    spin_begin(a, "G_cf")
    a(f"ds_read_b32 {v(LV+4)}, v15 offset:{SY_CF}")
    a(f"s_waitcnt lgkmcnt(0)")
    a(f"v_cmp_eq_u32 vcc, 0, {v(LV+4)}")
    a(f"s_nop 0")
    a(f"s_cbranch_vccz G_cf_ok")
    spin_retry(a, "G_cf", 2)
    def red(k):
        spin_begin(a, f"G_o{k}")
        a(f"ds_read_b32 {v(LV+4)}, {v(vFL)} offset:{4096*k + 128}")
        a(f"s_waitcnt lgkmcnt(0)")
        a(f"v_cmp_eq_u32 vcc, 0, {v(LV+4)}")
        a(f"s_nop 0")
        a(f"s_cbranch_vccz G_o{k}_ok")
        spin_retry(a, f"G_o{k}", 2)
        a(f"ds_read2st64_b32 {v(LV,2)}, {v(vLR)} offset0:{16*k} offset1:{16*k+1}")
        a(f"ds_read2st64_b32 {v(LV+2,2)}, {v(vLR)} offset0:{16*k+2} offset1:{16*k+3}")
        for w in range(4):
            for hf in range(2):
                a(f"ds_read_b128 {v(RT_+8*w+4*hf,4)}, {v(vOR)} offset:{32768*k + 2048*w + 1024*hf}")
        a(f"s_add_u32 {s(sPHS)}, {s(sJ)}, {4*k}")
        a(f"s_waitcnt lgkmcnt(8)")
        a(f"v_pk_add_f32 {v(LV,2)}, {v(LV,2)}, {v(LV+2,2)}")
        a(f"s_waitcnt lgkmcnt(4)")
        a(f"v_add_f32 {v(LV)}, {v(LV)}, {v(LV+1)}")
        for i in range(4): a(f"v_pk_add_f32 {v(RT_+2*i,2)}, {v(RT_+2*i,2)}, {v(RT_+8+2*i,2)}")
        a(f"v_rcp_f32 {v(LV+2)}, {v(LV)}")
        a(f"s_waitcnt lgkmcnt(0)")
        for i in range(4): a(f"v_pk_add_f32 {v(RT_+16+2*i,2)}, {v(RT_+16+2*i,2)}, {v(RT_+24+2*i,2)}")
        for i in range(4): a(f"v_pk_add_f32 {v(RT_+2*i,2)}, {v(RT_+2*i,2)}, {v(RT_+16+2*i,2)}")
        for i in range(4): a(f"v_maximum3_f32 {v(LV)}, |{v(RT_+2*i)}|, |{v(RT_+2*i+1)}|, {v(LV)}")
        a(f"v_cmp_ngt_f32 vcc, {s(sLIM)}, {v(LV)}")
        a(f"s_nop 0")
        if FORCE_FB: a(f"s_bitcmp1_b32 {s(sJ)}, 0"); a(f"s_cbranch_scc1 G_fb")
        a(f"s_cbranch_vccnz G_fb")
        a.label(f"G_ret{k}")
        for i in range(4): a(f"v_pk_mul_f32 {v(RT_+2*i,2)}, {v(RT_+2*i,2)}, {v(LV+2,2)} op_sel_hi:[1,0]")
        for i in range(4): a(f"v_cvt_pk_bf16_f32 {v(RT_+8+i)}, {v(RT_+2*i)}, {v(RT_+2*i+1)}")
        if k: a(f"s_add_u32 {s(sOP)}, {s(sOP)}, 4096")
        a(f"buffer_store_dwordx4 {v(RT_+8,4)}, {v(vL16)}, {s(rWS,4)}, {s(sOP)} offen sc1")
    def cons(hh):
        if hh == 3:
            spin_begin(a, f"G_g{hh}")
            a(f"ds_read_b32 {v(LV+4)}, {v(vFG)} offset:{2048*hh + 128}")
            a(f"s_waitcnt lgkmcnt(0)")
            a(f"v_cmp_eq_u32 vcc, 0, {v(LV+4)}")
            a(f"s_nop 0")
            a(f"s_cbranch_vccz G_g{hh}_ok")
            spin_retry(a, f"G_g{hh}", 2)
        spin_begin(a, f"G_c{hh}")
        a(f"s_add_u32 s6, {s(sOC)}, {2048*hh}")
        for g2 in range(8):
            a(f"buffer_load_dwordx4 {v(OB+4*g2,4)}, {v(vL16)}, {s(rWS,4)}, s6 offen sc1")
            if g2 < 7: a(f"s_add_u32 s6, s6, 8192")
        for g2 in range(8):
            a(f"s_waitcnt vmcnt({7-g2})")
            b = OB + 4*g2
            if g2 == 0:
                a(f"v_max3_u32 {v(LV+4)}, {v(b)}, {v(b+1)}, {v(b+2)}")
                a(f"v_max_u32 {v(LV+4)}, {v(LV+4)}, {v(b+3)}")
            else:
                a(f"v_max3_u32 {v(LV+4)}, {v(b)}, {v(b+1)}, {v(LV+4)}")
                a(f"v_max3_u32 {v(LV+4)}, {v(b+2)}, {v(b+3)}, {v(LV+4)}")
        a(f"v_cmp_eq_u32 vcc, -1, {v(LV+4)}")
        a(f"s_nop 0")
        a(f"s_cbranch_vccz G_c{hh}_ok")
        spin_retry(a, f"G_c{hh}", 0 if hh == 3 else 4)
        if hh < 3: a(f"s_setprio {GLO}")
        for g2 in range(8):
            a(f"v_mfma_f32_32x32x16_bf16 {v(ACC,16)}, {v(WFR+4*(4*g2+hh),4)}, {v(OB+4*g2,4)}, {v(ACC,16)}")
        if hh < 3: a(f"s_setprio {GHI}")
    red(0)
    a(f"s_waitcnt vmcnt(1)")
    lds_inc(a, vSY, SY_WO, vONE)
    lds_wait(a, "G_wo", vSY, SY_WO, 4, LV+4)
    for st in range(32):
        a(f"ds_read_b64_tr_b16 {v(WFR+4*st,2)}, {v(vT0)} offset:{2048*st}")
        a(f"ds_read_b64_tr_b16 {v(WFR+4*st+2,2)}, {v(vT0)} offset:{2048*st+1024}")
        if st % 4 == 3: a(f"s_waitcnt lgkmcnt(4)")
    a(f"s_waitcnt lgkmcnt(0)")
    stamp(a, 8)
    cons(0); cons(1)
    stamp(a, 9)
    red(1)
    stamp(a, 10)
    cons(2); cons(3)
    stamp(a, 11)
    a.nop(12)
    for q in range(2):
        for i in range(4):
            a(f"v_cvt_pk_bf16_f32 {v(RT_+4*q+i)}, {v(ACC+8*q+2*i)}, {v(ACC+8*q+2*i+1)}")
        a(f"buffer_store_dwordx4 {v(RT_+4*q,4)}, {v(vXO)}, {s(rOUT,4)}, {s(sXO)} offen offset:{16*q}")
    a(f"s_add_u32 s6, s2, {s(sJ)}")
    a(f"s_cmp_eq_u32 s6, 0")
    a(f"s_cbranch_scc0 G_end")
    a(f"s_mov_b64 exec, 1")
    a(f"v_mov_b32 v56, {s(sTAG)}")
    a(f"v_mov_b32 v57, {s(sTAG+1)}")
    a(f"s_mov_b32 s6, {EP}")
    a(f"buffer_store_dwordx2 v[56:57], off, {s(rWS,4)}, s6 sc1")
    a.label("G_end")
    endpgm(a, 12)

    a.label("G_fb")
    FS, FC, FO, FK, FV, FQ, FI, FVo = 80, 96, RT_, 112, 116, 124, 56, 57
    a(f"s_lshl_b32 s6, {s(sC)}, 13")
    a(f"s_lshl_b32 s7, {s(sPHS)}, 10")
    a(f"s_add_u32 s6, s6, s7")
    a(f"s_add_u32 s6, s6, {QF}")
    a(f"buffer_load_dwordx4 {v(FQ,4)}, {v(vL16)}, {s(rWS,4)}, s6 offen sc1")
    a(f"v_mov_b32 {v(FI)}, 0xdddddddd")
    a(f"v_mov_b32 {v(FC)}, 0xff800000")
    a(f"s_mov_b32 s6, {KF}")
    a.label("G_fb1")
    a(f"buffer_load_dwordx4 {v(FK,4)}, {v(vL16)}, {s(rWS,4)}, s6 offen sc1")
    a(f"s_waitcnt vmcnt(0)")
    a(f"v_mfma_f32_32x32x16_bf16 {v(FS,16)}, {v(FK,4)}, {v(FQ,4)}, 0")
    a.nop(12)
    for i in range(8):
        a(f"v_maximum3_f32 {v(FC)}, {v(FC)}, {v(FS+2*i)}, {v(FS+2*i+1)}")
    a(f"s_add_u32 s6, s6, 1024")
    a(f"s_cmp_lt_u32 s6, {KF + 65536}")
    a(f"s_cbranch_scc1 G_fb1")
    a(f"v_mov_b32 {v(FC+1)}, {v(FC)}")
    a(f"s_nop 1")
    a(f"v_permlane32_swap_b32 {v(FC)}, {v(FC+1)}")
    a(f"v_and_b32 {v(FVo)}, 31, v1")
    a(f"v_cmp_eq_u32 vcc, 16, {v(FVo)}")
    a(f"v_maximum3_f32 {v(FC)}, {v(FC)}, {v(FC+1)}, {v(FC+1)}")
    a(f"v_mov_b32 {v(FV)}, 0x3f803f80")
    a(f"v_cndmask_b32 {v(FV)}, 0, {v(FV)}, vcc")
    a(f"v_sub_f32 {v(FC)}, 0, {v(FC)}")
    for i in range(1, 8): a(f"v_mov_b32 {v(FV+i)}, {v(FV)}")
    for i in range(1, 16): a(f"v_mov_b32 {v(FC+i)}, {v(FC)}")
    for i in range(16): a(f"v_mov_b32 {v(FO+i)}, 0")
    a(f"v_and_b32 {v(FVo)}, 15, v1")
    a(f"v_lshrrev_b32 {v(FS)}, 5, v1")
    a(f"v_lshlrev_b32 {v(FVo)}, 4, {v(FVo)}")
    a(f"v_lshl_add_u32 {v(FVo)}, {v(FS)}, 8, {v(FVo)}")
    a(f"s_mov_b32 s6, {KF}")
    a.label("G_fb2")
    a(f"s_add_u32 s7, s6, {VF - KF}")
    a(f"buffer_load_dwordx4 {v(FK,4)}, {v(vL16)}, {s(rWS,4)}, s6 offen sc1")
    a(f"s_mov_b32 exec_lo, 0xffff")
    a(f"s_mov_b32 exec_hi, 0xffff")
    a(f"buffer_load_dwordx4 {v(FV,4)}, {v(FVo)}, {s(rWS,4)}, s7 offen sc1")
    a(f"buffer_load_dwordx4 {v(FV+4,4)}, {v(FVo)}, {s(rWS,4)}, s7 offen offset:512 sc1")
    a(f"s_mov_b64 exec, -1")
    a(f"s_waitcnt vmcnt(0)")
    a(f"v_mfma_f32_32x32x16_bf16 {v(FS,16)}, {v(FK,4)}, {v(FQ,4)}, {v(FC,16)}")
    a.nop(12)
    for i in range(16): a(f"v_exp_f32 {v(FS+i)}, {v(FS+i)}")
    a(f"s_nop 1")
    a(f"v_smfmac_f32_32x32x32_bf16 {v(FO,16)}, {v(FV,4)}, {v(FS,8)}, {v(FI)}")
    a(f"v_smfmac_f32_32x32x32_bf16 {v(FO,16)}, {v(FV+4,4)}, {v(FS+8,8)}, {v(FI)}")
    a.nop(16)
    a(f"s_add_u32 s6, s6, 1024")
    a(f"s_cmp_lt_u32 s6, {KF + 65536}")
    a(f"s_cbranch_scc1 G_fb2")
    a(f"v_mov_b32 {v(FO+9)}, {v(FO+8)}")
    a(f"s_nop 1")
    a(f"v_permlane32_swap_b32 {v(FO+8)}, {v(FO+9)}")
    a(f"s_nop 1")
    a(f"v_rcp_f32 {v(LV+2)}, {v(FO+8)}")
    a(f"s_cmp_lt_u32 {s(sPHS)}, 4")
    a(f"s_cbranch_scc1 G_ret0")
    a(f"s_branch G_ret1")

    a.label("G_idle")
    a(f"s_waitcnt vmcnt(0) lgkmcnt(0)")
    lds_inc(a, vSY, SY_WQ, vONE)
    fix_tag(a)
    stamp(a, 1)
    stamp(a, 2)
    stamp(a, 3)
    lds_inc(a, vSY, SY_XFREE, vONE)
    a(f"s_branch G_hpub")

    a.label("G_kv")
    vm.drained()
    a("s_setprio 3")
    WK, XK = 128, 64
    vL16, vBW, vTk, vXk = 5, 6, 7, 11
    MA, SX, CS, ON, Q0, Q1 = 20, 24, 28, 32, 36, 37
    sTG = T + 1
    a(f"v_lshlrev_b32 {v(vL16)}, 4, v1")
    a(f"v_lshrrev_b32 v12, 4, v1")
    a(f"v_and_b32 v13, 15, v1")
    a(f"v_lshlrev_b32 {v(vXk)}, 10, v13")
    a(f"v_lshl_add_u32 {v(vXk)}, v12, 4, {v(vXk)}")
    a(f"s_and_b32 {s(sTG)}, {s(sG)}, 3")
    a(f"s_lshl_b32 {s(T+4)}, {s(sB)}, 16")
    a(f"s_lshl_b32 s6, {s(sTG)}, 14")
    a(f"s_add_u32 {s(T+4)}, {s(T+4)}, s6")
    if KVFIRST: a(f"s_waitcnt lgkmcnt(0)")
    else: args_ready(a)
    a(f"s_cmp_ge_u32 {s(sG)}, 4")
    a(f"s_cselect_b32 s6, {s(sPWV)}, {s(sPWK)}")
    a(f"s_cselect_b32 s7, {s(sPWV+1)}, {s(sPWK+1)}")
    srd(a, rWB, 6, 16384)
    srd(a, rX, sPX, 2097152)
    for u in range(16):
        vm.issue(("xk", u), f"buffer_load_dwordx4 {v(XK+4*u,4)}, {v(vXk)}, {s(rX,4)}, {s(T+4)} offen offset:{64*u}")
    for u in range(16):
        if u % 4 == 0: a(f"s_movk_i32 s6, {u*1024}")
        vm.issue(("wk", u), f"buffer_load_dwordx4 {v(WK+4*u,4)}, {v(vL16)}, {s(rWB,4)}, s6 offen offset:{(u%4)*1024}")
    if KVFIRST: args_ready(a)
    srd(a, rWS, sPWS, WS_SIZE)
    setup_u()
    a(f"v_add_u32 {v(vBW)}, {L_BNC + 3*4096}, {v(vL16)}")
    a(f"v_bfe_u32 v14, v1, 2, 2")
    a(f"v_lshl_add_u32 v14, v12, 3, v14")
    a(f"v_and_b32 v15, 3, v1")
    a(f"v_lshlrev_b32 v15, 3, v15")
    a(f"v_lshl_add_u32 {v(vTk)}, v14, 5, v15")
    a(f"v_add_u32 {v(vTk)}, {L_BNC + 3*4096}, {v(vTk)}")
    a(f"v_and_b32 v14, 1, v12")
    a(f"v_lshrrev_b32 v15, 1, v12")
    a(f"v_lshlrev_b32 v13, 4, v13")
    a(f"v_lshl_add_u32 v18, v14, 9, v13")
    a(f"v_lshl_add_u32 v18, v15, 3, v18")
    a(f"v_lshl_add_u32 v19, v15, 8, v13")
    a(f"v_lshl_add_u32 v19, v14, 3, v19")
    a(f"s_lshr_b32 s7, {s(sTG)}, 1")
    a(f"s_lshl1_add_u32 s7, {s(sB)}, s7")
    a(f"s_lshl_b32 s7, s7, 10")
    a(f"s_and_b32 s6, {s(sTG)}, 1")
    a(f"s_lshl_b32 {s(T+2)}, s6, 8")
    a(f"s_add_u32 {s(T+2)}, {s(T+2)}, s7")
    a(f"s_add_u32 {s(T+2)}, {s(T+2)}, {KF}")
    a(f"s_lshl_b32 {s(T+3)}, s6, 9")
    a(f"s_add_u32 {s(T+3)}, {s(T+3)}, s7")
    a(f"s_add_u32 {s(T+3)}, {s(T+3)}, {VF}")
    a(f"v_lshlrev_b32 v16, 12, v1")
    a(f"s_and_b32 s6, s2, 7")
    a(f"s_lshr_b32 s7, s2, 3")
    a(f"s_lshl_b32 {s(T+6)}, s6, 12")
    a(f"s_add_u32 {s(T+6)}, {s(T+6)}, {FL_KV}")
    a(f"s_lshl_b32 s6, s6, 5")
    a(f"s_add_u32 s6, s6, s7")
    a(f"s_lshl_b32 s6, s6, 2")
    a(f"s_add_u32 {s(T+5)}, s6, {FL_KV}")
    for i in range(4): a(f"v_mov_b32 {v(ON+i)}, 0x3f803f80")
    a(f"v_mov_b32 {v(Q0)}, 0")
    a(f"v_mov_b32 {v(Q1)}, 0")
    inv = f2u(1.0/512)
    for u in range(16):
        vm.wait(("xk", u))
        a(f"v_mfma_f32_16x16x32_bf16 {v(SX,4)}, {v(ON,4)}, {v(XK+4*u,4)}, {'0' if u == 0 else v(SX,4)}")
        for d in range(4): a(f"v_dot2_f32_bf16 {v(Q0+d%2)}, {v(XK+4*u+d)}, {v(XK+4*u+d)}, {v(Q0+d%2)}")
    a(f"s_waitcnt lgkmcnt(0)")
    fix_tag(a)
    stamp(a, 1)
    stats = [
        [f"v_add_f32 {v(Q0)}, {v(Q0)}, {v(Q1)}", f"v_mov_b32 {v(Q1)}, {v(Q0)}"],
        [f"v_permlane16_swap_b32 {v(Q0)}, {v(Q1)}", f"v_mul_f32 {v(SX)}, {inv:#x}, {v(SX)}", f"v_add_f32 {v(Q0)}, {v(Q0)}, {v(Q1)}",
         f"v_mov_b32 {v(Q1)}, {v(Q0)}", f"v_mul_f32 {v(SX+1)}, {v(SX)}, {v(SX)}"],
        [f"v_permlane32_swap_b32 {v(Q0)}, {v(Q1)}", f"v_mov_b32 {v(SX+2)}, {inv:#x}", f"v_add_f32 {v(Q0)}, {v(Q0)}, {v(Q1)}",
         f"v_fma_f32 {v(Q0)}, {v(Q0)}, {v(SX+2)}, -{v(SX+1)}", f"v_max_f32 {v(Q0)}, 0, {v(Q0)}"],
        [f"v_cvt_pk_bf16_f32 {v(Q0)}, {v(SX)}, {v(Q0)}", f"v_lshlrev_b32 {v(SX)}, 16, {v(Q0)}", f"v_and_b32 {v(Q0)}, 0xffff0000, {v(Q0)}",
         f"v_add_f32 {v(Q0)}, {f2u(1e-5):#x}, {v(Q0)}"],
        [f"v_cvt_pk_bf16_f32 {v(Q0)}, {v(Q0)}, {v(Q0)}", f"v_and_b32 {v(Q0)}, 0xffff0000, {v(Q0)}", f"v_sqrt_f32 {v(Q0)}, {v(Q0)}"],
        [f"v_cvt_pk_bf16_f32 {v(Q0)}, {v(Q0)}, {v(Q0)}", f"v_and_b32 {v(Q0)}, 0xffff0000, {v(Q0)}", f"v_rcp_f32 {v(Q0)}, {v(Q0)}"]]
    a(f"s_cmp_ge_u32 {s(sG)}, 4")
    a(f"s_cbranch_scc1 G_v")
    q_save = list(vm.q)
    for isv in range(2):
        vm.q = list(q_save)
        if isv: a.label("G_v")
        fill = [list(x) for x in stats]
        if isv:
            for src_, dst in ((SX, 40), (Q0, 44)):
                for G_ in range(4):
                    fill.append([f"v_mov_b32_dpp {v(dst+r)}, {v(src_)} row_newbcast:{4*G_+r} row_mask:{1<<G_:#x} bank_mask:0xf" for r in range(4)])
        def mm(u):
            c = lambda r: "0" if u == 0 else v(r, 4)
            if isv:
                a(f"v_mfma_f32_16x16x32_bf16 {v(CS,4)}, {v(ON,4)}, {v(WK+4*u,4)}, {c(CS)}")
                a(f"v_mfma_f32_16x16x32_bf16 {v(MA,4)}, {v(XK+4*u,4)}, {v(WK+4*u,4)}, {c(MA)}")
            else:
                a(f"v_mfma_f32_16x16x32_bf16 {v(CS,4)}, {v(WK+4*u,4)}, {v(ON,4)}, {c(CS)}")
                a(f"v_mfma_f32_16x16x32_bf16 {v(MA,4)}, {v(WK+4*u,4)}, {v(XK+4*u,4)}, {c(MA)}")
        LAG = 3
        for u in range(16 + LAG):
            if u < 16:
                vm.wait(("wk", u))
                a(f"ds_write_b128 {v(vBW)}, {v(WK+4*u,4)} offset:{(u%4)*1024}")
                a(f"ds_read_b64_tr_b16 {v(WK+4*u,2)}, {v(vTk)} offset:{(u%4)*1024}")
                a(f"ds_read_b64_tr_b16 {v(WK+4*u+2,2)}, {v(vTk)} offset:{(u%4)*1024+128}")
            if fill:
                for ins in fill.pop(0): a(ins)
            if u >= LAG:
                a(f"s_waitcnt lgkmcnt({3*(min(u, 15) - (u - LAG))})")
                mm(u - LAG)
        assert not fill
        a.nop(8)
        if isv:
            for i in range(2):
                a(f"v_pk_fma_f32 {v(MA+2*i,2)}, {v(CS+2*i,2)}, {v(40+2*i,2)}, {v(MA+2*i,2)} neg_lo:[1,0,0] neg_hi:[1,0,0]")
            for i in range(2): a(f"v_pk_mul_f32 {v(MA+2*i,2)}, {v(MA+2*i,2)}, {v(44+2*i,2)}")
        else:
            for i in range(2):
                a(f"v_pk_fma_f32 {v(MA+2*i,2)}, {v(CS+2*i,2)}, {v(SX,2)}, {v(MA+2*i,2)} op_sel_hi:[1,0,1] neg_lo:[1,0,0] neg_hi:[1,0,0]")
            for i in range(2): a(f"v_pk_mul_f32 {v(MA+2*i,2)}, {v(MA+2*i,2)}, {v(Q0,2)} op_sel_hi:[1,0]")
        a(f"v_cvt_pk_bf16_f32 {v(MA)}, {v(MA)}, {v(MA+1)}")
        a(f"v_cvt_pk_bf16_f32 {v(MA+1)}, {v(MA+2)}, {v(MA+3)}")
        a(f"buffer_store_dwordx2 {v(MA,2)}, v{18+isv}, {s(rWS,4)}, {s(T+2+isv)} offen sc1")
        if not isv: a(f"s_branch G_kvd")
    a.label("G_kvd")
    stamp(a, 2)
    a(f"v_mov_b32 v17, {s(sTAG)}")
    a(f"s_mov_b64 exec, 0xff")
    a(f"s_waitcnt vmcnt(0)")
    a(f"buffer_store_dword v17, v16, {s(rWS,4)}, {s(T+5)} offen sc1")
    a(f"s_mov_b64 exec, -1")
    stamp(a, 3)
    spin_begin(a, "G_pk")
    a(f"buffer_load_dwordx4 v[20:23], {v(vL16)}, {s(rWS,4)}, {s(T+6)} offen sc1")
    a(f"s_waitcnt vmcnt(0)")
    a(f"v_xor_b32 v20, v20, v17")
    a(f"v_xor_b32 v21, v21, v17")
    a(f"v_xor_b32 v22, v22, v17")
    a(f"v_xor_b32 v23, v23, v17")
    a(f"v_or3_b32 v20, v20, v21, v22")
    a(f"v_or_b32 v20, v20, v23")
    a(f"v_cmp_ne_u32 vcc, 0, v20")
    a(f"s_nop 0")
    a(f"s_cbranch_vccz G_pk_ok")
    spin_retry(a, "G_pk", PSLEEP)
    a(f"ds_write_b32 {v(vSY)}, {v(vONE)} offset:{SY_KVRDY}")
    stamp(a, 13)
    a(f"s_setprio {GLO}")
    lds_wait(a, "G_wq3", vSY, SY_QCNT, 4, 16)
    a(f"v_add_u32 v16, {L_QT}, {v(vL16)}")
    a(f"s_lshl_b32 s6, {s(sC)}, 13")
    a(f"s_add_u32 s6, s6, {QF}")
    a(f"s_add_u32 s7, s6, 4096")
    for p in range(8): a(f"ds_read_b128 {v(64+4*p,4)}, v16 offset:{1024*p}")
    lds_inc(a, vSY, SY_XFREE, vONE)
    a(f"s_waitcnt lgkmcnt(0)")
    for p in range(8):
        a(f"buffer_store_dwordx4 {v(64+4*p,4)}, {v(vL16)}, {s(rWS,4)}, s{6+p//4} offen offset:{(p%4)*1024} sc1")
    stamp(a, 4)
    a(f"s_branch G_ffn2")

def descriptor(name, vgpr=256, sgpr=102):
    return f""".amdhsa_kernel {name}
  .amdhsa_next_free_vgpr {vgpr}
  .amdhsa_next_free_sgpr {sgpr}
  .amdhsa_accum_offset {min(256, (vgpr+3)//4*4)}
  .amdhsa_group_segment_fixed_size 0
  .amdhsa_kernarg_size 88
  .amdhsa_user_sgpr_count 2
  .amdhsa_user_sgpr_kernarg_segment_ptr 1
  .amdhsa_system_sgpr_workgroup_id_x 1
.end_amdhsa_kernel
"""

def main(out):
    hdr = open("cdna_kernels/" + NAME + ".s.ref").read().split("; Override")[0]
    a = Asm()
    name = NAME + "_kernel"
    a('.amdgcn_target "amdgcn-amd-amdhsa--gfx950"')
    a(".text")
    a(f".globl {name}")
    a(f".p2align 8")
    a(f".type {name},@function")
    a.label(name)
    a(f"s_cmp_ge_u32 s2, 256")
    a(f"s_cbranch_scc1 K_exit")
    stamp(a, 0)
    if PROF:
        for i in range(1, 15): a(f"s_mov_b32 {s(70+2*i)}, 0")
    a(f"s_load_dwordx16 s[8:23], s[0:1], 0")
    a(f"s_load_dwordx4 s[24:27], s[0:1], 64")
    a(f"s_load_dwordx2 s[28:29], s[0:1], 80")
    a(f"v_lshrrev_b32 v1, 6, v0")
    a(f"s_nop 0")
    a(f"v_readfirstlane_b32 {s(sW)}, v1")
    a(f"s_cmp_ge_u32 {s(sW)}, 4")
    a(f"s_cbranch_scc1 G_start")
    gen_a(a)
    a.label("K_exit")
    a("s_endpgm")
    a(".p2align 6")
    a.label("G_start")
    gen_g(a)
    pr = check_hazards(a.lines, name)
    for p in pr: print("HAZARD", p)
    launch = f"; @launch grid=(256,1,1) block=(512,1,1) lds={LDS_TOTAL}\n"
    txt = hdr + launch + a.text() + '.section .rodata,"a"\n.p2align 6\n' + descriptor(name)
    open(out, "w").write(txt)
    print("wrote", out, len(txt), "bytes; LDS", LDS_TOTAL)

if __name__ == "__main__":
    main(sys.argv[1] if len(sys.argv) > 1 and not sys.argv[1].startswith("--") else "cdna_kernels/" + NAME + ".s")
```

```python
import sys, struct
from asmlib import Asm, v, s, check_hazards

NAME = "parallel_sum__grouped_kv_mqa__dense_activation_relu__prompt"
QF, KF, VF, FL_KV, FL_H, EP, OF, HF = 0x040000, 0x300000, 0x310000, 0x320000, 0x328000, 0x32A000, 0x400000, 0x600000
HSTR = 88
WS_SIZE = 0x1000000
CSCALE = 0x3eb8aa3b
BIAS = 88.0
def f2u(x): return struct.unpack("<I", struct.pack("<f", x))[0]
def opt(name, default):
    for a_ in sys.argv[1:]:
        if a_.startswith("--" + name + "="): return int(a_.split("=")[1])
    return default
PROF = "--prof" in sys.argv
PROF_OFF = 0xF00000
FORCE_FB = "--forcefb" in sys.argv
DP0 = opt("dp0", 3)
DPRE = opt("dpre", 7)
SPIN_MAX = 1 << 15
APRIO = opt("aprio", 1)
GHI = opt("ghi", 3)
GLO = opt("glo", 0)
PSLEEP = opt("psleep", 0)
W1D = opt("w1d", 12)
W1ROT = opt("w1rot", 7)
KVFIRST = opt("kvfirst", 1)
DBG = opt("dbg", 0)
F1PRIO = opt("f1prio", 0)
KVROT = opt("kvrot", 1)
F2ROT = opt("f2rot", 1)
MAP84 = opt("map84", 1)
FD = opt("fd", 6)
WOPF = opt("wopf", 1)
RSL = opt("rsl", 0)
NPOLL = opt("npoll", 1); PGAP = opt("pgap", 4); ASL = opt("asl", 0)
GX = opt("gx", 0)
W1F = opt("w1f", 8); W1POS = opt("w1pos", 99)
VFULL = opt("vfull", 1)
P1 = opt("p1", 2); PQ = opt("pq", 5); P0 = opt("p0", 10)

sW, sB, sG = 3, 4, 5
sPX, sPWQ, sPWK, sPWV, sPWO, sPBX, sPW1, sPW2 = 8, 10, 12, 14, 16, 18, 20, 22
sPOUT, sPDBG, sPWS = 24, 26, 28
sC, sJ = 30, 31
rX, rWA, rWB, rWS, rOUT = 32, 36, 40, 44, 48
sTAG = 52
sSPIN = 54
T = 56

XN_STRIDE = 1040
L_STG = 0
L_R2 = 64 * XN_STRIDE
L_KROT = L_R2
L_L = L_R2 + 16384
L_QO = L_L + 8192
L_BNC = L_QO + 5 * 8192
assert L_BNC == L_R2 + 65536
L_QT = L_QO + 7 * 8192
L_C = L_QT + 8192
L_SY = L_C + 4096
LDS_TOTAL = L_SY + 1024
TID_OFF = 49152
SY_LN, SY_WQ, SY_KVRDY, SY_QCNT, SY_XFREE, SY_HCNT, SY_RED1 = 0, 4, 8, 12, 16, 20, 28
SY_CF, SY_RED2, SY_WO, SY_RS = 32, 48, 52, 256

class VM:
    def __init__(self, a): self.a, self.q = a, []
    def issue(self, tag, txt):
        self.a(txt); self.q.append(tag)
        assert len(self.q) < 4000
    def n_after(self, tags):
        if not isinstance(tags, (list, set)): tags = [tags]
        idx = max(i for i, t in enumerate(self.q) if t in tags)
        return len(self.q) - 1 - idx
    def wait(self, tags, extra=""):
        n = self.n_after(tags)
        assert n <= 63, n
        self.a(f"s_waitcnt vmcnt({n}){extra}")
    def drained(self): self.q = []

def stamp(a, i):
    if PROF: a(f"s_memrealtime {s(70+2*i,2)}")
def endpgm(a, n):
    if PROF:
        a("s_waitcnt vmcnt(0)")
        stamp(a, n); n += 1
        a("s_waitcnt lgkmcnt(0)")
        a("s_mov_b64 exec, 1")
        for i in range(15):
            a(f"v_mov_b32 {v(240+i)}, {s(70+2*i)}")
        a(f"v_mov_b32 v255, 15")
        a(f"s_lshl_b32 s6, s2, 3")
        a(f"s_add_u32 s6, s6, {s(sW)}")
        a(f"s_lshl_b32 s6, s6, 6")
        a(f"s_add_u32 s6, s6, {PROF_OFF}")
        a(f"v_mov_b32 v239, 0")
        for q in range(4):
            a(f"buffer_store_dwordx4 {v(240+4*q,4)}, v239, {s(rWS,4)}, s6 offen offset:{16*q}")
    a("s_endpgm")

def srd(a, r, ptr, size):
    a(f"s_mov_b32 {s(r)}, {s(ptr)}")
    a(f"s_and_b32 {s(r+1)}, {s(ptr+1)}, 0xffff")
    a(f"s_mov_b32 {s(r+2)}, {size}")
    a(f"s_mov_b32 {s(r+3)}, 0x20000")

def ids(a):
    a(f"s_and_b32 s6, s2, 7")
    a(f"s_lshr_b32 s7, s2, 3")
    if MAP84:
        a(f"s_and_b32 {s(sG)}, s7, 3")
        if GX: a(f"s_xor_b32 {s(sG)}, {s(sG)}, {GX}")
        a(f"s_and_b32 {s(sB)}, s6, 1")
        a(f"s_lshl2_add_u32 {s(sG)}, {s(sB)}, {s(sG)}")
        a(f"s_lshr_b32 s6, s6, 1")
        a(f"s_lshr_b32 s7, s7, 2")
        a(f"s_lshl3_add_u32 {s(sB)}, s6, s7")
    else:
        a(f"s_and_b32 {s(sG)}, s7, 7")
        a(f"s_lshr_b32 s7, s7, 3")
        a(f"s_lshl2_add_u32 {s(sB)}, s6, s7")
    a(f"s_lshl3_add_u32 {s(sC)}, {s(sB)}, {s(sG)}")
    a(f"v_and_b32 v1, 63, v0")

def args_ready(a):
    a(f"s_waitcnt lgkmcnt(0)")
    a(f"s_barrier")
    a(f"s_add_u32 s6, {s(sPWS)}, {EP}")
    a(f"s_addc_u32 s7, {s(sPWS+1)}, 0")
    a(f"s_load_dwordx2 {s(sTAG,2)}, s[6:7], 0")

def fix_tag(a):
    a(f"s_add_u32 {s(sTAG)}, {s(sTAG)}, 1")
    a(f"s_addc_u32 {s(sTAG+1)}, {s(sTAG+1)}, 0")

def spin_begin(a, name):
    a(f"s_mov_b32 {s(sSPIN)}, {SPIN_MAX}")
    a.label(name + "_top")
def spin_retry(a, name, sleep=1):
    a(f"s_sleep {sleep}")
    a(f"s_sub_u32 {s(sSPIN)}, {s(sSPIN)}, 1")
    a(f"s_cmp_lg_u32 {s(sSPIN)}, 0")
    a(f"s_cbranch_scc1 {name}_top")
    a.label(name + "_ok")

def lds_wait(a, name, vaddr, off, val, vt, sleep=1):
    spin_begin(a, name)
    a(f"ds_read_b32 {v(vt)}, {v(vaddr)} offset:{off}")
    a(f"s_waitcnt lgkmcnt(0)")
    a(f"v_readfirstlane_b32 s6, {v(vt)}")
    a(f"s_cmp_ge_u32 s6, {val}")
    a(f"s_cbranch_scc1 {name}_ok")
    spin_retry(a, name, sleep)

def lds_inc(a, vsy, off, vone):
    a(f"s_mov_b64 exec, 1")
    a(f"ds_add_u32 {v(vsy)}, {v(vone)} offset:{off}")
    a(f"s_mov_b64 exec, -1")

def publish(a, name, vsy, off, last, vone, vt, flbase):
    a(f"s_lshl_b32 s6, {s(sB)}, 7")
    a(f"s_lshl3_add_u32 s6, {s(sG)}, s6")
    a(f"s_add_u32 s7, s6, {flbase}")
    a(f"v_mov_b32 {v(vt)}, {s(sTAG)}")
    a(f"v_mov_b32 {v(vt+1)}, {s(sTAG+1)}")
    a(f"s_mov_b64 exec, 1")
    a(f"s_waitcnt vmcnt(0)")
    if last > 0:
        a(f"ds_add_rtn_u32 {v(vt+2)}, {v(vsy)}, {v(vone)} offset:{off}")
        a(f"s_waitcnt lgkmcnt(0)")
        a(f"v_readfirstlane_b32 s6, {v(vt+2)}")
        a(f"s_cmp_eq_u32 s6, {last}")
        a(f"s_cbranch_scc0 {name}_skip")
    a(f"buffer_store_dwordx2 {v(vt,2)}, off, {s(rWS,4)}, s7 sc1")
    a.label(name + "_skip")
    a(f"s_mov_b64 exec, -1")

def lds_wait2(a, name, vaddr, off, val, vt, sleep=1):
    spin_begin(a, name)
    a(f"ds_read2_b32 {v(vt,2)}, {v(vaddr)} offset0:{off//4} offset1:{off//4+1}")
    a(f"s_waitcnt lgkmcnt(0)")
    a(f"v_add_u32 {v(vt)}, {v(vt)}, {v(vt+1)}")
    a(f"s_nop 0")
    a(f"v_readfirstlane_b32 s6, {v(vt)}")
    a(f"s_cmp_ge_u32 s6, {val}")
    a(f"s_cbranch_scc1 {name}_ok")
    spin_retry(a, name, sleep)

def gen_a(a):
    vm = VM(a)
    a("s_setprio 2")
    ids(a)
    vKR, vQO, vIDX, vCA, vQV = 2, 3, 4, 6, 7
    Q, KROT, S0, S1_, C, O, KR, VR = 8, 12, 16, 32, 48, 64, 80, 128
    rot = (0, 4, 8, 12)
    res = [t for t in range(16) if t not in rot]
    kreg = lambda t: KROT if t in rot else KR + 4*res.index(t)
    kslot = lambda t: (t//8)*8192 + ((t//4) & 1)*1024
    sMASK, sKB, sVB, sKD, sPH = T, T+2, T+6, T+10, T+11
    sONES, sLO, sHI = T+12, T+13, 55
    vXW, vRSW, vTR, vXR, vRSR, vQT, vXL = 8, 9, 10, 11, 12, 14, 15
    vSY, vQ0, vZA = kreg(11), kreg(11)+1, kreg(11)+2
    vCW, vCF, vCP, vONE = kreg(13), kreg(13)+1, kreg(13)+2, kreg(13)+3
    XRAW, TMP = 16, 96
    t0, t1, t2, t3, t4, t5 = 96, 97, 98, 99, 100, 101
    a(f"v_lshrrev_b32 {v(t0)}, 3, v1")
    a(f"v_and_b32 {v(t1)}, 7, v1")
    a(f"v_lshlrev_b32 {v(vXL)}, 10, {v(t0)}")
    a(f"v_lshl_add_u32 {v(vXL)}, {v(t1)}, 4, {v(vXL)}")
    a(f"s_lshl_b32 s6, {s(sW)}, 4")
    a(f"v_add_u32 {v(t0)}, s6, {v(t0)}")
    a(f"v_mul_u32_u24 {v(vXW)}, {XN_STRIDE}, {v(t0)}")
    a(f"v_lshl_add_u32 {v(vXW)}, {v(t1)}, 4, {v(vXW)}")
    a(f"v_mov_b32 {v(vSY)}, {L_SY}")
    a(f"v_lshl_add_u32 {v(vRSW)}, {v(t0)}, 2, {v(vSY)}")
    a(f"v_mov_b32 {v(vONE)}, 1")
    a(f"s_lshl_b32 s6, {s(sW)}, 8")
    a(f"s_add_u32 s6, s6, {L_L + 128}")
    a(f"v_lshlrev_b32 {v(vZA)}, 10, {v(t1)}")
    a(f"v_add_u32 {v(vZA)}, s6, {v(vZA)}")
    a(f"v_lshrrev_b32 {v(t2)}, 5, v1")
    a(f"v_bfe_u32 {v(t3)}, v1, 2, 2")
    a(f"v_lshlrev_b32 {v(vTR)}, 10, {v(t2)}")
    a(f"v_lshl_add_u32 {v(vTR)}, {v(t3)}, 7, {v(vTR)}")
    a(f"v_bfe_u32 {v(t4)}, v1, 4, 1")
    a(f"v_lshl_add_u32 {v(vTR)}, {v(t4)}, 5, {v(vTR)}")
    a(f"v_and_b32 {v(t4)}, 3, v1")
    a(f"v_lshl_add_u32 {v(vTR)}, {v(t4)}, 3, {v(vTR)}")
    a(f"v_lshl_add_u32 {v(vCP)}, {v(t4)}, 2, {v(vSY)}")
    a(f"v_lshrrev_b32 {v(t3)}, 1, {v(t3)}")
    a(f"s_and_b32 s6, {s(sW)}, 1")
    a(f"s_lshr_b32 s7, {s(sW)}, 1")
    a(f"v_xor_b32 {v(t3)}, s6, {v(t3)}")
    a(f"v_lshl_add_u32 {v(vTR)}, {v(t3)}, 6, {v(vTR)}")
    a(f"v_add_u32 {v(vTR)}, {L_R2}, {v(vTR)}")
    a(f"s_lshl2_add_u32 s6, s6, s7")
    a(f"s_lshl_b32 s6, s6, 10")
    a(f"v_lshlrev_b32 {v(t5)}, 4, v1")
    a(f"v_add_u32 {v(vQ0)}, {L_QT}, {v(t5)}")
    a(f"v_add_u32 {v(vQT)}, s6, {v(vQ0)}")
    a(f"v_and_b32 {v(t0)}, 31, v1")
    a(f"s_lshl_b32 s6, s7, 5")
    a(f"v_add_u32 {v(t3)}, s6, {v(t0)}")
    a(f"v_mul_u32_u24 {v(vXR)}, {XN_STRIDE}, {v(t3)}")
    a(f"v_lshl_add_u32 {v(vXR)}, {v(t2)}, 4, {v(vXR)}")
    a(f"v_lshl_add_u32 {v(vRSR)}, {v(t3)}, 2, {v(vSY)}")
    a(f"s_mov_b32 {s(sONES)}, 0x3f803f80")
    a(f"s_mov_b32 {s(sLO)}, 0x00003f80")
    a(f"s_mov_b32 {s(sHI)}, 0x3f800000")
    a(f"s_mov_b32 {s(sMASK)}, 0x0000ffff")
    a(f"s_mov_b32 {s(sMASK+1)}, 0x0000ffff")
    a(f"s_lshl_b32 {s(sKD)}, {s(sW)}, 11")
    a(f"s_add_u32 {s(sKD)}, {s(sKD)}, {L_KROT}")
    a(f"v_add_u32 {v(vKR)}, {s(sKD)}, {v(t5)}")
    a(f"s_lshl_b32 s6, {s(sW)}, 11")
    a(f"s_add_u32 s7, s6, {L_QO}")
    a(f"v_add_u32 {v(vQO)}, s7, {v(t5)}")
    a(f"v_mov_b32 {v(vIDX)}, 0xdddddddd")
    a(f"v_mov_b32 {v(vIDX+1)}, 0xdddddddd")
    a(f"v_lshlrev_b32 {v(vCA)}, 4, {v(t0)}")
    a(f"v_add_u32 {v(vCA)}, {L_C}, {v(vCA)}")
    a(f"s_lshl_b32 s7, {s(sW)}, 10")
    a(f"v_add_u32 {v(vCW)}, s7, {v(vCA)}")
    a(f"s_lshl_b32 s7, {s(sW)}, 2")
    a(f"v_add_u32 {v(vCF)}, s7, {v(vSY)}")
    a(f"v_and_b32 {v(t3)}, 15, v1")
    a(f"v_lshlrev_b32 {v(vQV)}, 4, {v(t3)}")
    a(f"v_lshl_add_u32 {v(vQV)}, {v(t2)}, 8, {v(vQV)}")
    if VFULL:
        a(f"v_bfe_u32 {v(t4)}, v1, 4, 1")
        a(f"v_lshl_add_u32 {v(vQV)}, {v(t4)}, 9, {v(vQV)}")
    a(f"s_lshl_b32 s6, {s(sW)}, 14")
    a(f"s_add_u32 {s(sVB)}, s6, {VF}")
    a(f"s_add_u32 {s(sKB)}, s6, {KF}")
    a(f"s_sub_u32 {s(sKB)}, {s(sKB)}, {s(sKD)}")
    if KVROT:
        a(f"s_and_b32 s7, {s(sG)}, 3")
        a(f"s_lshl_b32 s7, s7, 12")
    else:
        a(f"s_mov_b32 s7, 0")
    for i in (3, 2, 1, 0):
        a(f"s_xor_b32 s6, s7, {4096*i}")
        a(f"s_add_u32 {s(sKB+i)}, {s(sKB)}, s6")
        a(f"s_add_u32 {s(sVB+i)}, {s(sVB)}, s6")
    a(f"v_cmp_eq_u32 vcc, 20, v1")
    a(f"v_mov_b32 v0, 0x3f80")
    a(f"v_mov_b32 v1, 0")
    a(f"v_cndmask_b32 v0, 0, v0, vcc")
    if VFULL: a(f"v_cmp_eq_u32 vcc, 0, {v(t3)}")
    else: a(f"v_cmp_eq_u32 vcc, 16, {v(t0)}")
    a(f"v_mov_b32 v92, 0x3f803f80")
    a(f"s_lshl_b32 s6, {s(sB)}, 16")
    a(f"v_cndmask_b32 v92, 0, v92, vcc")
    a(f"v_mov_b32 v93, v92")
    a(f"s_lshl_b32 s7, {s(sW)}, 14")
    a(f"s_add_u32 s6, s6, s7")
    a(f"s_add_u32 s7, s6, 8192")
    a(f"s_waitcnt lgkmcnt(0)")
    srd(a, rX, sPX, 2097152)
    a(f"s_barrier")
    for st in range(2):
        for j in range(8):
            vm.issue(("x", st, j), f"buffer_load_dwordx4 {v(XRAW+32*st+4*j,4)}, {v(vXL)}, {s(rX,4)}, s{6+st} offen offset:{128*j}")
    srd(a, rWS, sPWS, WS_SIZE)
    for r in range(128, 256, 2):
        if not VFULL or r & 4: a(f"v_pk_mov_b32 {v(r,2)}, v[92:93], v[92:93]")
    S1, S2 = 80, 82
    for i in range(4): a(f"v_mov_b32 {v(80+i)}, 0")
    inv = f2u(1.0/512)
    k = 0
    for st in range(2):
        for j in range(8):
            vm.wait(("x", st, j))
            for d in range(4):
                x = XRAW + 32*st + 4*j + d
                a(f"v_dot2_f32_bf16 {v(S1+st)}, {v(x)}, {s(sONES)}, {v(S1+st)}")
                a(f"v_dot2_f32_bf16 {v(S2+st)}, {v(x)}, {v(x)}, {v(S2+st)}")
        if st == 1: stamp(a, 1)
        a("s_nop 2")
        for dpp in ("quad_perm:[1,0,3,2]", "quad_perm:[2,3,0,1]", "row_half_mirror"):
            for r in (S1+st, S2+st):
                a(f"v_add_f32_dpp {v(r)}, {v(r)}, {v(r)} {dpp} row_mask:0xf bank_mask:0xf")
            a("s_nop 0")
        for r in (S1+st, S2+st): a(f"v_mul_f32 {v(r)}, {inv:#x}, {v(r)}")
        a(f"v_fma_f32 {v(S2+st)}, -{v(S1+st)}, {v(S1+st)}, {v(S2+st)}")
        a(f"v_max_f32 {v(S2+st)}, 0, {v(S2+st)}")
        a(f"v_cvt_pk_bf16_f32 {v(84+st)}, {v(S1+st)}, {v(S2+st)}")
        a(f"v_lshlrev_b32 {v(S1+st)}, 16, {v(84+st)}")
        r = 84 + st
        rs_ops = [f"v_and_b32 {v(r)}, 0xffff0000, {v(r)}",
                  f"v_add_f32 {v(r)}, {f2u(1e-5):#x}, {v(r)}",
                  f"v_cvt_pk_bf16_f32 {v(r)}, {v(r)}, {v(r)}",
                  f"v_and_b32 {v(r)}, 0xffff0000, {v(r)}",
                  f"v_sqrt_f32 {v(r)}, {v(r)}",
                  f"v_cvt_pk_bf16_f32 {v(r)}, {v(r)}, {v(r)}",
                  f"v_and_b32 {v(r)}, 0xffff0000, {v(r)}",
                  f"v_rcp_f32 {v(r)}, {v(r)}"]
        for j in range(8):
            t = TMP + 8*(k % 2); k += 1
            for d in range(4):
                x = XRAW + 32*st + 4*j + d
                a(f"v_dot2_f32_bf16 {v(t+2*d)}, {v(x)}, {s(sLO)}, {v(S1+st)} neg_lo:[0,0,1]")
                a(f"v_dot2_f32_bf16 {v(t+2*d+1)}, {v(x)}, {s(sHI)}, {v(S1+st)} neg_lo:[0,0,1]")
            a(rs_ops[j])
            for d in range(4):
                x = XRAW + 32*st + 4*j + d
                a(f"v_cvt_pk_bf16_f32 {v(x)}, {v(t+2*d)}, {v(t+2*d+1)}")
            a(f"ds_write_b128 {v(vXW)}, {v(XRAW+32*st+4*j,4)} offset:{128*j + st*8*XN_STRIDE}")
        a(f"ds_write_b32 {v(vRSW)}, {v(84+st)} offset:{SY_RS + 32*st}")
    lds_inc(a, vSY, SY_LN, vONE)
    stamp(a, 2)
    lds_wait2(a, "A_ln", vSY, SY_LN, 7, 96, 0)
    stamp(a, 3)
    ACC, WF, XF = 64, 16, 40
    LA = 4
    a(f"ds_read_b32 v12, {v(vRSR)} offset:{SY_RS}")
    def rd(st):
        a(f"ds_read_b64_tr_b16 {v(WF+4*(st%6),2)}, {v(vTR)} offset:{2048*st}")
        a(f"ds_read_b64_tr_b16 {v(WF+4*(st%6)+2,2)}, {v(vTR)} offset:{2048*st+512}")
        a(f"ds_read_b128 {v(XF+4*(st%6),4)}, {v(vXR)} offset:{32*st}")
    for st in range(LA): rd(st)
    for st in range(32):
        if st + LA < 32: rd(st + LA)
        a(f"s_waitcnt lgkmcnt({3*min(LA, 31-st)})")
        c = "0" if st == 0 else v(ACC, 16)
        a(f"v_mfma_f32_32x32x16_bf16 {v(ACC,16)}, {v(WF+4*(st%6),4)}, {v(XF+4*(st%6),4)}, {c}")
    a(f"v_mul_f32 v12, {CSCALE:#x}, v12")
    a.nop(11)
    for hh in range(2):
        d = 16 + 4*hh
        for i in range(4):
            r = ACC + 8*hh + 2*i
            a(f"v_pk_mul_f32 {v(r,2)}, {v(r,2)}, v[12:13] op_sel_hi:[1,0]")
        for i in range(4):
            r = ACC + 8*hh + 2*i
            a(f"v_cvt_pk_bf16_f32 {v(d+i)}, {v(r)}, {v(r+1)}")
        a(f"ds_write_b128 {v(vQT)}, {v(d,4)} offset:{2048*hh}")
    lds_inc(a, vSY, SY_QCNT, vONE)
    stamp(a, 4)
    lds_wait2(a, "A_kv", vSY, SY_KVRDY, 5, 96, ASL)
    stamp(a, 6)
    a(f"s_setprio 3")
    vm.drained()
    def ldK(t, tag):
        vm.issue(tag, f"buffer_load_dwordx4 {v(kreg(t),4)}, {v(vKR)}, {s(rWS,4)}, {s(sKB+t//4)} offen offset:{(t%4)*1024} sc1")
    def dmaK(t, tag):
        a(f"s_add_u32 m0, {s(sKD)}, {kslot(t)}")
        a(f"s_nop 0")
        vm.issue(tag, f"buffer_load_dwordx4 {v(vKR)}, {s(rWS,4)}, {s(sKB+t//4)} offen sc1 lds")
    def group(t):
        tag = ("g", t)
        if t == 9: dmaK(0, tag)
        if t + 2 in rot: dmaK(t + 2, tag)
        if t + 1 in res and t + 1 > 2: ldK(t + 1, tag)
        if VFULL:
            vm.issue(tag, f"buffer_load_dwordx4 {v(VR+8*t,4)}, {v(vQV)}, {s(rWS,4)}, {s(sVB+t//4)} offen offset:{(t%4)*1024} sc1")
            return
        a(f"s_mov_b64 exec, {s(sMASK,2)}")
        for t2 in range(2):
            vm.issue(tag, f"buffer_load_dwordx4 {v(VR+8*t+4*t2,4)}, {v(vQV)}, {s(rWS,4)}, {s(sVB+t//4)} offen offset:{(t%4)*1024+t2*512} sc1")
        a(f"s_mov_b64 exec, -1")
    QA, QB = kreg(14), kreg(15)
    assert DPRE <= 10 and DP0 <= DPRE
    ldK(1, "k12"); ldK(2, "k12"); ldK(0, "k0")
    a(f"ds_read_b128 {v(QA,4)}, {v(vQO)} offset:{L_QT - L_QO}")
    a(f"ds_read_b128 {v(QB,4)}, {v(vQO)} offset:{L_QT - L_QO + 1024}")
    a(f"ds_read_b128 {v(Q,4)}, {v(vQ0)}")
    a(f"ds_write_b32 {v(vZA)}, v1")
    for t in range(DP0): group(t)
    stamp(a, 7)
    rest = list(range(DP0, DPRE))
    vm.wait("k12", " lgkmcnt(2)")
    a(f"v_mfma_f32_32x32x16_bf16 {v(S0,16)}, {v(kreg(1),4)}, {v(QA,4)}, 0")
    a(f"v_mfma_f32_32x32x16_bf16 {v(C,16)}, {v(kreg(1),4)}, {v(QB,4)}, 0")
    a(f"v_mfma_f32_32x32x16_bf16 {v(S1_,16)}, {v(kreg(2),4)}, {v(QA,4)}, 0")
    a(f"v_mfma_f32_32x32x16_bf16 {v(O,16)}, {v(kreg(2),4)}, {v(QB,4)}, 0")
    if rest: group(rest.pop(0))
    a.nop(9)
    for i in range(0, 30, 2):
        for base in (S0, C):
            a(f"v_max3_f32 {v(base)}, {v(base)}, {v(base+i+1)}, {v(base+i+2)}")
    for base in (S0, C): a(f"v_max_f32 {v(base)}, {v(base)}, {v(base+31)}")
    for base in (S0, C): a(f"v_mov_b32 {v(base+1)}, {v(base)}")
    a(f"s_nop 0")
    for base in (S0, C): a(f"v_permlane32_swap_b32 {v(base)}, {v(base+1)}")
    a(f"v_mfma_f32_32x32x8_bf16 {v(O,16)}, v[0:1], {v(vIDX,2)}, 0")
    for base in (S0, C): a(f"v_max_f32 {v(base)}, {v(base)}, {v(base+1)}")
    for base in (S0, C): a(f"v_sub_f32 {v(base)}, {f2u(-BIAS):#x}, {v(base)}")
    for i in range(1, 4):
        for base in (S0, C): a(f"v_mov_b32 {v(base+i)}, {v(base)}")
    a(f"ds_write_b128 {v(vCW)}, {v(S0,4)}")
    a(f"ds_write_b128 {v(vCW)}, {v(C,4)} offset:512")
    a(f"ds_write_b32 {v(vCF)}, {v(vONE)} offset:{SY_CF}")
    while rest: group(rest.pop(0))
    spin_begin(a, "A_c")
    a(f"ds_read_b32 {v(S0)}, {v(vCP)} offset:{SY_CF}")
    for i in range(4): a(f"ds_read_b128 {v(C+4*i,4)}, {v(vCA)}")
    a(f"s_waitcnt lgkmcnt(0)")
    a(f"v_cmp_eq_u32 vcc, 0, {v(S0)}")
    a(f"s_nop 0")
    a(f"s_cbranch_vccz A_c_ok")
    spin_retry(a, "A_c", 0)
    stamp(a, 9)
    def PV(t, half):
        sb = (S0 if t % 2 == 0 else S1_) + 8*half
        a(f"v_smfmac_f32_32x32x32_bf16 {v(O,16)}, {v(VR+8*t+4*half,4)}, {v(sb,8)}, {v(vIDX)}")
    def QK(t):
        sb = S0 if t % 2 == 0 else S1_
        a(f"v_mfma_f32_32x32x16_bf16 {v(sb,16)}, {v(kreg(t),4)}, {v(Q,4)}, {v(C,16)}")
    def rdK(t): a(f"ds_read_b128 {v(KROT,4)}, {v(vKR)} offset:{kslot(t)}")
    def rdQC(p):
        a(f"ds_read_b128 {v(Q,4)}, {v(vQV)} offset:{1024*p}")
        for i in range(4): a(f"ds_read_b128 {v(C+4*i,4)}, {v(vCA)} offset:{512*p}")
    def flush(p):
        r, o = (vQO, 8192*p) if p < 7 else (vKR, 0)
        a(f"ds_write_b128 {v(r)}, {v(O,4)} offset:{o}")
        a(f"ds_write_b128 {v(r)}, {v(O+4,4)} offset:{o+1024}")
        a(f"ds_write_addtid_b32 {v(O+8)} offset:{TID_OFF + 1024*p}")
    vm.wait("k0")
    a(f"s_setprio {APRIO}")
    QK(0)
    a.nop(12)
    for t in range(16):
        cur = S0 if t % 2 == 0 else S1_
        E = lambda i: a(f"v_exp_f32 {v(cur+i)}, {v(cur+i)}")
        if t == 0: stamp(a, 1)
        if t == 4: stamp(a, 2)
        if t == 8: stamp(a, 5)
        if t == 12: stamp(a, 8)
        E(0); E(1)
        if t > 0: PV(t-1, 1)
        if t + DPRE < 16: group(t + DPRE)
        if t == 16 - DPRE:
            a(f"s_sub_u32 s6, {L_QT}, {s(sKD)}")
            a(f"v_add_u32 {v(vQV)}, s6, {v(vKR)}")
            a(f"s_lshl_b32 s6, {s(sW)}, 8")
            a(f"s_add_u32 m0, s6, {L_L - TID_OFF}")
        E(2); E(3); E(4)
        nt = (t + 1) % 16
        vm.wait(("g", t), " lgkmcnt(0)" if nt in rot else "")
        QK(nt)
        if (t + 2) % 16 in rot: rdK((t + 2) % 16)
        if t == 15: rdK(4)
        for i in range(5, 10):
            if VFULL and i < 7:
                for q in range(2): a(f"v_permlane16_swap_b32 {v(VR+8*t+2*(i-5)+q)}, {v(VR+8*t+4+2*(i-5)+q)}")
            E(i)
        PV(t, 0)
        if t == 14: rdQC(1)
        for i in range(10, 16): E(i)
    stamp(a, 10)
    if PROF: a(f"s_memtime {s(70+2*12,2)}")
    for p in range(1, 8):
      for t in range(16):
        cur = S0 if t % 2 == 0 else S1_
        E = lambda i: a(f"v_exp_f32 {v(cur+i)}, {v(cur+i)}")
        nt = (t + 1) % 16
        if t == 0:
            E(0); E(1); PV(15, 1); E(2); E(3); E(4); QK(1)
            for i in range(5, 13):
                E(i)
                if p == 6 and i == 6: a(f"v_readfirstlane_b32 s6, {v(vIDX+1)}")
                if p == 6 and i == 8: a(f"s_cmp_lt_u32 s6, 4")
                if p == 6 and i == 8: a(f"s_cbranch_scc1 A_chk")
                if p == 6 and i == 8: a.label("A_back")
                if p == 6 and i == 9: a(f"v_mov_b32 {v(vIDX+1)}, {v(vIDX)}")
            flush(p - 1)
            a(f"v_mfma_f32_32x32x8_bf16 {v(O,16)}, v[0:1], {v(vIDX,2)}, 0")
            E(13); E(14); E(15)
            PV(0, 0)
            continue
        last = p == 7 and t == 15
        p1 = max(P1, 3) if t == 1 else P1
        pq = max(PQ, p1)
        for i in range(16 + 1):
            if i == p1: PV(t-1, 1)
            if i == pq and not last:
                if nt in rot: a(f"s_waitcnt lgkmcnt(0)")
                QK(nt)
                if nt in rot and not (p == 7 and nt == 12): rdK((nt + 4) % 16)
            if i == P0: PV(t, 0)
            if i == 10 and t == 14 and p < 7:
                rdQC(p + 1)
                if p == 5: a(f"ds_read_b32 {v(vIDX+1)}, {v(vCA)} offset:{L_SY + SY_XFREE - L_C}")
            if i < 16: E(i)
    if PROF: a(f"s_memtime {s(70+2*13,2)}")
    stamp(a, 14)
    a(f"s_nop 1")
    PV(15, 1)
    a.nop(12)
    flush(7)
    endpgm(a, 11)
    a.label("A_chk")
    lds_wait(a, "A_x", vCA, L_SY + SY_XFREE - L_C, 4, vIDX+1)
    a(f"s_branch A_back")

def setup_u(a, vU=4, vONE=3):
    a(f"v_lshrrev_b32 v8, 3, v1")
    a(f"v_and_b32 v9, 7, v1")
    a(f"v_lshrrev_b32 v10, 2, v1")
    a(f"v_and_b32 v10, 4, v10")
    a(f"v_xor_b32 v10, v9, v10")
    a(f"v_lshlrev_b32 {v(vU)}, 10, v8")
    a(f"v_lshl_add_u32 {v(vU)}, v10, 4, {v(vU)}")
    a(f"s_lshl_b32 s6, {s(sG)}, 7")
    a(f"v_add_u32 {v(vU)}, s6, {v(vU)}")
    a(f"v_mov_b32 {v(vONE)}, 1")

def gen_g(a):
    vm = VM(a)
    ids(a)
    a(f"s_sub_u32 {s(sJ)}, {s(sW)}, 4")
    vSY, vONE, vU = 2, 3, 4
    a(f"v_mov_b32 {v(vSY)}, {L_SY}")
    a(f"v_lshl_add_u32 v12, v1, 2, {v(vSY)}")
    a(f"v_mov_b32 v13, 0")
    a(f"ds_write_b32 v12, v13")
    setup_u(a)
    sP, sWo, sRho, sW0 = T+1, T+2, T+3, T+4
    vW1, vBW, vT0, vT1, vXR, vX0 = 5, 6, 7, 11, 12, 48
    ACC, AF, XF, ST = 64, 16, 32, 128
    a(f"s_mul_i32 {s(sP)}, {s(sG)}, 3")
    a(f"s_cmp_eq_u32 {s(sG)}, 7")
    a(f"s_cselect_b32 {s(sP)}, 20, {s(sP)}")
    a(f"s_add_u32 {s(sP)}, {s(sP)}, {s(sJ)}")
    a(f"s_movk_i32 s6, 2752")
    a(f"v_lshlrev_b32 v13, 4, v9")
    a(f"v_mad_u32_u24 {v(vW1)}, v8, s6, v13")
    a(f"s_lshl_b32 {s(sW0)}, {s(sP)}, 7")
    a(f"s_and_b32 {s(sRho)}, {s(sB)}, {W1ROT}")
    a(f"s_lshl_b32 {s(T+6)}, {s(sRho)}, 13")
    a(f"s_lshl_b32 {s(T+7)}, {s(sJ)}, 10")
    args_ready(a)
    srd(a, rWA, sPWQ, 524288)
    srd(a, rWB, sPW1, 1409024)
    a(f"s_lshr_b32 s6, {s(sG)}, 1")
    a(f"s_add_u32 s6, s6, {s(sJ)}")
    a(f"s_cmp_eq_u32 s6, 5")
    a(f"s_cselect_b32 {s(rWB+2)}, 0, {s(rWB+2)}")
    a(f"s_cselect_b32 {s(T+8)}, 1, 0")
    R = W1D
    assert R % 2 == 0 and 4 <= R <= 32
    def ldw(u):
        if u % 8 == 0:
            a(f"s_xor_b32 s6, {s(sRho)}, {u//8}")
            a(f"s_mul_i32 s6, s6, {64*2752}")
            a(f"s_add_u32 {s(sWo)}, {s(sW0)}, s6")
        if not (DBG & 2): vm.issue(("w1", u), f"buffer_load_dwordx4 {v(ST+4*(u%R),4)}, {v(vW1)}, {s(rWB,4)}, {s(sWo)} offen")
        if u % 8 != 7: a(f"s_add_u32 {s(sWo)}, {s(sWo)}, {8*2752}")
    for i in range(22):
        if i == W1POS:
            for u in range(W1F): ldw(u)
        if i == 21: a(f"s_mov_b32 {s(T+7)}, {63*1024}")
        a(f"s_xor_b32 s6, {s(T+7)}, {s(T+6)}")
        a(f"s_add_u32 m0, s6, {L_R2}")
        a(f"s_lshl_b32 s6, s6, 3")
        vm.issue("wq", f"buffer_load_dwordx4 {v(vU)}, {s(rWA,4)}, s6 offen lds")
        if i < 20: a(f"s_add_u32 {s(T+7)}, {s(T+7)}, 3072")
    srd(a, rWS, sPWS, WS_SIZE)
    a(f"s_cmp_eq_u32 {s(T+8)}, 1")
    a(f"s_cbranch_scc1 G_idle")
    for u in range(W1F if W1POS < 22 else 0, R): ldw(u)
    a(f"s_lshl_b32 s6, {s(sJ)}, 12")
    a(f"s_add_u32 s6, s6, {L_BNC}")
    a(f"v_lshlrev_b32 {v(vBW)}, 7, v8")
    a(f"v_lshl_add_u32 {v(vBW)}, v10, 4, {v(vBW)}")
    a(f"v_add_u32 {v(vBW)}, s6, {v(vBW)}")
    a(f"v_lshrrev_b32 v13, 5, v1")
    a(f"v_bfe_u32 v14, v1, 2, 2")
    a(f"v_lshlrev_b32 {v(vT0)}, 10, v13")
    a(f"v_lshl_add_u32 {v(vT0)}, v14, 7, {v(vT0)}")
    a(f"v_bfe_u32 v15, v1, 4, 1")
    a(f"v_lshl_add_u32 {v(vT0)}, v15, 5, {v(vT0)}")
    a(f"v_and_b32 v15, 3, v1")
    a(f"v_lshl_add_u32 {v(vT0)}, v15, 3, {v(vT0)}")
    a(f"v_lshrrev_b32 v14, 1, v14")
    a(f"v_lshl_add_u32 {v(vT0)}, v14, 6, {v(vT0)}")
    a(f"v_xor_b32 {v(vT1)}, 64, {v(vT0)}")
    a(f"v_add_u32 {v(vT0)}, s6, {v(vT0)}")
    a(f"v_add_u32 {v(vT1)}, s6, {v(vT1)}")
    a(f"v_and_b32 v14, 31, v1")
    a(f"v_mul_u32_u24 {v(vXR)}, {XN_STRIDE}, v14")
    a(f"v_lshl_add_u32 {v(vXR)}, v13, 4, {v(vXR)}")
    for q in range(8):
        a(f"s_xor_b32 s6, {s(sRho)}, {q}")
        a(f"s_lshl_b32 s6, s6, 7")
        a(f"v_add_u32 {v(vX0+q)}, s6, {v(vXR)}")
    for i in range(4): a(f"v_mov_b32 {v(56+i)}, -1")
    a(f"v_lshlrev_b32 v60, 4, v1")
    a(f"s_lshl1_add_u32 {s(T+5)}, {s(sC)}, {s(sJ)}")
    a(f"s_lshl_b32 {s(T+5)}, {s(T+5)}, 12")
    a(f"s_add_u32 {s(T+5)}, {s(T+5)}, {OF}")
    def wr1(u):
        if not (DBG & 1): vm.wait(("w1", u))
        a(f"ds_write_b128 {v(vBW)}, {v(ST+4*(u%R),4)} offset:{(u%4)*1024}")
    def trd(st, ct):
        b = AF + 8*(st % 2) + 4*ct; o = (st % 2)*2048
        a(f"ds_read_b64_tr_b16 {v(b,2)}, {v(vT1 if ct else vT0)} offset:{o}")
        a(f"ds_read_b64_tr_b16 {v(b+2,2)}, {v(vT1 if ct else vT0)} offset:{o+512}")
    def xrd(st, rt):
        a(f"ds_read_b128 {v(XF+8*(st%2)+4*rt,4)}, {v(vX0+st//4)} offset:{32*(st%4) + rt*32*XN_STRIDE}")
    vm.wait("wq")
    lds_inc(a, vSY, SY_WQ, vONE)
    for u in range(4): wr1(u)
    trd(0, 0); trd(0, 1)
    a(f"s_waitcnt lgkmcnt(0)")
    for u in range(R, R + 4): ldw(u)
    fix_tag(a)
    stamp(a, 1)
    lds_wait(a, "G_ln", vSY, SY_LN, 4, 61, 1)
    stamp(a, 2)
    if F1PRIO: a(f"s_setprio {F1PRIO}")
    xrd(0, 0); xrd(0, 1)
    for st in range(32):
        a(f"s_waitcnt lgkmcnt({2 if 0 < st < 31 else 0})")
        if st == 10: stamp(a, 13)
        if st == 20: stamp(a, 14)
        k = 0
        for ct in range(2):
            for rt in range(2):
                acc = ACC + 32*ct + 16*rt
                c = "0" if st == 0 else v(acc, 16)
                a(f"v_mfma_f32_32x32x16_bf16 {v(acc,16)}, {v(AF+8*(st%2)+4*ct,4)}, {v(XF+8*(st%2)+4*rt,4)}, {c}")
                if k < 2 and st + 1 < 32:
                    trd(st + 1, k); xrd(st + 1, k)
                if k >= 2 and st + 2 < 32:
                    u = 2*(st+2) + k - 2
                    wr1(u)
                    if u + R < 64: ldw(u + R)
                k += 1
    stamp(a, 3)
    a(f"s_setprio {GHI}")
    lds_inc(a, vSY, SY_XFREE, vONE)
    a(f"s_cmp_eq_u32 {s(sJ)}, 2")
    a(f"s_cbranch_scc1 G_nop")
    for p in range(4):
        a(f"buffer_store_dwordx4 v[56:59], v60, {s(rWS,4)}, {s(T+5)} offen offset:{p*1024} sc1")
    a.label("G_nop")
    a(f"v_lshlrev_b32 v8, 4, v1")
    a(f"s_mul_i32 s6, {s(sB)}, {2*HSTR}")
    a(f"s_lshl2_add_u32 s6, {s(sP)}, s6")
    a(f"s_lshl_b32 s6, s6, 10")
    a(f"s_add_u32 s6, s6, {HF}")
    a(f"s_add_u32 s7, s6, {HSTR*1024}")
    k = 0
    for ct in range(2):
        for rt in range(2):
            for hh in range(2):
                d = ST + 4*k; k += 1
                for i in range(4):
                    r = ACC + 32*ct + 16*rt + 8*hh + 2*i
                    a(f"v_cvt_pk_bf16_f32 {v(d+i)}, {v(r)}, {v(r+1)}")
                for i in range(4):
                    a(f"v_pk_max_i16 {v(d+i)}, {v(d+i)}, 0")
                a(f"buffer_store_dwordx4 {v(d,4)}, v8, {s(rWS,4)}, s{6+rt} offen offset:{1024*(2*ct+hh)} sc1")
    a.label("G_hpub")
    publish(a, "G_pubh", vSY, SY_HCNT, 2, vONE, 16, FL_H)
    stamp(a, 4)
    a.label("G_ffn2")
    if DBG & 4: a(f"s_branch G_end")
    a(f"s_setprio {GHI}")
    vm.drained()
    sStg, sWo, sHo, sCT, sRT, sXO, sWj, sHb = T, T+2, T+3, T+4, T+5, T+6, T+7, T+9
    vA1, vB0, vB1, vT0, vT1, vXO, vL16, vTW = 5, 6, 7, 11, 12, 10, 13, 14
    ACC, AF, XD, XU = 64, 16, 144, 128
    BFS = [32, 40, 48, 56, 128, 136]
    WFR = lambda hh, g2: (160 + 32*hh if hh < 3 else 128) + 4*g2
    assert FD <= 6
    a(f"s_lshl_b32 {s(sWj)}, {s(sJ)}, 14")
    a(f"s_mul_i32 {s(sStg)}, {s(sJ)}, 12288")
    a(f"s_add_u32 {s(sStg)}, {s(sStg)}, {L_STG}")
    srd(a, rWA, sPW2, 1409024)
    srd(a, rX, sPX, 2097152)
    srd(a, rOUT, sPOUT, 2097152)
    a(f"v_add_u32 {v(vA1)}, {8192-1024}, {v(vU)}")
    N = 22
    if F2ROT:
        a(f"s_lshl1_add_u32 s6, {s(sG)}, {s(sB)}")
        a(f"s_and_b32 s6, s6, 7")
        a(f"s_mul_i32 s6, s6, 11")
        a(f"s_lshr_b32 s6, s6, 2")
    else:
        a(f"s_mov_b32 s6, 0")
    a(f"s_lshl_b32 {s(sHo)}, s6, 12")
    a(f"s_lshl_b32 {s(sWo)}, s6, 16")
    a(f"s_add_u32 {s(sWo)}, {s(sWo)}, {s(sWj)}")
    def issueW(i):
        a(f"s_add_u32 m0, {s(sStg)}, {(i % FD)*2048}")
        a(f"s_nop 0")
        vm.issue(("f", i), f"buffer_load_dwordx4 {v(vU)}, {s(rWA,4)}, {s(sWo)} offen lds")
        vm.issue(("f", i), f"buffer_load_dwordx4 {v(vA1)}, {s(rWA,4)}, {s(sWo)} offen offset:1024 lds")
        a(f"s_add_u32 {s(sWo)}, {s(sWo)}, {4*16384}")
        a(f"s_cmp_ge_u32 {s(sWo)}, {N*65536}")
        a(f"s_cselect_b32 {s(sWo)}, {s(sWj)}, {s(sWo)}")
    def issueH(i):
        vm.issue(("f", i), f"buffer_load_dwordx4 {v(BFS[i%FD],4)}, {v(vB0)}, {s(rWS,4)}, {s(sHo)} offen sc1")
        vm.issue(("f", i), f"buffer_load_dwordx4 {v(BFS[i%FD]+4,4)}, {v(vB1)}, {s(rWS,4)}, {s(sHo)} offen sc1")
        a(f"s_add_u32 {s(sHo)}, {s(sHo)}, 4096")
        a(f"s_cmp_ge_u32 {s(sHo)}, {N*4096}")
        a(f"s_cselect_b32 {s(sHo)}, 0, {s(sHo)}")
    a(f"s_and_b32 {s(sCT)}, {s(sJ)}, 1")
    a(f"s_lshr_b32 {s(sRT)}, {s(sJ)}, 1")
    a(f"v_and_b32 v8, 31, v1")
    a(f"v_lshrrev_b32 v9, 5, v1")
    a(f"v_lshlrev_b32 {v(vXO)}, 10, v8")
    a(f"v_lshl_add_u32 {v(vXO)}, v9, 5, {v(vXO)}")
    a(f"s_lshl_b32 s6, {s(sB)}, 16")
    a(f"s_lshl_b32 s7, {s(sRT)}, 15")
    a(f"s_add_u32 {s(sXO)}, s6, s7")
    a(f"s_lshl_b32 s6, {s(sG)}, 7")
    a(f"s_lshl_b32 s7, {s(sCT)}, 6")
    a(f"s_add_u32 s6, s6, s7")
    a(f"s_add_u32 {s(sXO)}, {s(sXO)}, s6")
    for q in range(2):
        vm.issue("xd", f"buffer_load_dwordx4 {v(XD+4*q,4)}, {v(vXO)}, {s(rX,4)}, {s(sXO)} offen offset:{16*q}")
    a(f"v_lshlrev_b32 {v(vL16)}, 4, v1")
    a(f"s_mul_i32 {s(sHb)}, {s(sB)}, {2*HSTR*1024}")
    a(f"s_lshl_b32 s6, {s(sJ)}, 10")
    a(f"s_add_u32 {s(sHb)}, {s(sHb)}, s6")
    a(f"s_add_u32 {s(sHb)}, {s(sHb)}, {HF}")
    a(f"s_mul_i32 s6, {s(sRT)}, {HSTR*1024}")
    a(f"s_add_u32 s7, s6, {s(sHb)}")
    a(f"v_add_u32 {v(vB0)}, s7, {v(vL16)}")
    a(f"s_sub_u32 s6, {HSTR*1024}, s6")
    a(f"s_add_u32 s7, s6, {s(sHb)}")
    a(f"v_add_u32 {v(vB1)}, s7, {v(vL16)}")
    a(f"v_bfe_u32 v16, v1, 2, 2")
    a(f"v_lshl_add_u32 {v(vTW)}, v9, 2, v16")
    a(f"v_lshlrev_b32 {v(vTW)}, 7, {v(vTW)}")
    a(f"v_bfe_u32 v15, v1, 4, 1")
    a(f"v_lshl_add_u32 {v(vTW)}, v15, 4, {v(vTW)}")
    a(f"v_and_b32 v15, 1, v1")
    a(f"v_lshl_add_u32 {v(vTW)}, v15, 5, {v(vTW)}")
    a(f"v_bfe_u32 v15, v1, 1, 1")
    a(f"v_lshl_add_u32 {v(vTW)}, v15, 3, {v(vTW)}")
    a(f"v_lshrrev_b32 v16, 1, v16")
    a(f"v_xor_b32 v16, {s(sCT)}, v16")
    a(f"v_lshl_add_u32 {v(vTW)}, v16, 6, {v(vTW)}")
    assert L_STG == 0
    a(f"v_xor_b32 {v(vT1)}, 64, {v(vTW)}")
    a(f"v_add_u32 {v(vT0)}, {s(sStg)}, {v(vTW)}")
    a(f"v_add_u32 {v(vT1)}, {s(sStg)}, {v(vT1)}")
    a(f"v_and_b32 v16, 3, v1")
    a(f"v_lshl_add_u32 v16, v16, 2, {v(vSY)}")
    spin_begin(a, "G_cf")
    a(f"ds_read_b32 v17, v16 offset:{SY_CF}")
    a(f"s_waitcnt lgkmcnt(0)")
    a(f"v_cmp_eq_u32 vcc, 0, v17")
    a(f"s_nop 0")
    a(f"s_cbranch_vccz G_cf_ok")
    spin_retry(a, "G_cf", 2)
    lds_wait(a, "G_wo", vSY, SY_WO, 1, 16, 1)
    def wread(hh):
        for g2 in range(8):
            o = 16384*hh + 2048*g2
            a(f"ds_read_b64_tr_b16 {v(WFR(hh,g2),2)}, {v(vTW)} offset:{o}")
            a(f"ds_read_b64_tr_b16 {v(WFR(hh,g2)+2,2)}, {v(vTW)} offset:{o+1024}")
            if g2 % 4 == 3: a(f"s_waitcnt lgkmcnt(4)")
    for hh in range(3): wread(hh)
    a(f"s_waitcnt vmcnt(0) lgkmcnt(0)")
    lds_inc(a, vSY, SY_RED2, vONE)
    a(f"v_and_b32 v15, 7, v1")
    a(f"v_lshlrev_b32 v15, 3, v15")
    lds_wait(a, "G_r2", vSY, SY_RED2, 4, 16)
    stamp(a, 8)
    for i in range(FD - 1): issueW(i)
    a(f"s_lshl_b32 s7, {s(sB)}, 7")
    a(f"s_add_u32 s7, s7, {FL_H}")
    spin_begin(a, "G_h")
    a(f"buffer_load_dwordx2 v[16:17], v15, {s(rWS,4)}, s7 offen sc1")
    a(f"s_waitcnt vmcnt(0)")
    a(f"v_cmp_ne_u64 vcc, {s(sTAG,2)}, v[16:17]")
    a(f"s_nop 0")
    a(f"s_cbranch_vccz G_h_ok")
    spin_retry(a, "G_h", 4)
    stamp(a, 5)
    vm.drained()
    for i in range(FD - 1): issueH(i)
    def aread(i, ct):
        base = AF + 8*(i % 2) + 4*ct; o = (i % FD)*2048
        a(f"ds_read_b64_tr_b16 {v(base,2)}, {v(vT1 if ct else vT0)} offset:{o}")
        a(f"ds_read_b64_tr_b16 {v(base+2,2)}, {v(vT1 if ct else vT0)} offset:{o+1024}")
    vm.wait(("f", 0))
    aread(0, 1); aread(0, 0)
    a(f"s_setprio {GLO}")
    for i in range(N):
        a(f"s_waitcnt lgkmcnt(0)")
        k = 0
        for rt in (1, 0):
            for ct in (1, 0):
                acc = ACC + 16*(2*rt + ct)
                c = "0" if i == 0 else v(acc, 16)
                a(f"v_mfma_f32_32x32x16_bf16 {v(acc,16)}, {v(AF+8*(i%2)+4*ct,4)}, {v(BFS[i%FD]+4*rt,4)}, {c}")
                if k == 0 and i + 1 < N:
                    vm.wait(("f", i + 1)); aread(i + 1, 1)
                if k == 1 and i + 1 < N: aread(i + 1, 0)
                if k == 2 and i + FD - 1 < N: issueW(i + FD - 1)
                if k == 3 and i + FD - 1 < N: issueH(i + FD - 1)
                k += 1
    stamp(a, 6)
    a(f"s_setprio {GHI}")
    vm.drained()
    vOR, vLR, vFL, vFG = 5, 6, 7, 15
    OB, RT_, LV = 80, 16, 48
    vSK, vRS = 152, 156
    sOP, sOC, sLIM, sPHS = T+1, T+3, T+4, T+8
    a(f"v_add_u32 {v(vSK)}, {s(sStg)}, {v(vL16)}")
    for lam in range(1, 4):
        a(f"s_xor_b32 s6, {s(sJ)}, {lam}")
        a(f"s_mul_i32 s6, s6, 12288")
        a(f"v_add_u32 {v(vSK+lam)}, s6, {v(vL16)}")
    a(f"s_lshl_b32 s6, {s(sRT)}, 7")
    a(f"v_lshl_add_u32 {v(vRS)}, v8, 2, {v(vSY)}")
    a(f"v_add_u32 {v(vRS)}, s6, {v(vRS)}")
    a(f"s_lshl_b32 s6, {s(sJ)}, 13")
    a(f"s_add_u32 s6, s6, {L_QO}")
    a(f"v_add_u32 {v(vOR)}, s6, {v(vL16)}")
    for lam in (3, 2, 1):
        for q in range(4):
            a(f"ds_write_b128 {v(vSK)}, {v(ACC+16*lam+4*q,4)} offset:{(lam-1)*4096 + q*1024}")
    lds_inc(a, vSY, SY_RED1, vONE)
    a(f"ds_read_b32 {v(vRS)}, {v(vRS)} offset:{SY_RS}")
    a(f"s_lshl_b32 s6, {s(sJ)}, 10")
    a(f"s_add_u32 s7, s6, {L_L}")
    a(f"v_lshlrev_b32 {v(vLR)}, 2, v8")
    a(f"v_add_u32 {v(vLR)}, s7, {v(vLR)}")
    a(f"v_and_b32 {v(vFG)}, 3, v1")
    a(f"v_lshlrev_b32 {v(vFG)}, 8, {v(vFG)}")
    a(f"v_add_u32 {v(vFL)}, s7, {v(vFG)}")
    a(f"s_lshl_b32 s7, {s(sRT)}, 10")
    a(f"s_add_u32 {s(sOC)}, s7, {L_L}")
    a(f"v_add_u32 {v(vFG)}, {s(sOC)}, {v(vFG)}")
    a(f"s_lshl_b32 {s(sOP)}, {s(sC)}, 13")
    a(f"s_add_u32 {s(sOP)}, {s(sOP)}, s6")
    a(f"s_add_u32 {s(sOP)}, {s(sOP)}, {OF}")
    a(f"s_lshl_b32 {s(sOC)}, {s(sB)}, 16")
    a(f"s_add_u32 {s(sOC)}, {s(sOC)}, s7")
    a(f"s_add_u32 {s(sOC)}, {s(sOC)}, {OF}")
    a(f"s_mov_b32 {s(sLIM)}, {f2u(2.0**120):#x}")
    def red(k):
        spin_begin(a, f"G_o{k}")
        a(f"ds_read_b32 {v(LV+4)}, {v(vFL)} offset:{4096*k + 128}")
        a(f"s_waitcnt lgkmcnt(0)")
        a(f"v_cmp_eq_u32 vcc, 0, {v(LV+4)}")
        a(f"s_nop 0")
        a(f"s_cbranch_vccz G_o{k}_ok")
        spin_retry(a, f"G_o{k}", RSL if k else 2)
        a(f"ds_read2st64_b32 {v(LV,2)}, {v(vLR)} offset0:{16*k} offset1:{16*k+1}")
        a(f"ds_read2st64_b32 {v(LV+2,2)}, {v(vLR)} offset0:{16*k+2} offset1:{16*k+3}")
        for w in range(4):
            for hf in range(2):
                a(f"ds_read_b128 {v(RT_+8*w+4*hf,4)}, {v(vOR)} offset:{2048*w + 1024*hf}")
        if k == 0:
            a(f"s_cmp_eq_u32 {s(sJ)}, 3")
            a(f"s_mov_b32 s6, 32768")
            a(f"s_cselect_b32 s6, {(L_KROT - L_QO - 3*8192) & 0xffffffff}, s6")
            a(f"v_add_u32 {v(vOR)}, s6, {v(vOR)}")
        a(f"s_add_u32 {s(sPHS)}, {s(sJ)}, {4*k}")
        a(f"s_waitcnt lgkmcnt(8)")
        a(f"v_pk_add_f32 {v(LV,2)}, {v(LV,2)}, {v(LV+2,2)}")
        a(f"s_waitcnt lgkmcnt(4)")
        a(f"v_add_f32 {v(LV)}, {v(LV)}, {v(LV+1)}")
        for i in range(4): a(f"v_pk_add_f32 {v(RT_+2*i,2)}, {v(RT_+2*i,2)}, {v(RT_+8+2*i,2)}")
        a(f"v_rcp_f32 {v(LV+2)}, {v(LV)}")
        a(f"s_waitcnt lgkmcnt(0)")
        for i in range(4): a(f"v_pk_add_f32 {v(RT_+16+2*i,2)}, {v(RT_+16+2*i,2)}, {v(RT_+24+2*i,2)}")
        for i in range(4): a(f"v_pk_add_f32 {v(RT_+2*i,2)}, {v(RT_+2*i,2)}, {v(RT_+16+2*i,2)}")
        for i in range(4): a(f"v_maximum3_f32 {v(LV)}, |{v(RT_+2*i)}|, |{v(RT_+2*i+1)}|, {v(LV)}")
        a(f"v_cmp_ngt_f32 vcc, {s(sLIM)}, {v(LV)}")
        a(f"s_nop 0")
        if FORCE_FB: a(f"s_bitcmp1_b32 {s(sJ)}, 0"); a(f"s_cbranch_scc1 G_fb")
        a(f"s_cbranch_vccnz G_fb")
        a.label(f"G_ret{k}")
        for i in range(4): a(f"v_pk_mul_f32 {v(RT_+2*i,2)}, {v(RT_+2*i,2)}, {v(LV+2,2)} op_sel_hi:[1,0]")
        for i in range(4): a(f"v_cvt_pk_bf16_f32 {v(RT_+8+i)}, {v(RT_+2*i)}, {v(RT_+2*i+1)}")
        if k: a(f"s_add_u32 {s(sOP)}, {s(sOP)}, 4096")
        a(f"buffer_store_dwordx4 {v(RT_+8,4)}, {v(vL16)}, {s(rWS,4)}, {s(sOP)} offen sc1")
    def cons(hs, bufs):
        name = "G_c" + "".join(map(str, hs))
        if hs == [3]:
            spin_begin(a, f"G_g3")
            a(f"ds_read_b32 {v(LV+4)}, {v(vFG)} offset:{2048*3 + 128}")
            a(f"s_waitcnt lgkmcnt(0)")
            a(f"v_cmp_eq_u32 vcc, 0, {v(LV+4)}")
            a(f"s_nop 0")
            a(f"s_cbranch_vccz G_g3_ok")
            spin_retry(a, f"G_g3", 2)
        spin_begin(a, name)
        a(f"s_add_u32 s6, {s(sOC)}, {2048*hs[0]}")
        regs = []
        for g2 in range(8):
            for hh, ob in zip(hs, bufs):
                a(f"buffer_load_dwordx4 {v(ob+4*g2,4)}, {v(vL16)}, {s(rWS,4)}, s6 offen offset:{2048*(hh-hs[0])} sc1")
                regs.append(ob + 4*g2)
            if g2 < 7: a(f"s_add_u32 s6, s6, 8192")
        for n, b in enumerate(regs):
            a(f"s_waitcnt vmcnt({len(regs)-1-n})")
            if n == 0:
                a(f"v_max3_u32 {v(LV+4)}, {v(b)}, {v(b+1)}, {v(b+2)}")
                a(f"v_max_u32 {v(LV+4)}, {v(LV+4)}, {v(b+3)}")
            else:
                a(f"v_max3_u32 {v(LV+4)}, {v(b)}, {v(b+1)}, {v(LV+4)}")
                a(f"v_max3_u32 {v(LV+4)}, {v(b+2)}, {v(b+3)}, {v(LV+4)}")
        a(f"v_cmp_eq_u32 vcc, -1, {v(LV+4)}")
        a(f"s_nop 0")
        a(f"s_cbranch_vccz {name}_ok")
        spin_retry(a, name, 0 if hs == [3] else 4)
        if hs != [3]: a(f"s_setprio {GLO}")
        for hh, ob in zip(hs, bufs):
            for g2 in range(8):
                a(f"v_mfma_f32_32x32x16_bf16 {v(ACC,16)}, {v(WFR(hh,g2),4)}, {v(ob+4*g2,4)}, {v(ACC,16)}")
        if hs != [3]: a(f"s_setprio {GHI}")
    red(0)
    for q in range(8):
        a(f"v_lshlrev_b32 {v(XU+2*q)}, 16, {v(XD+q)}")
        a(f"v_and_b32 {v(XU+2*q+1)}, 0xffff0000, {v(XD+q)}")
    lds_wait(a, "G_r1", vSY, SY_RED1, 4, LV+4)
    for lam in range(1, 4):
        for q in range(4):
            a(f"ds_read_b128 {v(ACC+16*lam+4*q,4)}, {v(vSK+lam)} offset:{(lam-1)*4096 + q*1024}")
    a(f"s_waitcnt lgkmcnt(4)")
    for i in range(8):
        a(f"v_pk_add_f32 {v(ACC+2*i,2)}, {v(ACC+2*i,2)}, {v(ACC+16+2*i,2)}")
    for i in range(8):
        a(f"v_pk_add_f32 {v(ACC+2*i,2)}, {v(ACC+2*i,2)}, {v(ACC+32+2*i,2)}")
    a(f"s_waitcnt lgkmcnt(0)")
    for i in range(8):
        a(f"v_pk_add_f32 {v(ACC+2*i,2)}, {v(ACC+2*i,2)}, {v(ACC+48+2*i,2)}")
    for i in range(8):
        a(f"v_pk_fma_f32 {v(ACC+2*i,2)}, {v(ACC+2*i,2)}, {v(vRS,2)}, {v(XU+2*i,2)} op_sel_hi:[1,0,1]")
    wread(3)
    stamp(a, 7)
    cons([0, 1], [OB, RT_])
    stamp(a, 9)
    red(1)
    stamp(a, 10)
    cons([2], [OB]); cons([3], [OB])
    stamp(a, 11)
    a.nop(12)
    for q in range(2):
        for i in range(4):
            a(f"v_cvt_pk_bf16_f32 {v(RT_+4*q+i)}, {v(ACC+8*q+2*i)}, {v(ACC+8*q+2*i+1)}")
        a(f"buffer_store_dwordx4 {v(RT_+4*q,4)}, {v(vXO)}, {s(rOUT,4)}, {s(sXO)} offen offset:{16*q}")
    a(f"s_add_u32 s6, s2, {s(sJ)}")
    a(f"s_cmp_eq_u32 s6, 0")
    a(f"s_cbranch_scc0 G_end")
    a(f"s_mov_b64 exec, 1")
    a(f"v_mov_b32 v56, {s(sTAG)}")
    a(f"v_mov_b32 v57, {s(sTAG+1)}")
    a(f"s_mov_b32 s6, {EP}")
    a(f"buffer_store_dwordx2 v[56:57], off, {s(rWS,4)}, s6 sc1")
    a.label("G_end")
    endpgm(a, 12)

    a.label("G_fb")
    FS, FC, FO, FK, FV, FQ, FI, FVo = 80, 96, RT_, 112, 116, 124, 56, 57
    a(f"s_lshl_b32 s6, {s(sC)}, 13")
    a(f"s_lshl_b32 s7, {s(sPHS)}, 10")
    a(f"s_add_u32 s6, s6, s7")
    a(f"s_add_u32 s6, s6, {QF}")
    a(f"buffer_load_dwordx4 {v(FQ,4)}, {v(vL16)}, {s(rWS,4)}, s6 offen sc1")
    a(f"v_mov_b32 {v(FI)}, 0xdddddddd")
    a(f"v_mov_b32 {v(FC)}, 0xff800000")
    a(f"s_mov_b32 s6, {KF}")
    a.label("G_fb1")
    a(f"buffer_load_dwordx4 {v(FK,4)}, {v(vL16)}, {s(rWS,4)}, s6 offen sc1")
    a(f"s_waitcnt vmcnt(0)")
    a(f"v_mfma_f32_32x32x16_bf16 {v(FS,16)}, {v(FK,4)}, {v(FQ,4)}, 0")
    a.nop(12)
    for i in range(8):
        a(f"v_maximum3_f32 {v(FC)}, {v(FC)}, {v(FS+2*i)}, {v(FS+2*i+1)}")
    a(f"s_add_u32 s6, s6, 1024")
    a(f"s_cmp_lt_u32 s6, {KF + 65536}")
    a(f"s_cbranch_scc1 G_fb1")
    a(f"v_mov_b32 {v(FC+1)}, {v(FC)}")
    a(f"s_nop 1")
    a(f"v_permlane32_swap_b32 {v(FC)}, {v(FC+1)}")
    a(f"v_and_b32 {v(FVo)}, 31, v1")
    a(f"v_cmp_eq_u32 vcc, 16, {v(FVo)}")
    a(f"v_maximum3_f32 {v(FC)}, {v(FC)}, {v(FC+1)}, {v(FC+1)}")
    a(f"v_mov_b32 {v(FV)}, 0x3f803f80")
    a(f"v_cndmask_b32 {v(FV)}, 0, {v(FV)}, vcc")
    a(f"v_sub_f32 {v(FC)}, 0, {v(FC)}")
    for i in range(1, 8): a(f"v_mov_b32 {v(FV+i)}, {v(FV)}")
    for i in range(1, 16): a(f"v_mov_b32 {v(FC+i)}, {v(FC)}")
    for i in range(16): a(f"v_mov_b32 {v(FO+i)}, 0")
    a(f"v_and_b32 {v(FVo)}, 15, v1")
    a(f"v_lshrrev_b32 {v(FS)}, 5, v1")
    a(f"v_lshlrev_b32 {v(FVo)}, 4, {v(FVo)}")
    a(f"v_lshl_add_u32 {v(FVo)}, {v(FS)}, 8, {v(FVo)}")
    a(f"s_mov_b32 s6, {KF}")
    a.label("G_fb2")
    a(f"s_add_u32 s7, s6, {VF - KF}")
    a(f"buffer_load_dwordx4 {v(FK,4)}, {v(vL16)}, {s(rWS,4)}, s6 offen sc1")
    a(f"s_mov_b32 exec_lo, 0xffff")
    a(f"s_mov_b32 exec_hi, 0xffff")
    a(f"buffer_load_dwordx4 {v(FV,4)}, {v(FVo)}, {s(rWS,4)}, s7 offen sc1")
    a(f"buffer_load_dwordx4 {v(FV+4,4)}, {v(FVo)}, {s(rWS,4)}, s7 offen offset:512 sc1")
    a(f"s_mov_b64 exec, -1")
    a(f"s_waitcnt vmcnt(0)")
    a(f"v_mfma_f32_32x32x16_bf16 {v(FS,16)}, {v(FK,4)}, {v(FQ,4)}, {v(FC,16)}")
    a.nop(12)
    for i in range(16): a(f"v_exp_f32 {v(FS+i)}, {v(FS+i)}")
    a(f"s_nop 1")
    a(f"v_smfmac_f32_32x32x32_bf16 {v(FO,16)}, {v(FV,4)}, {v(FS,8)}, {v(FI)}")
    a(f"v_smfmac_f32_32x32x32_bf16 {v(FO,16)}, {v(FV+4,4)}, {v(FS+8,8)}, {v(FI)}")
    a.nop(16)
    a(f"s_add_u32 s6, s6, 1024")
    a(f"s_cmp_lt_u32 s6, {KF + 65536}")
    a(f"s_cbranch_scc1 G_fb2")
    a(f"v_mov_b32 {v(FO+9)}, {v(FO+8)}")
    a(f"s_nop 1")
    a(f"v_permlane32_swap_b32 {v(FO+8)}, {v(FO+9)}")
    a(f"s_nop 1")
    a(f"v_rcp_f32 {v(LV+2)}, {v(FO+8)}")
    a(f"s_cmp_lt_u32 {s(sPHS)}, 4")
    a(f"s_cbranch_scc1 G_ret0")
    a(f"s_branch G_ret1")

    a.label("G_idle")
    a(f"s_waitcnt vmcnt(0) lgkmcnt(0)")
    lds_inc(a, vSY, SY_WQ, vONE)
    fix_tag(a)
    stamp(a, 1)
    stamp(a, 2)
    stamp(a, 3)
    lds_inc(a, vSY, SY_XFREE, vONE)
    a(f"s_branch G_hpub")


def gen_kv(a, isv):
    real = a
    if isv: a = Asm()
    vm = VM(a)
    sfx = "v" if isv else "k"
    a("s_setprio 3")
    ids(a)
    vSY, vONE, vU = 2, 3, 4
    WK, XK = 128, 64
    vL16, vBW, vTk, vXk = 5, 6, 7, 11
    MA, SX, CS, ON, Q0, Q1 = 20, 24, 28, 32, 36, 37
    sTG = T + 1
    a(f"v_lshlrev_b32 {v(vL16)}, 4, v1")
    a(f"v_lshrrev_b32 v12, 4, v1")
    a(f"v_and_b32 v13, 15, v1")
    a(f"v_lshlrev_b32 {v(vXk)}, 10, v13")
    a(f"v_lshl_add_u32 {v(vXk)}, v12, 4, {v(vXk)}")
    a(f"s_and_b32 {s(sTG)}, {s(sG)}, 3")
    a(f"s_lshl_b32 {s(T+4)}, {s(sB)}, 16")
    a(f"s_lshl_b32 s6, {s(sTG)}, 14")
    a(f"s_add_u32 {s(T+4)}, {s(T+4)}, s6")
    a(f"s_waitcnt lgkmcnt(0)")
    srd(a, rX, sPX, 2097152)
    for u in range(16):
        vm.issue(("xk", u), f"buffer_load_dwordx4 {v(XK+4*u,4)}, {v(vXk)}, {s(rX,4)}, {s(T+4)} offen offset:{64*u}")
    a(f"s_cmp_ge_u32 {s(sG)}, 4")
    a(f"s_cselect_b32 s6, {s(sPWV)}, {s(sPWK)}")
    a(f"s_cselect_b32 s7, {s(sPWV+1)}, {s(sPWK+1)}")
    srd(a, rWB, 6, 16384)
    for u in range(16):
        if u % 4 == 0: a(f"s_movk_i32 s6, {u*1024}")
        vm.issue(("wk", u), f"buffer_load_dwordx4 {v(WK+4*u,4)}, {v(vL16)}, {s(rWB,4)}, s6 offen offset:{(u%4)*1024}")
    args_ready(a)
    a(f"s_cmp_ge_u32 {s(sG)}, 4")
    a(f"s_cbranch_scc1 V_start")
    a = real; vm.a = a
    srd(a, rWS, sPWS, WS_SIZE)
    a(f"s_mov_b32 {s(sJ)}, 3")
    a(f"v_mov_b32 {v(vSY)}, {L_SY}")
    a(f"v_mov_b32 {v(vONE)}, 1")
    a(f"v_add_u32 {v(vBW)}, {L_BNC + 3*4096}, {v(vL16)}")
    a(f"v_bfe_u32 v14, v1, 2, 2")
    a(f"v_lshl_add_u32 v14, v12, 3, v14")
    a(f"v_and_b32 v15, 3, v1")
    a(f"v_lshlrev_b32 v15, 3, v15")
    a(f"v_lshl_add_u32 {v(vTk)}, v14, 5, v15")
    a(f"v_add_u32 {v(vTk)}, {L_BNC + 3*4096}, {v(vTk)}")
    a(f"v_and_b32 v14, 1, v12")
    a(f"v_lshrrev_b32 v15, 1, v12")
    a(f"v_lshlrev_b32 v13, 4, v13")
    if isv:
        a(f"v_lshl_add_u32 v19, v15, 8, v13")
        a(f"v_lshl_add_u32 v19, v14, 3, v19")
    else:
        a(f"v_lshl_add_u32 v18, v14, 9, v13")
        a(f"v_lshl_add_u32 v18, v15, 3, v18")
    a(f"s_lshr_b32 s7, {s(sTG)}, 1")
    a(f"s_lshl1_add_u32 s7, {s(sB)}, s7")
    a(f"s_lshl_b32 s7, s7, 10")
    a(f"s_and_b32 s6, {s(sTG)}, 1")
    a(f"s_lshl_b32 {s(T+2+isv)}, s6, {8+isv}")
    a(f"s_add_u32 {s(T+2+isv)}, {s(T+2+isv)}, s7")
    a(f"s_add_u32 {s(T+2+isv)}, {s(T+2+isv)}, {VF if isv else KF}")
    a(f"v_lshlrev_b32 v16, 12, v1")
    a(f"s_and_b32 s6, s2, 7")
    a(f"s_lshr_b32 s7, s2, 3")
    a(f"s_lshl_b32 {s(T+6)}, s6, 12")
    a(f"s_add_u32 {s(T+6)}, {s(T+6)}, {FL_KV}")
    a(f"s_lshl_b32 s6, s6, 5")
    a(f"s_add_u32 s6, s6, s7")
    a(f"s_lshl_b32 s6, s6, 2")
    a(f"s_add_u32 {s(T+5)}, s6, {FL_KV}")
    for i in range(4): a(f"v_mov_b32 {v(ON+i)}, 0x3f803f80")
    a(f"v_mov_b32 {v(Q0)}, 0")
    a(f"v_mov_b32 {v(Q1)}, 0")
    inv = f2u(1.0/512)
    for u in range(16):
        vm.wait(("xk", u))
        a(f"v_mfma_f32_16x16x32_bf16 {v(SX,4)}, {v(ON,4)}, {v(XK+4*u,4)}, {'0' if u == 0 else v(SX,4)}")
        for d in range(4): a(f"v_dot2_f32_bf16 {v(Q0+d%2)}, {v(XK+4*u+d)}, {v(XK+4*u+d)}, {v(Q0+d%2)}")
    a(f"s_waitcnt lgkmcnt(0)")
    fix_tag(a)
    stamp(a, 1)
    stats = [
        [f"v_add_f32 {v(Q0)}, {v(Q0)}, {v(Q1)}", f"v_mov_b32 {v(Q1)}, {v(Q0)}"],
        [f"v_permlane16_swap_b32 {v(Q0)}, {v(Q1)}", f"v_mul_f32 {v(SX)}, {inv:#x}, {v(SX)}", f"v_add_f32 {v(Q0)}, {v(Q0)}, {v(Q1)}",
         f"v_mov_b32 {v(Q1)}, {v(Q0)}", f"v_mul_f32 {v(SX+1)}, {v(SX)}, {v(SX)}"],
        [f"v_permlane32_swap_b32 {v(Q0)}, {v(Q1)}", f"v_mov_b32 {v(SX+2)}, {inv:#x}", f"v_add_f32 {v(Q0)}, {v(Q0)}, {v(Q1)}",
         f"v_fma_f32 {v(Q0)}, {v(Q0)}, {v(SX+2)}, -{v(SX+1)}", f"v_max_f32 {v(Q0)}, 0, {v(Q0)}"],
        [f"v_cvt_pk_bf16_f32 {v(Q0)}, {v(SX)}, {v(Q0)}", f"v_lshlrev_b32 {v(SX)}, 16, {v(Q0)}", f"v_and_b32 {v(Q0)}, 0xffff0000, {v(Q0)}",
         f"v_add_f32 {v(Q0)}, {f2u(1e-5):#x}, {v(Q0)}"],
        [f"v_cvt_pk_bf16_f32 {v(Q0)}, {v(Q0)}, {v(Q0)}", f"v_and_b32 {v(Q0)}, 0xffff0000, {v(Q0)}", f"v_sqrt_f32 {v(Q0)}, {v(Q0)}"],
        [f"v_cvt_pk_bf16_f32 {v(Q0)}, {v(Q0)}, {v(Q0)}", f"v_and_b32 {v(Q0)}, 0xffff0000, {v(Q0)}", f"v_rcp_f32 {v(Q0)}, {v(Q0)}"]]
    if True:
        fill = [list(x) for x in stats]
        if isv:
            for src_, dst in ((SX, 40), (Q0, 44)):
                for G_ in range(4):
                    fill.append([f"v_mov_b32_dpp {v(dst+r)}, {v(src_)} row_newbcast:{4*G_+r} row_mask:{1<<G_:#x} bank_mask:0xf" for r in range(4)])
        def mm(u):
            c = lambda r: "0" if u == 0 else v(r, 4)
            if isv:
                a(f"v_mfma_f32_16x16x32_bf16 {v(CS,4)}, {v(ON,4)}, {v(WK+4*u,4)}, {c(CS)}")
                a(f"v_mfma_f32_16x16x32_bf16 {v(MA,4)}, {v(XK+4*u,4)}, {v(WK+4*u,4)}, {c(MA)}")
            else:
                a(f"v_mfma_f32_16x16x32_bf16 {v(CS,4)}, {v(WK+4*u,4)}, {v(ON,4)}, {c(CS)}")
                a(f"v_mfma_f32_16x16x32_bf16 {v(MA,4)}, {v(WK+4*u,4)}, {v(XK+4*u,4)}, {c(MA)}")
        LAG = 3
        for u in range(16 + LAG):
            if u < 16:
                vm.wait(("wk", u))
                a(f"ds_write_b128 {v(vBW)}, {v(WK+4*u,4)} offset:{(u%4)*1024}")
                a(f"ds_read_b64_tr_b16 {v(WK+4*u,2)}, {v(vTk)} offset:{(u%4)*1024}")
                a(f"ds_read_b64_tr_b16 {v(WK+4*u+2,2)}, {v(vTk)} offset:{(u%4)*1024+128}")
            if fill:
                for ins in fill.pop(0): a(ins)
            if u >= LAG:
                a(f"s_waitcnt lgkmcnt({3*(min(u, 15) - (u - LAG))})")
                mm(u - LAG)
        assert not fill
        a.nop(8)
        if isv:
            for i in range(2):
                a(f"v_pk_fma_f32 {v(MA+2*i,2)}, {v(CS+2*i,2)}, {v(40+2*i,2)}, {v(MA+2*i,2)} neg_lo:[1,0,0] neg_hi:[1,0,0]")
            for i in range(2): a(f"v_pk_mul_f32 {v(MA+2*i,2)}, {v(MA+2*i,2)}, {v(44+2*i,2)}")
        else:
            for i in range(2):
                a(f"v_pk_fma_f32 {v(MA+2*i,2)}, {v(CS+2*i,2)}, {v(SX,2)}, {v(MA+2*i,2)} op_sel_hi:[1,0,1] neg_lo:[1,0,0] neg_hi:[1,0,0]")
            for i in range(2): a(f"v_pk_mul_f32 {v(MA+2*i,2)}, {v(MA+2*i,2)}, {v(Q0,2)} op_sel_hi:[1,0]")
        a(f"v_cvt_pk_bf16_f32 {v(MA)}, {v(MA)}, {v(MA+1)}")
        a(f"v_cvt_pk_bf16_f32 {v(MA+1)}, {v(MA+2)}, {v(MA+3)}")
        a(f"buffer_store_dwordx2 {v(MA,2)}, v{18+isv}, {s(rWS,4)}, {s(T+2+isv)} offen sc1")
    stamp(a, 2)
    a(f"v_mov_b32 v17, {s(sTAG)}")
    a(f"s_mov_b64 exec, 0xff")
    a(f"s_waitcnt vmcnt(0)")
    a(f"buffer_store_dword v17, v16, {s(rWS,4)}, {s(T+5)} offen sc1")
    a(f"s_mov_b64 exec, -1")
    stamp(a, 3)
    pl = lambda q: a(f"buffer_load_dwordx4 {v(20+4*q,4)}, {v(vL16)}, {s(rWS,4)}, {s(T+6)} offen sc1")
    for q in range(NPOLL - 1):
        pl(q)
        if PGAP: a(f"s_sleep {PGAP}")
    spin_begin(a, "G_pk" + sfx)
    for q in range(NPOLL):
        pl((q - 1) % NPOLL)
        a(f"s_waitcnt vmcnt({NPOLL-1})")
        b_ = 20 + 4*q
        for i in range(4): a(f"v_xor_b32 {v(b_+i)}, {v(b_+i)}, v17")
        a(f"v_or3_b32 {v(b_)}, {v(b_)}, {v(b_+1)}, {v(b_+2)}")
        a(f"v_or_b32 {v(b_)}, {v(b_)}, {v(b_+3)}")
        a(f"v_cmp_ne_u32 vcc, 0, {v(b_)}")
        a(f"s_nop 0")
        a(f"s_cbranch_vccz G_pk{sfx}_ok")
        if q < NPOLL - 1 and PSLEEP: a(f"s_sleep {PSLEEP}")
    spin_retry(a, "G_pk" + sfx, PSLEEP)
    a(f"ds_write_b32 {v(vSY)}, {v(vONE)} offset:{SY_KVRDY}")
    stamp(a, 13)
    a(f"s_setprio {GLO}")
    if not isv:
        a(f"s_branch G_kvd")
        return
    a.label("G_kvd")
    setup_u(a)
    lds_wait(a, "G_wq3", vSY, SY_QCNT, 4, 16)
    a(f"v_add_u32 v16, {L_QT}, {v(vL16)}")
    a(f"s_lshl_b32 s6, {s(sC)}, 13")
    a(f"s_add_u32 s6, s6, {QF}")
    a(f"s_add_u32 s7, s6, 4096")
    for p in range(8): a(f"ds_read_b128 {v(64+4*p,4)}, v16 offset:{1024*p}")
    lds_inc(a, vSY, SY_XFREE, vONE)
    a(f"s_waitcnt lgkmcnt(0)")
    for p in range(8):
        a(f"buffer_store_dwordx4 {v(64+4*p,4)}, {v(vL16)}, {s(rWS,4)}, s{6+p//4} offen offset:{(p%4)*1024} sc1")
    stamp(a, 4)
    srd(a, rWA, sPWO, 524288)
    a(f"v_add_u32 v5, {8192-1024}, {v(vU)}")
    a(f"s_and_b32 {s(T+2)}, {s(sB)}, 7")
    if WOPF:
        a(f"v_and_b32 v16, 3, v1")
        a(f"v_lshl_add_u32 v16, v16, 2, {v(vSY)}")
        spin_begin(a, "G_pf")
        a(f"ds_read_b32 v17, v16 offset:{SY_CF}")
        a(f"s_waitcnt lgkmcnt(0)")
        a(f"v_cmp_eq_u32 vcc, 0, v17")
        a(f"s_nop 0")
        a(f"s_cbranch_vccz G_pf_ok")
        spin_retry(a, "G_pf", 4)
        a(f"s_lshl_b32 s7, {s(T+2)}, 16")
        for u in range(8):
            a(f"buffer_load_dwordx4 {v(128+4*u,4)}, {v(vU)}, {s(rWA,4)}, s7 offen")
            a(f"s_add_u32 s7, s7, 8192")
    lds_wait2(a, "G_wqf", vSY, SY_QCNT, 8, 16, 1)
    a(f"s_setprio {GHI}")
    for hh in range(4):
        for g2 in range(8):
            a(f"s_mov_b32 m0, {L_STG + 16384*hh + 2048*g2}")
            a(f"s_mov_b32 s7, {65536*g2 + 16384*hh}")
            a(f"buffer_load_dwordx4 {v(vU)}, {s(rWA,4)}, s7 offen lds")
            a(f"buffer_load_dwordx4 v5, {s(rWA,4)}, s7 offen offset:1024 lds")
    a(f"s_waitcnt vmcnt(16)")
    a(f"ds_write_b32 {v(vSY)}, {v(vONE)} offset:{SY_WO}")
    stamp(a, 14)
    a(f"s_branch G_ffn2")

def descriptor(name, vgpr=256, sgpr=102):
    return f""".amdhsa_kernel {name}
  .amdhsa_next_free_vgpr {vgpr}
  .amdhsa_next_free_sgpr {sgpr}
  .amdhsa_accum_offset {min(256, (vgpr+3)//4*4)}
  .amdhsa_group_segment_fixed_size 0
  .amdhsa_kernarg_size 88
  .amdhsa_user_sgpr_count 2
  .amdhsa_user_sgpr_kernarg_segment_ptr 1
  .amdhsa_system_sgpr_workgroup_id_x 1
.end_amdhsa_kernel
"""

def main(out):
    hdr = open("cdna_kernels/" + NAME + ".s.ref").read().split("; Override")[0]
    a = Asm()
    name = NAME + "_kernel"
    a('.amdgcn_target "amdgcn-amd-amdhsa--gfx950"')
    a(".text")
    a(f".globl {name}")
    a(f".p2align 8")
    a(f".type {name},@function")
    a.label(name)
    a(f"s_cmp_ge_u32 s2, 256")
    a(f"s_cbranch_scc1 K_exit")
    stamp(a, 0)
    if PROF:
        for i in range(1, 15): a(f"s_mov_b32 {s(70+2*i)}, 0")
    a(f"s_load_dwordx16 s[8:23], s[0:1], 0")
    a(f"s_load_dwordx4 s[24:27], s[0:1], 64")
    a(f"s_load_dwordx2 s[28:29], s[0:1], 80")
    a(f"v_lshrrev_b32 v1, 6, v0")
    a(f"s_nop 0")
    a(f"v_readfirstlane_b32 {s(sW)}, v1")
    assert MAP84
    a(f"s_cmp_lt_u32 {s(sW)}, 4")
    a(f"s_cbranch_scc1 A_start")
    a(f"s_cmp_lt_u32 {s(sW)}, 7")
    a(f"s_cbranch_scc1 G_start")
    gen_kv(a, 0)
    a(".p2align 6")
    a.label("V_start")
    gen_kv(a, 1)
    a(".p2align 6")
    a.label("A_start")
    gen_a(a)
    a.label("K_exit")
    a("s_endpgm")
    a(".p2align 6")
    a.label("G_start")
    gen_g(a)
    pr = check_hazards(a.lines, name)
    for p in pr[:5]: print("HAZARD", p)
    launch = f"; @launch grid=(256,1,1) block=(512,1,1) lds={LDS_TOTAL}\n"
    txt = hdr + launch + a.text() + '.section .rodata,"a"\n.p2align 6\n' + descriptor(name)
    open(out, "w").write(txt)
    print("wrote", out, len(txt), "bytes; LDS", LDS_TOTAL)

if __name__ == "__main__":
    main(sys.argv[1] if len(sys.argv) > 1 and not sys.argv[1].startswith("--") else "cdna_kernels/" + NAME + ".s")
```

```python
import sys, struct
from asmlib import Asm, v, s, check_hazards

NAME = "parallel_sum__grouped_kv_mqa__dense_activation_relu__prompt"
QF, KF, VF, FL_KV, FL_H, EP, OF, HF = 0x040000, 0x300000, 0x310000, 0x320000, 0x328000, 0x32A000, 0x400000, 0x600000
HSTR = 88
WS_SIZE = 0x1000000
CSCALE = 0x3eb8aa3b
BIAS = 88.0
def f2u(x): return struct.unpack("<I", struct.pack("<f", x))[0]
def opt(name, default):
    for a_ in sys.argv[1:]:
        if a_.startswith("--" + name + "="): return int(a_.split("=")[1])
    return default
PROF = "--prof" in sys.argv
PROF_OFF = 0xF00000
HPROF = "--hprof" in sys.argv
FORCE_FB = "--forcefb" in sys.argv
DP0 = opt("dp0", 3)
DPRE = opt("dpre", 7)
SPIN_MAX = 1 << 15
APRIO = opt("aprio", 1)
GHI = opt("ghi", 3)
GLO = opt("glo", 0)
PSLEEP = opt("psleep", 0)
W1D = opt("w1d", 12)
W1ROT = opt("w1rot", 7)
KVFIRST = opt("kvfirst", 1)
DBG = opt("dbg", 0)
F1PRIO = opt("f1prio", 0)
KVROT = opt("kvrot", 1)
F2ROT = opt("f2rot", 1)
MAP84 = opt("map84", 1)
FD = opt("fd", 6)
OST = opt("ost", 0)
WOPF = opt("wopf", 1)
RSL = opt("rsl", 0)
NPOLL = opt("npoll", 1); PGAP = opt("pgap", 4); ASL = opt("asl", 0)
GX = opt("gx", 0)
W1F = opt("w1f", 8); W1POS = opt("w1pos", 99)
VFULL = opt("vfull", 1)
P1 = opt("p1", 2); PQ = opt("pq", 5); P0 = opt("p0", 10)

sW, sB, sG = 3, 4, 5
sPX, sPWQ, sPWK, sPWV, sPWO, sPBX, sPW1, sPW2 = 8, 10, 12, 14, 16, 18, 20, 22
sPOUT, sPDBG, sPWS = 24, 26, 28
sC, sJ = 30, 31
rX, rWA, rWB, rWS, rOUT = 32, 36, 40, 44, 48
sTAG = 52
sSPIN = 54
T = 56

XN_STRIDE = 1040
L_STG = 0
L_R2 = 64 * XN_STRIDE
L_KROT = L_R2
L_L = L_R2 + 16384
L_QO = L_L + 8192
L_BNC = L_QO + 5 * 8192
assert L_BNC == L_R2 + 65536
L_QT = L_QO + 7 * 8192
L_C = L_QT + 8192
L_SY = L_C + 4096
LDS_TOTAL = L_SY + 1024
TID_OFF = 49152
SY_LN, SY_WQ, SY_KVRDY, SY_QCNT, SY_XFREE, SY_HCNT, SY_RED1 = 0, 4, 8, 12, 16, 20, 28
SY_CF, SY_RED2, SY_WO, SY_RS = 32, 48, 52, 256

class VM:
    def __init__(self, a): self.a, self.q = a, []
    def issue(self, tag, txt):
        self.a(txt); self.q.append(tag)
        assert len(self.q) < 4000
    def n_after(self, tags):
        if not isinstance(tags, (list, set)): tags = [tags]
        idx = max(i for i, t in enumerate(self.q) if t in tags)
        return len(self.q) - 1 - idx
    def wait(self, tags, extra=""):
        n = self.n_after(tags)
        assert n <= 63, n
        self.a(f"s_waitcnt vmcnt({n}){extra}")
    def drained(self): self.q = []

def stamp(a, i):
    if PROF: a(f"s_memrealtime {s(70+2*i,2)}")
def endpgm(a, n):
    if PROF:
        a("s_waitcnt vmcnt(0)")
        stamp(a, n); n += 1
        a("s_waitcnt lgkmcnt(0)")
        a("s_mov_b64 exec, 1")
        for i in range(15):
            a(f"v_mov_b32 {v(240+i)}, {s(70+2*i)}")
        a(f"v_mov_b32 v255, 15")
        a(f"s_lshl_b32 s6, s2, 3")
        a(f"s_add_u32 s6, s6, {s(sW)}")
        a(f"s_lshl_b32 s6, s6, 6")
        a(f"s_add_u32 s6, s6, {PROF_OFF}")
        a(f"v_mov_b32 v239, 0")
        for q in range(4):
            a(f"buffer_store_dwordx4 {v(240+4*q,4)}, v239, {s(rWS,4)}, s6 offen offset:{16*q}")
    if PROF and HPROF:
        n -= 1
        isA = n == 11
        srd(a, rX, sPDBG, 256)
        def amax(word, val):
            a(f"v_mov_b32 v238, {val}")
            a(f"buffer_atomic_umax v238, v239, {s(rX,4)}, 0 offen offset:{4*word} sc1")
            a(f"s_waitcnt vmcnt(0)")
        a(f"s_not_b32 s6, s70")
        amax(0, "s6"); amax(1, "s70"); amax(14, s(70+2*n))
        if isA:
            for w_, st_ in enumerate((3, 4, 6, 9, 10, 11)): amax(2 + w_, s(70+2*st_))
        else:
            lab = a.newlabel("HP")
            a(f"s_cmp_eq_u32 {s(sJ)}, 3")
            a(f"s_cbranch_scc1 {lab}")
            for w_, st_ in enumerate((3, 5, 6)): amax(8 + w_, s(70+2*st_))
            a(f"s_endpgm")
            a.label(lab)
            for w_, st_ in enumerate((1, 3, 13)): amax(11 + w_, s(70+2*st_))
            a(f"s_not_b32 s6, {s(70+2*13)}")
            amax(15, "s6")
    a("s_endpgm")

def srd(a, r, ptr, size):
    a(f"s_mov_b32 {s(r)}, {s(ptr)}")
    a(f"s_and_b32 {s(r+1)}, {s(ptr+1)}, 0xffff")
    a(f"s_mov_b32 {s(r+2)}, {size}")
    a(f"s_mov_b32 {s(r+3)}, 0x20000")

def ids(a):
    a(f"s_and_b32 s6, s2, 7")
    a(f"s_lshr_b32 s7, s2, 3")
    if MAP84:
        a(f"s_and_b32 {s(sG)}, s7, 3")
        if GX: a(f"s_xor_b32 {s(sG)}, {s(sG)}, {GX}")
        a(f"s_and_b32 {s(sB)}, s6, 1")
        a(f"s_lshl2_add_u32 {s(sG)}, {s(sB)}, {s(sG)}")
        a(f"s_lshr_b32 s6, s6, 1")
        a(f"s_lshr_b32 s7, s7, 2")
        a(f"s_lshl3_add_u32 {s(sB)}, s6, s7")
    else:
        a(f"s_and_b32 {s(sG)}, s7, 7")
        a(f"s_lshr_b32 s7, s7, 3")
        a(f"s_lshl2_add_u32 {s(sB)}, s6, s7")
    a(f"s_lshl3_add_u32 {s(sC)}, {s(sB)}, {s(sG)}")
    a(f"v_and_b32 v1, 63, v0")

def args_ready(a):
    a(f"s_waitcnt lgkmcnt(0)")
    a(f"s_barrier")
    a(f"s_add_u32 s6, {s(sPWS)}, {EP}")
    a(f"s_addc_u32 s7, {s(sPWS+1)}, 0")
    a(f"s_load_dwordx2 {s(sTAG,2)}, s[6:7], 0")

def fix_tag(a):
    a(f"s_add_u32 {s(sTAG)}, {s(sTAG)}, 1")
    a(f"s_addc_u32 {s(sTAG+1)}, {s(sTAG+1)}, 0")

def spin_begin(a, name):
    a(f"s_mov_b32 {s(sSPIN)}, {SPIN_MAX}")
    a.label(name + "_top")
def spin_retry(a, name, sleep=1):
    a(f"s_sleep {sleep}")
    a(f"s_sub_u32 {s(sSPIN)}, {s(sSPIN)}, 1")
    a(f"s_cmp_lg_u32 {s(sSPIN)}, 0")
    a(f"s_cbranch_scc1 {name}_top")
    a.label(name + "_ok")

def lds_wait(a, name, vaddr, off, val, vt, sleep=1):
    spin_begin(a, name)
    a(f"ds_read_b32 {v(vt)}, {v(vaddr)} offset:{off}")
    a(f"s_waitcnt lgkmcnt(0)")
    a(f"v_readfirstlane_b32 s6, {v(vt)}")
    a(f"s_cmp_ge_u32 s6, {val}")
    a(f"s_cbranch_scc1 {name}_ok")
    spin_retry(a, name, sleep)

def lds_inc(a, vsy, off, vone):
    a(f"s_mov_b64 exec, 1")
    a(f"ds_add_u32 {v(vsy)}, {v(vone)} offset:{off}")
    a(f"s_mov_b64 exec, -1")

def publish(a, name, vsy, off, last, vone, vt, flbase):
    a(f"s_lshl_b32 s6, {s(sB)}, 7")
    a(f"s_lshl3_add_u32 s6, {s(sG)}, s6")
    a(f"s_add_u32 s7, s6, {flbase}")
    a(f"v_mov_b32 {v(vt)}, {s(sTAG)}")
    a(f"v_mov_b32 {v(vt+1)}, {s(sTAG+1)}")
    a(f"s_mov_b64 exec, 1")
    a(f"s_waitcnt vmcnt(0)")
    if last > 0:
        a(f"ds_add_rtn_u32 {v(vt+2)}, {v(vsy)}, {v(vone)} offset:{off}")
        a(f"s_waitcnt lgkmcnt(0)")
        a(f"v_readfirstlane_b32 s6, {v(vt+2)}")
        a(f"s_cmp_eq_u32 s6, {last}")
        a(f"s_cbranch_scc0 {name}_skip")
    a(f"buffer_store_dwordx2 {v(vt,2)}, off, {s(rWS,4)}, s7 sc1")
    a.label(name + "_skip")
    a(f"s_mov_b64 exec, -1")

def lds_wait2(a, name, vaddr, off, val, vt, sleep=1):
    spin_begin(a, name)
    a(f"ds_read2_b32 {v(vt,2)}, {v(vaddr)} offset0:{off//4} offset1:{off//4+1}")
    a(f"s_waitcnt lgkmcnt(0)")
    a(f"v_add_u32 {v(vt)}, {v(vt)}, {v(vt+1)}")
    a(f"s_nop 0")
    a(f"v_readfirstlane_b32 s6, {v(vt)}")
    a(f"s_cmp_ge_u32 s6, {val}")
    a(f"s_cbranch_scc1 {name}_ok")
    spin_retry(a, name, sleep)

def gen_a(a):
    vm = VM(a)
    a("s_setprio 2")
    ids(a)
    vKR, vQO, vIDX, vCA, vQV = 2, 3, 4, 6, 7
    Q, KROT, S0, S1_, C, O, KR, VR = 8, 12, 16, 32, 48, 64, 80, 128
    rot = (0, 4, 8, 12)
    res = [t for t in range(16) if t not in rot]
    kreg = lambda t: KROT if t in rot else KR + 4*res.index(t)
    kslot = lambda t: (t//8)*8192 + ((t//4) & 1)*1024
    sMASK, sKB, sVB, sKD, sPH = T, T+2, T+6, T+10, T+11
    sONES, sLO, sHI = T+12, T+13, 55
    vXW, vRSW, vTR, vXR, vRSR, vQT, vXL = 8, 9, 10, 11, 12, 14, 15
    vSY, vQ0, vZA = kreg(11), kreg(11)+1, kreg(11)+2
    vCW, vCF, vCP, vONE = kreg(13), kreg(13)+1, kreg(13)+2, kreg(13)+3
    XRAW, TMP = 16, 96
    t0, t1, t2, t3, t4, t5 = 96, 97, 98, 99, 100, 101
    a(f"v_lshrrev_b32 {v(t0)}, 3, v1")
    a(f"v_and_b32 {v(t1)}, 7, v1")
    a(f"v_lshlrev_b32 {v(vXL)}, 10, {v(t0)}")
    a(f"v_lshl_add_u32 {v(vXL)}, {v(t1)}, 4, {v(vXL)}")
    a(f"s_lshl_b32 s6, {s(sW)}, 4")
    a(f"v_add_u32 {v(t0)}, s6, {v(t0)}")
    a(f"v_mul_u32_u24 {v(vXW)}, {XN_STRIDE}, {v(t0)}")
    a(f"v_lshl_add_u32 {v(vXW)}, {v(t1)}, 4, {v(vXW)}")
    a(f"v_mov_b32 {v(vSY)}, {L_SY}")
    a(f"v_lshl_add_u32 {v(vRSW)}, {v(t0)}, 2, {v(vSY)}")
    a(f"v_mov_b32 {v(vONE)}, 1")
    a(f"s_lshl_b32 s6, {s(sW)}, 8")
    a(f"s_add_u32 s6, s6, {L_L + 128}")
    a(f"v_lshlrev_b32 {v(vZA)}, 10, {v(t1)}")
    a(f"v_add_u32 {v(vZA)}, s6, {v(vZA)}")
    a(f"v_lshrrev_b32 {v(t2)}, 5, v1")
    a(f"v_bfe_u32 {v(t3)}, v1, 2, 2")
    a(f"v_lshlrev_b32 {v(vTR)}, 10, {v(t2)}")
    a(f"v_lshl_add_u32 {v(vTR)}, {v(t3)}, 7, {v(vTR)}")
    a(f"v_bfe_u32 {v(t4)}, v1, 4, 1")
    a(f"v_lshl_add_u32 {v(vTR)}, {v(t4)}, 5, {v(vTR)}")
    a(f"v_and_b32 {v(t4)}, 3, v1")
    a(f"v_lshl_add_u32 {v(vTR)}, {v(t4)}, 3, {v(vTR)}")
    a(f"v_lshl_add_u32 {v(vCP)}, {v(t4)}, 2, {v(vSY)}")
    a(f"v_lshrrev_b32 {v(t3)}, 1, {v(t3)}")
    a(f"s_and_b32 s6, {s(sW)}, 1")
    a(f"s_lshr_b32 s7, {s(sW)}, 1")
    a(f"v_xor_b32 {v(t3)}, s6, {v(t3)}")
    a(f"v_lshl_add_u32 {v(vTR)}, {v(t3)}, 6, {v(vTR)}")
    a(f"v_add_u32 {v(vTR)}, {L_R2}, {v(vTR)}")
    a(f"s_lshl2_add_u32 s6, s6, s7")
    a(f"s_lshl_b32 s6, s6, 10")
    a(f"v_lshlrev_b32 {v(t5)}, 4, v1")
    a(f"v_add_u32 {v(vQ0)}, {L_QT}, {v(t5)}")
    a(f"v_add_u32 {v(vQT)}, s6, {v(vQ0)}")
    a(f"v_and_b32 {v(t0)}, 31, v1")
    a(f"s_lshl_b32 s6, s7, 5")
    a(f"v_add_u32 {v(t3)}, s6, {v(t0)}")
    a(f"v_mul_u32_u24 {v(vXR)}, {XN_STRIDE}, {v(t3)}")
    a(f"v_lshl_add_u32 {v(vXR)}, {v(t2)}, 4, {v(vXR)}")
    a(f"v_lshl_add_u32 {v(vRSR)}, {v(t3)}, 2, {v(vSY)}")
    a(f"s_mov_b32 {s(sONES)}, 0x3f803f80")
    a(f"s_mov_b32 {s(sLO)}, 0x00003f80")
    a(f"s_mov_b32 {s(sHI)}, 0x3f800000")
    a(f"s_mov_b32 {s(sMASK)}, 0x0000ffff")
    a(f"s_mov_b32 {s(sMASK+1)}, 0x0000ffff")
    a(f"s_lshl_b32 {s(sKD)}, {s(sW)}, 11")
    a(f"s_add_u32 {s(sKD)}, {s(sKD)}, {L_KROT}")
    a(f"v_add_u32 {v(vKR)}, {s(sKD)}, {v(t5)}")
    a(f"s_lshl_b32 s6, {s(sW)}, 11")
    a(f"s_add_u32 s7, s6, {L_QO}")
    a(f"v_add_u32 {v(vQO)}, s7, {v(t5)}")
    a(f"v_mov_b32 {v(vIDX)}, 0xdddddddd")
    a(f"v_mov_b32 {v(vIDX+1)}, 0xdddddddd")
    a(f"v_lshlrev_b32 {v(vCA)}, 4, {v(t0)}")
    a(f"v_add_u32 {v(vCA)}, {L_C}, {v(vCA)}")
    a(f"s_lshl_b32 s7, {s(sW)}, 10")
    a(f"v_add_u32 {v(vCW)}, s7, {v(vCA)}")
    a(f"s_lshl_b32 s7, {s(sW)}, 2")
    a(f"v_add_u32 {v(vCF)}, s7, {v(vSY)}")
    a(f"v_and_b32 {v(t3)}, 15, v1")
    a(f"v_lshlrev_b32 {v(vQV)}, 4, {v(t3)}")
    a(f"v_lshl_add_u32 {v(vQV)}, {v(t2)}, 8, {v(vQV)}")
    if VFULL:
        a(f"v_bfe_u32 {v(t4)}, v1, 4, 1")
        a(f"v_lshl_add_u32 {v(vQV)}, {v(t4)}, 9, {v(vQV)}")
    a(f"s_lshl_b32 s6, {s(sW)}, 14")
    a(f"s_add_u32 {s(sVB)}, s6, {VF}")
    a(f"s_add_u32 {s(sKB)}, s6, {KF}")
    a(f"s_sub_u32 {s(sKB)}, {s(sKB)}, {s(sKD)}")
    if KVROT:
        a(f"s_and_b32 s7, {s(sG)}, 3")
        a(f"s_lshl_b32 s7, s7, 12")
    else:
        a(f"s_mov_b32 s7, 0")
    for i in (3, 2, 1, 0):
        a(f"s_xor_b32 s6, s7, {4096*i}")
        a(f"s_add_u32 {s(sKB+i)}, {s(sKB)}, s6")
        a(f"s_add_u32 {s(sVB+i)}, {s(sVB)}, s6")
    a(f"v_cmp_eq_u32 vcc, 20, v1")
    a(f"v_mov_b32 v0, 0x3f80")
    a(f"v_mov_b32 v1, 0")
    a(f"v_cndmask_b32 v0, 0, v0, vcc")
    if VFULL: a(f"v_cmp_eq_u32 vcc, 0, {v(t3)}")
    else: a(f"v_cmp_eq_u32 vcc, 16, {v(t0)}")
    a(f"v_mov_b32 v92, 0x3f803f80")
    a(f"s_lshl_b32 s6, {s(sB)}, 16")
    a(f"v_cndmask_b32 v92, 0, v92, vcc")
    a(f"v_mov_b32 v93, v92")
    a(f"s_lshl_b32 s7, {s(sW)}, 14")
    a(f"s_add_u32 s6, s6, s7")
    a(f"s_add_u32 s7, s6, 8192")
    a(f"s_waitcnt lgkmcnt(0)")
    srd(a, rX, sPX, 2097152)
    a(f"s_barrier")
    for st in range(2):
        for j in range(8):
            vm.issue(("x", st, j), f"buffer_load_dwordx4 {v(XRAW+32*st+4*j,4)}, {v(vXL)}, {s(rX,4)}, s{6+st} offen offset:{128*j}")
    srd(a, rWS, sPWS, WS_SIZE)
    for r in range(128, 256, 2):
        if not VFULL or r & 4: a(f"v_pk_mov_b32 {v(r,2)}, v[92:93], v[92:93]")
    S1, S2 = 80, 82
    for i in range(4): a(f"v_mov_b32 {v(80+i)}, 0")
    inv = f2u(1.0/512)
    k = 0
    for st in range(2):
        for j in range(8):
            vm.wait(("x", st, j))
            for d in range(4):
                x = XRAW + 32*st + 4*j + d
                a(f"v_dot2_f32_bf16 {v(S1+st)}, {v(x)}, {s(sONES)}, {v(S1+st)}")
                a(f"v_dot2_f32_bf16 {v(S2+st)}, {v(x)}, {v(x)}, {v(S2+st)}")
        if st == 1: stamp(a, 1)
        a("s_nop 2")
        for dpp in ("quad_perm:[1,0,3,2]", "quad_perm:[2,3,0,1]", "row_half_mirror"):
            for r in (S1+st, S2+st):
                a(f"v_add_f32_dpp {v(r)}, {v(r)}, {v(r)} {dpp} row_mask:0xf bank_mask:0xf")
            a("s_nop 0")
        for r in (S1+st, S2+st): a(f"v_mul_f32 {v(r)}, {inv:#x}, {v(r)}")
        a(f"v_fma_f32 {v(S2+st)}, -{v(S1+st)}, {v(S1+st)}, {v(S2+st)}")
        a(f"v_max_f32 {v(S2+st)}, 0, {v(S2+st)}")
        a(f"v_cvt_pk_bf16_f32 {v(84+st)}, {v(S1+st)}, {v(S2+st)}")
        a(f"v_lshlrev_b32 {v(S1+st)}, 16, {v(84+st)}")
        r = 84 + st
        rs_ops = [f"v_and_b32 {v(r)}, 0xffff0000, {v(r)}",
                  f"v_add_f32 {v(r)}, {f2u(1e-5):#x}, {v(r)}",
                  f"v_cvt_pk_bf16_f32 {v(r)}, {v(r)}, {v(r)}",
                  f"v_and_b32 {v(r)}, 0xffff0000, {v(r)}",
                  f"v_sqrt_f32 {v(r)}, {v(r)}",
                  f"v_cvt_pk_bf16_f32 {v(r)}, {v(r)}, {v(r)}",
                  f"v_and_b32 {v(r)}, 0xffff0000, {v(r)}",
                  f"v_rcp_f32 {v(r)}, {v(r)}"]
        for j in range(8):
            t = TMP + 8*(k % 2); k += 1
            for d in range(4):
                x = XRAW + 32*st + 4*j + d
                a(f"v_dot2_f32_bf16 {v(t+2*d)}, {v(x)}, {s(sLO)}, {v(S1+st)} neg_lo:[0,0,1]")
                a(f"v_dot2_f32_bf16 {v(t+2*d+1)}, {v(x)}, {s(sHI)}, {v(S1+st)} neg_lo:[0,0,1]")
            a(rs_ops[j])
            for d in range(4):
                x = XRAW + 32*st + 4*j + d
                a(f"v_cvt_pk_bf16_f32 {v(x)}, {v(t+2*d)}, {v(t+2*d+1)}")
            a(f"ds_write_b128 {v(vXW)}, {v(XRAW+32*st+4*j,4)} offset:{128*j + st*8*XN_STRIDE}")
        a(f"ds_write_b32 {v(vRSW)}, {v(84+st)} offset:{SY_RS + 32*st}")
    lds_inc(a, vSY, SY_LN, vONE)
    stamp(a, 2)
    lds_wait2(a, "A_ln", vSY, SY_LN, 7, 96, 0)
    stamp(a, 3)
    ACC, WF, XF = 64, 16, 40
    LA = 4
    a(f"ds_read_b32 v12, {v(vRSR)} offset:{SY_RS}")
    def rd(st):
        a(f"ds_read_b64_tr_b16 {v(WF+4*(st%6),2)}, {v(vTR)} offset:{2048*st}")
        a(f"ds_read_b64_tr_b16 {v(WF+4*(st%6)+2,2)}, {v(vTR)} offset:{2048*st+512}")
        a(f"ds_read_b128 {v(XF+4*(st%6),4)}, {v(vXR)} offset:{32*st}")
    for st in range(LA): rd(st)
    for st in range(32):
        if st + LA < 32: rd(st + LA)
        a(f"s_waitcnt lgkmcnt({3*min(LA, 31-st)})")
        c = "0" if st == 0 else v(ACC, 16)
        a(f"v_mfma_f32_32x32x16_bf16 {v(ACC,16)}, {v(WF+4*(st%6),4)}, {v(XF+4*(st%6),4)}, {c}")
    a(f"v_mul_f32 v12, {CSCALE:#x}, v12")
    a.nop(11)
    for hh in range(2):
        d = 16 + 4*hh
        for i in range(4):
            r = ACC + 8*hh + 2*i
            a(f"v_pk_mul_f32 {v(r,2)}, {v(r,2)}, v[12:13] op_sel_hi:[1,0]")
        for i in range(4):
            r = ACC + 8*hh + 2*i
            a(f"v_cvt_pk_bf16_f32 {v(d+i)}, {v(r)}, {v(r+1)}")
        a(f"ds_write_b128 {v(vQT)}, {v(d,4)} offset:{2048*hh}")
    lds_inc(a, vSY, SY_QCNT, vONE)
    stamp(a, 4)
    lds_wait2(a, "A_kv", vSY, SY_KVRDY, 5, 96, ASL)
    stamp(a, 6)
    a(f"s_setprio 3")
    vm.drained()
    def ldK(t, tag):
        vm.issue(tag, f"buffer_load_dwordx4 {v(kreg(t),4)}, {v(vKR)}, {s(rWS,4)}, {s(sKB+t//4)} offen offset:{(t%4)*1024} sc1")
    def dmaK(t, tag):
        a(f"s_add_u32 m0, {s(sKD)}, {kslot(t)}")
        a(f"s_nop 0")
        vm.issue(tag, f"buffer_load_dwordx4 {v(vKR)}, {s(rWS,4)}, {s(sKB+t//4)} offen sc1 lds")
    def group(t):
        tag = ("g", t)
        if t == 9: dmaK(0, tag)
        if t + 2 in rot: dmaK(t + 2, tag)
        if t + 1 in res and t + 1 > 2: ldK(t + 1, tag)
        if VFULL:
            vm.issue(tag, f"buffer_load_dwordx4 {v(VR+8*t,4)}, {v(vQV)}, {s(rWS,4)}, {s(sVB+t//4)} offen offset:{(t%4)*1024} sc1")
            return
        a(f"s_mov_b64 exec, {s(sMASK,2)}")
        for t2 in range(2):
            vm.issue(tag, f"buffer_load_dwordx4 {v(VR+8*t+4*t2,4)}, {v(vQV)}, {s(rWS,4)}, {s(sVB+t//4)} offen offset:{(t%4)*1024+t2*512} sc1")
        a(f"s_mov_b64 exec, -1")
    QA, QB = kreg(14), kreg(15)
    assert DPRE <= 10 and DP0 <= DPRE
    ldK(1, "k12"); ldK(2, "k12"); ldK(0, "k0")
    a(f"ds_read_b128 {v(QA,4)}, {v(vQO)} offset:{L_QT - L_QO}")
    a(f"ds_read_b128 {v(QB,4)}, {v(vQO)} offset:{L_QT - L_QO + 1024}")
    a(f"ds_read_b128 {v(Q,4)}, {v(vQ0)}")
    a(f"ds_write_b32 {v(vZA)}, v1")
    for t in range(DP0): group(t)
    stamp(a, 7)
    rest = list(range(DP0, DPRE))
    vm.wait("k12", " lgkmcnt(2)")
    a(f"v_mfma_f32_32x32x16_bf16 {v(S0,16)}, {v(kreg(1),4)}, {v(QA,4)}, 0")
    a(f"v_mfma_f32_32x32x16_bf16 {v(C,16)}, {v(kreg(1),4)}, {v(QB,4)}, 0")
    a(f"v_mfma_f32_32x32x16_bf16 {v(S1_,16)}, {v(kreg(2),4)}, {v(QA,4)}, 0")
    a(f"v_mfma_f32_32x32x16_bf16 {v(O,16)}, {v(kreg(2),4)}, {v(QB,4)}, 0")
    if rest: group(rest.pop(0))
    a.nop(9)
    for i in range(0, 30, 2):
        for base in (S0, C):
            a(f"v_max3_f32 {v(base)}, {v(base)}, {v(base+i+1)}, {v(base+i+2)}")
    for base in (S0, C): a(f"v_max_f32 {v(base)}, {v(base)}, {v(base+31)}")
    for base in (S0, C): a(f"v_mov_b32 {v(base+1)}, {v(base)}")
    a(f"s_nop 0")
    for base in (S0, C): a(f"v_permlane32_swap_b32 {v(base)}, {v(base+1)}")
    a(f"v_mfma_f32_32x32x8_bf16 {v(O,16)}, v[0:1], {v(vIDX,2)}, 0")
    for base in (S0, C): a(f"v_max_f32 {v(base)}, {v(base)}, {v(base+1)}")
    for base in (S0, C): a(f"v_sub_f32 {v(base)}, {f2u(-BIAS):#x}, {v(base)}")
    for i in range(1, 4):
        for base in (S0, C): a(f"v_mov_b32 {v(base+i)}, {v(base)}")
    a(f"ds_write_b128 {v(vCW)}, {v(S0,4)}")
    a(f"ds_write_b128 {v(vCW)}, {v(C,4)} offset:512")
    a(f"ds_write_b32 {v(vCF)}, {v(vONE)} offset:{SY_CF}")
    while rest: group(rest.pop(0))
    spin_begin(a, "A_c")
    a(f"ds_read_b32 {v(S0)}, {v(vCP)} offset:{SY_CF}")
    for i in range(4): a(f"ds_read_b128 {v(C+4*i,4)}, {v(vCA)}")
    a(f"s_waitcnt lgkmcnt(0)")
    a(f"v_cmp_eq_u32 vcc, 0, {v(S0)}")
    a(f"s_nop 0")
    a(f"s_cbranch_vccz A_c_ok")
    spin_retry(a, "A_c", 0)
    stamp(a, 9)
    def PV(t, half):
        sb = (S0 if t % 2 == 0 else S1_) + 8*half
        a(f"v_smfmac_f32_32x32x32_bf16 {v(O,16)}, {v(VR+8*t+4*half,4)}, {v(sb,8)}, {v(vIDX)}")
    def QK(t):
        sb = S0 if t % 2 == 0 else S1_
        a(f"v_mfma_f32_32x32x16_bf16 {v(sb,16)}, {v(kreg(t),4)}, {v(Q,4)}, {v(C,16)}")
    def rdK(t): a(f"ds_read_b128 {v(KROT,4)}, {v(vKR)} offset:{kslot(t)}")
    def rdQC(p):
        a(f"ds_read_b128 {v(Q,4)}, {v(vQV)} offset:{1024*p}")
        for i in range(4): a(f"ds_read_b128 {v(C+4*i,4)}, {v(vCA)} offset:{512*p}")
    def flush(p):
        r, o = (vQO, 8192*p) if p < 7 else (vKR, 0)
        a(f"ds_write_b128 {v(r)}, {v(O,4)} offset:{o}")
        a(f"ds_write_b128 {v(r)}, {v(O+4,4)} offset:{o+1024}")
        a(f"ds_write_addtid_b32 {v(O+8)} offset:{TID_OFF + 1024*p}")
    vm.wait("k0")
    a(f"s_setprio {APRIO}")
    QK(0)
    a.nop(12)
    for t in range(16):
        cur = S0 if t % 2 == 0 else S1_
        E = lambda i: a(f"v_exp_f32 {v(cur+i)}, {v(cur+i)}")
        if t == 0: stamp(a, 1)
        if t == 4: stamp(a, 2)
        if t == 8: stamp(a, 5)
        if t == 12: stamp(a, 8)
        E(0); E(1)
        if t > 0: PV(t-1, 1)
        if t + DPRE < 16: group(t + DPRE)
        if t == 16 - DPRE:
            a(f"s_sub_u32 s6, {L_QT}, {s(sKD)}")
            a(f"v_add_u32 {v(vQV)}, s6, {v(vKR)}")
            a(f"s_lshl_b32 s6, {s(sW)}, 8")
            a(f"s_add_u32 m0, s6, {L_L - TID_OFF}")
        E(2); E(3); E(4)
        nt = (t + 1) % 16
        vm.wait(("g", t), " lgkmcnt(0)" if nt in rot else "")
        QK(nt)
        if (t + 2) % 16 in rot: rdK((t + 2) % 16)
        if t == 15: rdK(4)
        for i in range(5, 10):
            if VFULL and i < 7:
                for q in range(2): a(f"v_permlane16_swap_b32 {v(VR+8*t+2*(i-5)+q)}, {v(VR+8*t+4+2*(i-5)+q)}")
            E(i)
        PV(t, 0)
        if t == 14: rdQC(1)
        for i in range(10, 16): E(i)
    stamp(a, 10)
    if PROF: a(f"s_memtime {s(70+2*12,2)}")
    for p in range(1, 8):
      for t in range(16):
        cur = S0 if t % 2 == 0 else S1_
        E = lambda i: a(f"v_exp_f32 {v(cur+i)}, {v(cur+i)}")
        nt = (t + 1) % 16
        if t == 0:
            E(0); E(1); PV(15, 1); E(2); E(3); E(4); QK(1)
            for i in range(5, 13):
                E(i)
                if p == 6 and i == 6: a(f"v_readfirstlane_b32 s6, {v(vIDX+1)}")
                if p == 6 and i == 8: a(f"s_cmp_lt_u32 s6, 4")
                if p == 6 and i == 8: a(f"s_cbranch_scc1 A_chk")
                if p == 6 and i == 8: a.label("A_back")
                if p == 6 and i == 9: a(f"v_mov_b32 {v(vIDX+1)}, {v(vIDX)}")
            flush(p - 1)
            a(f"v_mfma_f32_32x32x8_bf16 {v(O,16)}, v[0:1], {v(vIDX,2)}, 0")
            E(13); E(14); E(15)
            PV(0, 0)
            continue
        last = p == 7 and t == 15
        p1 = max(P1, 3) if t == 1 else P1
        pq = max(PQ, p1)
        for i in range(16 + 1):
            if i == p1: PV(t-1, 1)
            if i == pq and not last:
                if nt in rot: a(f"s_waitcnt lgkmcnt(0)")
                QK(nt)
                if nt in rot and not (p == 7 and nt == 12): rdK((nt + 4) % 16)
            if i == P0: PV(t, 0)
            if i == 10 and t == 14 and p < 7:
                rdQC(p + 1)
                if p == 5: a(f"ds_read_b32 {v(vIDX+1)}, {v(vCA)} offset:{L_SY + SY_XFREE - L_C}")
            if i < 16: E(i)
    if PROF: a(f"s_memtime {s(70+2*13,2)}")
    stamp(a, 14)
    a(f"s_nop 1")
    PV(15, 1)
    a.nop(12)
    flush(7)
    endpgm(a, 11)
    a.label("A_chk")
    lds_wait(a, "A_x", vCA, L_SY + SY_XFREE - L_C, 4, vIDX+1)
    a(f"s_branch A_back")

def setup_u(a, vU=4, vONE=3):
    a(f"v_lshrrev_b32 v8, 3, v1")
    a(f"v_and_b32 v9, 7, v1")
    a(f"v_lshrrev_b32 v10, 2, v1")
    a(f"v_and_b32 v10, 4, v10")
    a(f"v_xor_b32 v10, v9, v10")
    a(f"v_lshlrev_b32 {v(vU)}, 10, v8")
    a(f"v_lshl_add_u32 {v(vU)}, v10, 4, {v(vU)}")
    a(f"s_lshl_b32 s6, {s(sG)}, 7")
    a(f"v_add_u32 {v(vU)}, s6, {v(vU)}")
    a(f"v_mov_b32 {v(vONE)}, 1")

def gen_g(a):
    vm = VM(a)
    ids(a)
    a(f"s_sub_u32 {s(sJ)}, {s(sW)}, 4")
    vSY, vONE, vU = 2, 3, 4
    a(f"v_mov_b32 {v(vSY)}, {L_SY}")
    a(f"v_lshl_add_u32 v12, v1, 2, {v(vSY)}")
    a(f"v_mov_b32 v13, 0")
    a(f"ds_write_b32 v12, v13")
    setup_u(a)
    sP, sWo, sRho, sW0 = T+1, T+2, T+3, T+4
    vW1, vBW, vT0, vT1, vXR, vX0 = 5, 6, 7, 11, 12, 48
    ACC, AF, XF, ST = 64, 16, 32, 128
    a(f"s_mul_i32 {s(sP)}, {s(sG)}, 3")
    a(f"s_cmp_eq_u32 {s(sG)}, 7")
    a(f"s_cselect_b32 {s(sP)}, 20, {s(sP)}")
    a(f"s_add_u32 {s(sP)}, {s(sP)}, {s(sJ)}")
    a(f"s_movk_i32 s6, 2752")
    a(f"v_lshlrev_b32 v13, 4, v9")
    a(f"v_mad_u32_u24 {v(vW1)}, v8, s6, v13")
    a(f"s_lshl_b32 {s(sW0)}, {s(sP)}, 7")
    a(f"s_and_b32 {s(sRho)}, {s(sB)}, {W1ROT}")
    a(f"s_lshl_b32 {s(T+6)}, {s(sRho)}, 13")
    a(f"s_lshl_b32 {s(T+7)}, {s(sJ)}, 10")
    args_ready(a)
    srd(a, rWA, sPWQ, 524288)
    srd(a, rWB, sPW1, 1409024)
    a(f"s_lshr_b32 s6, {s(sG)}, 1")
    a(f"s_add_u32 s6, s6, {s(sJ)}")
    a(f"s_cmp_eq_u32 s6, 5")
    a(f"s_cselect_b32 {s(rWB+2)}, 0, {s(rWB+2)}")
    a(f"s_cselect_b32 {s(T+8)}, 1, 0")
    R = W1D
    assert R % 2 == 0 and 4 <= R <= 32
    def ldw(u):
        if u % 8 == 0:
            a(f"s_xor_b32 s6, {s(sRho)}, {u//8}")
            a(f"s_mul_i32 s6, s6, {64*2752}")
            a(f"s_add_u32 {s(sWo)}, {s(sW0)}, s6")
        if not (DBG & 2): vm.issue(("w1", u), f"buffer_load_dwordx4 {v(ST+4*(u%R),4)}, {v(vW1)}, {s(rWB,4)}, {s(sWo)} offen")
        if u % 8 != 7: a(f"s_add_u32 {s(sWo)}, {s(sWo)}, {8*2752}")
    for i in range(22):
        if i == W1POS:
            for u in range(W1F): ldw(u)
        if i == 21: a(f"s_mov_b32 {s(T+7)}, {63*1024}")
        a(f"s_xor_b32 s6, {s(T+7)}, {s(T+6)}")
        a(f"s_add_u32 m0, s6, {L_R2}")
        a(f"s_lshl_b32 s6, s6, 3")
        vm.issue("wq", f"buffer_load_dwordx4 {v(vU)}, {s(rWA,4)}, s6 offen lds")
        if i < 20: a(f"s_add_u32 {s(T+7)}, {s(T+7)}, 3072")
    srd(a, rWS, sPWS, WS_SIZE)
    a(f"s_cmp_eq_u32 {s(T+8)}, 1")
    a(f"s_cbranch_scc1 G_idle")
    for u in range(W1F if W1POS < 22 else 0, R): ldw(u)
    a(f"s_lshl_b32 s6, {s(sJ)}, 12")
    a(f"s_add_u32 s6, s6, {L_BNC}")
    a(f"v_lshlrev_b32 {v(vBW)}, 7, v8")
    a(f"v_lshl_add_u32 {v(vBW)}, v10, 4, {v(vBW)}")
    a(f"v_add_u32 {v(vBW)}, s6, {v(vBW)}")
    a(f"v_lshrrev_b32 v13, 5, v1")
    a(f"v_bfe_u32 v14, v1, 2, 2")
    a(f"v_lshlrev_b32 {v(vT0)}, 10, v13")
    a(f"v_lshl_add_u32 {v(vT0)}, v14, 7, {v(vT0)}")
    a(f"v_bfe_u32 v15, v1, 4, 1")
    a(f"v_lshl_add_u32 {v(vT0)}, v15, 5, {v(vT0)}")
    a(f"v_and_b32 v15, 3, v1")
    a(f"v_lshl_add_u32 {v(vT0)}, v15, 3, {v(vT0)}")
    a(f"v_lshrrev_b32 v14, 1, v14")
    a(f"v_lshl_add_u32 {v(vT0)}, v14, 6, {v(vT0)}")
    a(f"v_xor_b32 {v(vT1)}, 64, {v(vT0)}")
    a(f"v_add_u32 {v(vT0)}, s6, {v(vT0)}")
    a(f"v_add_u32 {v(vT1)}, s6, {v(vT1)}")
    a(f"v_and_b32 v14, 31, v1")
    a(f"v_mul_u32_u24 {v(vXR)}, {XN_STRIDE}, v14")
    a(f"v_lshl_add_u32 {v(vXR)}, v13, 4, {v(vXR)}")
    for q in range(8):
        a(f"s_xor_b32 s6, {s(sRho)}, {q}")
        a(f"s_lshl_b32 s6, s6, 7")
        a(f"v_add_u32 {v(vX0+q)}, s6, {v(vXR)}")
    for i in range(4): a(f"v_mov_b32 {v(56+i)}, -1")
    a(f"v_lshlrev_b32 v60, 4, v1")
    a(f"s_lshl1_add_u32 {s(T+5)}, {s(sC)}, {s(sJ)}")
    a(f"s_lshl_b32 {s(T+5)}, {s(T+5)}, 12")
    a(f"s_add_u32 {s(T+5)}, {s(T+5)}, {OF}")
    def wr1(u):
        if not (DBG & 1): vm.wait(("w1", u))
        a(f"ds_write_b128 {v(vBW)}, {v(ST+4*(u%R),4)} offset:{(u%4)*1024}")
    def trd(st, ct):
        b = AF + 8*(st % 2) + 4*ct; o = (st % 2)*2048
        a(f"ds_read_b64_tr_b16 {v(b,2)}, {v(vT1 if ct else vT0)} offset:{o}")
        a(f"ds_read_b64_tr_b16 {v(b+2,2)}, {v(vT1 if ct else vT0)} offset:{o+512}")
    def xrd(st, rt):
        a(f"ds_read_b128 {v(XF+8*(st%2)+4*rt,4)}, {v(vX0+st//4)} offset:{32*(st%4) + rt*32*XN_STRIDE}")
    vm.wait("wq")
    lds_inc(a, vSY, SY_WQ, vONE)
    for u in range(4): wr1(u)
    trd(0, 0); trd(0, 1)
    a(f"s_waitcnt lgkmcnt(0)")
    for u in range(R, R + 4): ldw(u)
    fix_tag(a)
    stamp(a, 1)
    lds_wait(a, "G_ln", vSY, SY_LN, 4, 61, 1)
    stamp(a, 2)
    if F1PRIO: a(f"s_setprio {F1PRIO}")
    xrd(0, 0); xrd(0, 1)
    for st in range(32):
        a(f"s_waitcnt lgkmcnt({2 if 0 < st < 31 else 0})")
        if st == 10: stamp(a, 13)
        if st == 20: stamp(a, 14)
        k = 0
        for ct in range(2):
            for rt in range(2):
                acc = ACC + 32*ct + 16*rt
                c = "0" if st == 0 else v(acc, 16)
                a(f"v_mfma_f32_32x32x16_bf16 {v(acc,16)}, {v(AF+8*(st%2)+4*ct,4)}, {v(XF+8*(st%2)+4*rt,4)}, {c}")
                if k < 2 and st + 1 < 32:
                    trd(st + 1, k); xrd(st + 1, k)
                if k >= 2 and st + 2 < 32:
                    u = 2*(st+2) + k - 2
                    wr1(u)
                    if u + R < 64: ldw(u + R)
                k += 1
    stamp(a, 3)
    a(f"s_setprio {GHI}")
    lds_inc(a, vSY, SY_XFREE, vONE)
    a(f"s_cmp_eq_u32 {s(sJ)}, 2")
    a(f"s_cbranch_scc1 G_nop")
    for p in range(4):
        a(f"buffer_store_dwordx4 v[56:59], v60, {s(rWS,4)}, {s(T+5)} offen offset:{p*1024} sc1")
    a.label("G_nop")
    a(f"v_lshlrev_b32 v8, 4, v1")
    a(f"s_mul_i32 s6, {s(sB)}, {2*HSTR}")
    a(f"s_lshl2_add_u32 s6, {s(sP)}, s6")
    a(f"s_lshl_b32 s6, s6, 10")
    a(f"s_add_u32 s6, s6, {HF}")
    a(f"s_add_u32 s7, s6, {HSTR*1024}")
    k = 0
    for ct in range(2):
        for rt in range(2):
            for hh in range(2):
                d = ST + 4*k; k += 1
                for i in range(4):
                    r = ACC + 32*ct + 16*rt + 8*hh + 2*i
                    a(f"v_cvt_pk_bf16_f32 {v(d+i)}, {v(r)}, {v(r+1)}")
                for i in range(4):
                    a(f"v_pk_max_i16 {v(d+i)}, {v(d+i)}, 0")
                a(f"buffer_store_dwordx4 {v(d,4)}, v8, {s(rWS,4)}, s{6+rt} offen offset:{1024*(2*ct+hh)} sc1")
    a.label("G_hpub")
    publish(a, "G_pubh", vSY, SY_HCNT, 2, vONE, 16, FL_H)
    stamp(a, 4)
    a.label("G_ffn2")
    if DBG & 4: a(f"s_branch G_end")
    a(f"s_setprio {GHI}")
    vm.drained()
    sStg, sWo, sHo, sCT, sRT, sXO, sWj, sHb = T, T+2, T+3, T+4, T+5, T+6, T+7, T+9
    vA1, vB0, vB1, vT0, vT1, vXO, vL16, vTW = 5, 6, 7, 11, 12, 10, 13, 14
    ACC, AF, XD, XU = 64, 16, 144, 128
    BFS = [32, 40, 48, 56, 128, 136]
    WFR = lambda hh, g2: (160 + 32*hh if hh < 3 else 128) + 4*g2
    assert FD <= 6
    a(f"s_lshl_b32 {s(sWj)}, {s(sJ)}, 14")
    a(f"s_mul_i32 {s(sStg)}, {s(sJ)}, 12288")
    a(f"s_add_u32 {s(sStg)}, {s(sStg)}, {L_STG}")
    srd(a, rWA, sPW2, 1409024)
    srd(a, rX, sPX, 2097152)
    srd(a, rOUT, sPOUT, 2097152)
    a(f"v_add_u32 {v(vA1)}, {8192-1024}, {v(vU)}")
    N = 22
    if F2ROT:
        a(f"s_lshl1_add_u32 s6, {s(sG)}, {s(sB)}")
        a(f"s_and_b32 s6, s6, 7")
        a(f"s_mul_i32 s6, s6, 11")
        a(f"s_lshr_b32 s6, s6, 2")
    else:
        a(f"s_mov_b32 s6, 0")
    a(f"s_lshl_b32 {s(sHo)}, s6, 12")
    a(f"s_lshl_b32 {s(sWo)}, s6, 16")
    a(f"s_add_u32 {s(sWo)}, {s(sWo)}, {s(sWj)}")
    def issueW(i):
        a(f"s_add_u32 m0, {s(sStg)}, {(i % FD)*2048}")
        a(f"s_nop 0")
        vm.issue(("f", i), f"buffer_load_dwordx4 {v(vU)}, {s(rWA,4)}, {s(sWo)} offen lds")
        vm.issue(("f", i), f"buffer_load_dwordx4 {v(vA1)}, {s(rWA,4)}, {s(sWo)} offen offset:1024 lds")
        a(f"s_add_u32 {s(sWo)}, {s(sWo)}, {4*16384}")
        a(f"s_cmp_ge_u32 {s(sWo)}, {N*65536}")
        a(f"s_cselect_b32 {s(sWo)}, {s(sWj)}, {s(sWo)}")
    def issueH(i):
        vm.issue(("f", i), f"buffer_load_dwordx4 {v(BFS[i%FD],4)}, {v(vB0)}, {s(rWS,4)}, {s(sHo)} offen sc1")
        vm.issue(("f", i), f"buffer_load_dwordx4 {v(BFS[i%FD]+4,4)}, {v(vB1)}, {s(rWS,4)}, {s(sHo)} offen sc1")
        a(f"s_add_u32 {s(sHo)}, {s(sHo)}, 4096")
        a(f"s_cmp_ge_u32 {s(sHo)}, {N*4096}")
        a(f"s_cselect_b32 {s(sHo)}, 0, {s(sHo)}")
    a(f"s_and_b32 {s(sCT)}, {s(sJ)}, 1")
    a(f"s_lshr_b32 {s(sRT)}, {s(sJ)}, 1")
    a(f"v_and_b32 v8, 31, v1")
    a(f"v_lshrrev_b32 v9, 5, v1")
    a(f"v_lshlrev_b32 {v(vXO)}, 10, v8")
    a(f"v_lshl_add_u32 {v(vXO)}, v9, 5, {v(vXO)}")
    a(f"s_lshl_b32 s6, {s(sB)}, 16")
    a(f"s_lshl_b32 s7, {s(sRT)}, 15")
    a(f"s_add_u32 {s(sXO)}, s6, s7")
    a(f"s_lshl_b32 s6, {s(sG)}, 7")
    a(f"s_lshl_b32 s7, {s(sCT)}, 6")
    a(f"s_add_u32 s6, s6, s7")
    a(f"s_add_u32 {s(sXO)}, {s(sXO)}, s6")
    for q in range(2):
        vm.issue("xd", f"buffer_load_dwordx4 {v(XD+4*q,4)}, {v(vXO)}, {s(rX,4)}, {s(sXO)} offen offset:{16*q}")
    a(f"v_lshlrev_b32 {v(vL16)}, 4, v1")
    a(f"s_mul_i32 {s(sHb)}, {s(sB)}, {2*HSTR*1024}")
    a(f"s_lshl_b32 s6, {s(sJ)}, 10")
    a(f"s_add_u32 {s(sHb)}, {s(sHb)}, s6")
    a(f"s_add_u32 {s(sHb)}, {s(sHb)}, {HF}")
    a(f"s_mul_i32 s6, {s(sRT)}, {HSTR*1024}")
    a(f"s_add_u32 s7, s6, {s(sHb)}")
    a(f"v_add_u32 {v(vB0)}, s7, {v(vL16)}")
    a(f"s_sub_u32 s6, {HSTR*1024}, s6")
    a(f"s_add_u32 s7, s6, {s(sHb)}")
    a(f"v_add_u32 {v(vB1)}, s7, {v(vL16)}")
    a(f"v_bfe_u32 v16, v1, 2, 2")
    a(f"v_lshl_add_u32 {v(vTW)}, v9, 2, v16")
    a(f"v_lshlrev_b32 {v(vTW)}, 7, {v(vTW)}")
    a(f"v_bfe_u32 v15, v1, 4, 1")
    a(f"v_lshl_add_u32 {v(vTW)}, v15, 4, {v(vTW)}")
    a(f"v_and_b32 v15, 1, v1")
    a(f"v_lshl_add_u32 {v(vTW)}, v15, 5, {v(vTW)}")
    a(f"v_bfe_u32 v15, v1, 1, 1")
    a(f"v_lshl_add_u32 {v(vTW)}, v15, 3, {v(vTW)}")
    a(f"v_lshrrev_b32 v16, 1, v16")
    a(f"v_xor_b32 v16, {s(sCT)}, v16")
    a(f"v_lshl_add_u32 {v(vTW)}, v16, 6, {v(vTW)}")
    assert L_STG == 0
    a(f"v_xor_b32 {v(vT1)}, 64, {v(vTW)}")
    a(f"v_add_u32 {v(vT0)}, {s(sStg)}, {v(vTW)}")
    a(f"v_add_u32 {v(vT1)}, {s(sStg)}, {v(vT1)}")
    a(f"v_and_b32 v16, 3, v1")
    a(f"v_lshl_add_u32 v16, v16, 2, {v(vSY)}")
    spin_begin(a, "G_cf")
    a(f"ds_read_b32 v17, v16 offset:{SY_CF}")
    a(f"s_waitcnt lgkmcnt(0)")
    a(f"v_cmp_eq_u32 vcc, 0, v17")
    a(f"s_nop 0")
    a(f"s_cbranch_vccz G_cf_ok")
    spin_retry(a, "G_cf", 2)
    lds_wait(a, "G_wo", vSY, SY_WO, 1, 16, 1)
    def wread(hh):
        for g2 in range(8):
            o = 16384*hh + 2048*g2
            a(f"ds_read_b64_tr_b16 {v(WFR(hh,g2),2)}, {v(vTW)} offset:{o}")
            a(f"ds_read_b64_tr_b16 {v(WFR(hh,g2)+2,2)}, {v(vTW)} offset:{o+1024}")
            if g2 % 4 == 3: a(f"s_waitcnt lgkmcnt(4)")
    for hh in range(3): wread(hh)
    a(f"s_waitcnt vmcnt(0) lgkmcnt(0)")
    lds_inc(a, vSY, SY_RED2, vONE)
    a(f"v_and_b32 v15, 7, v1")
    a(f"v_lshlrev_b32 v15, 3, v15")
    lds_wait(a, "G_r2", vSY, SY_RED2, 4, 16)
    stamp(a, 8)
    for i in range(FD - 1): issueW(i)
    a(f"s_lshl_b32 s7, {s(sB)}, 7")
    a(f"s_add_u32 s7, s7, {FL_H}")
    spin_begin(a, "G_h")
    a(f"buffer_load_dwordx2 v[16:17], v15, {s(rWS,4)}, s7 offen sc1")
    a(f"s_waitcnt vmcnt(0)")
    a(f"v_cmp_ne_u64 vcc, {s(sTAG,2)}, v[16:17]")
    a(f"s_nop 0")
    a(f"s_cbranch_vccz G_h_ok")
    spin_retry(a, "G_h", 4)
    stamp(a, 5)
    vm.drained()
    for i in range(FD - 1): issueH(i)
    def aread(i, ct):
        base = AF + 8*(i % 2) + 4*ct; o = (i % FD)*2048
        a(f"ds_read_b64_tr_b16 {v(base,2)}, {v(vT1 if ct else vT0)} offset:{o}")
        a(f"ds_read_b64_tr_b16 {v(base+2,2)}, {v(vT1 if ct else vT0)} offset:{o+1024}")
    vm.wait(("f", 0))
    aread(0, 1); aread(0, 0)
    a(f"s_setprio {GLO}")
    for i in range(N):
        a(f"s_waitcnt lgkmcnt(0)")
        k = 0
        for rt in (1, 0):
            for ct in (1, 0):
                acc = ACC + 16*(2*rt + ct)
                c = "0" if i == 0 else v(acc, 16)
                a(f"v_mfma_f32_32x32x16_bf16 {v(acc,16)}, {v(AF+8*(i%2)+4*ct,4)}, {v(BFS[i%FD]+4*rt,4)}, {c}")
                if k == 0 and i + 1 < N:
                    vm.wait(("f", i + 1)); aread(i + 1, 1)
                if k == 1 and i + 1 < N: aread(i + 1, 0)
                if k == 2 and i + FD - 1 < N: issueW(i + FD - 1)
                if k == 3 and i + FD - 1 < N: issueH(i + FD - 1)
                k += 1
    stamp(a, 6)
    a(f"s_setprio {GHI}")
    vm.drained()
    vOR, vLR, vFL, vFG = 5, 6, 7, 15
    OB, RT_, LV = 80, 16, 48
    vSK, vRS = 152, 156
    sOP, sOC, sLIM, sPHS = T+1, T+3, T+4, T+8
    a(f"v_add_u32 {v(vSK)}, {s(sStg)}, {v(vL16)}")
    for lam in range(1, 4):
        a(f"s_xor_b32 s6, {s(sJ)}, {lam}")
        a(f"s_mul_i32 s6, s6, 12288")
        a(f"v_add_u32 {v(vSK+lam)}, s6, {v(vL16)}")
    a(f"s_lshl_b32 s6, {s(sRT)}, 7")
    a(f"v_lshl_add_u32 {v(vRS)}, v8, 2, {v(vSY)}")
    a(f"v_add_u32 {v(vRS)}, s6, {v(vRS)}")
    a(f"s_lshl_b32 s6, {s(sJ)}, 13")
    a(f"s_add_u32 s6, s6, {L_QO}")
    a(f"v_add_u32 {v(vOR)}, s6, {v(vL16)}")
    for lam in (3, 2, 1):
        for q in range(4):
            a(f"ds_write_b128 {v(vSK)}, {v(ACC+16*lam+4*q,4)} offset:{(lam-1)*4096 + q*1024}")
    lds_inc(a, vSY, SY_RED1, vONE)
    a(f"ds_read_b32 {v(vRS)}, {v(vRS)} offset:{SY_RS}")
    a(f"s_lshl_b32 s6, {s(sJ)}, 10")
    a(f"s_add_u32 s7, s6, {L_L}")
    a(f"v_lshlrev_b32 {v(vLR)}, 2, v8")
    a(f"v_add_u32 {v(vLR)}, s7, {v(vLR)}")
    a(f"v_and_b32 {v(vFG)}, 3, v1")
    a(f"v_lshlrev_b32 {v(vFG)}, 8, {v(vFG)}")
    a(f"v_add_u32 {v(vFL)}, s7, {v(vFG)}")
    a(f"s_lshl_b32 s7, {s(sRT)}, 10")
    a(f"s_add_u32 {s(sOC)}, s7, {L_L}")
    a(f"v_add_u32 {v(vFG)}, {s(sOC)}, {v(vFG)}")
    a(f"s_lshl_b32 {s(sOP)}, {s(sC)}, 13")
    a(f"s_add_u32 {s(sOP)}, {s(sOP)}, s6")
    a(f"s_add_u32 {s(sOP)}, {s(sOP)}, {OF}")
    a(f"s_lshl_b32 {s(sOC)}, {s(sB)}, 16")
    a(f"s_add_u32 {s(sOC)}, {s(sOC)}, s7")
    a(f"s_add_u32 {s(sOC)}, {s(sOC)}, {OF}")
    a(f"s_mov_b32 {s(sLIM)}, {f2u(2.0**120):#x}")
    def red(k):
        spin_begin(a, f"G_o{k}")
        a(f"ds_read_b32 {v(LV+4)}, {v(vFL)} offset:{4096*k + 128}")
        a(f"s_waitcnt lgkmcnt(0)")
        a(f"v_cmp_eq_u32 vcc, 0, {v(LV+4)}")
        a(f"s_nop 0")
        a(f"s_cbranch_vccz G_o{k}_ok")
        spin_retry(a, f"G_o{k}", RSL if k else 2)
        a(f"ds_read2st64_b32 {v(LV,2)}, {v(vLR)} offset0:{16*k} offset1:{16*k+1}")
        a(f"ds_read2st64_b32 {v(LV+2,2)}, {v(vLR)} offset0:{16*k+2} offset1:{16*k+3}")
        for w in range(4):
            for hf in range(2):
                a(f"ds_read_b128 {v(RT_+8*w+4*hf,4)}, {v(vOR)} offset:{2048*w + 1024*hf}")
        if k == 0:
            a(f"s_cmp_eq_u32 {s(sJ)}, 3")
            a(f"s_mov_b32 s6, 32768")
            a(f"s_cselect_b32 s6, {(L_KROT - L_QO - 3*8192) & 0xffffffff}, s6")
            a(f"v_add_u32 {v(vOR)}, s6, {v(vOR)}")
        a(f"s_add_u32 {s(sPHS)}, {s(sJ)}, {4*k}")
        a(f"s_waitcnt lgkmcnt(8)")
        a(f"v_pk_add_f32 {v(LV,2)}, {v(LV,2)}, {v(LV+2,2)}")
        a(f"s_waitcnt lgkmcnt(4)")
        a(f"v_add_f32 {v(LV)}, {v(LV)}, {v(LV+1)}")
        for i in range(4): a(f"v_pk_add_f32 {v(RT_+2*i,2)}, {v(RT_+2*i,2)}, {v(RT_+8+2*i,2)}")
        a(f"v_rcp_f32 {v(LV+2)}, {v(LV)}")
        a(f"s_waitcnt lgkmcnt(0)")
        for i in range(4): a(f"v_pk_add_f32 {v(RT_+16+2*i,2)}, {v(RT_+16+2*i,2)}, {v(RT_+24+2*i,2)}")
        for i in range(4): a(f"v_pk_add_f32 {v(RT_+2*i,2)}, {v(RT_+2*i,2)}, {v(RT_+16+2*i,2)}")
        for i in range(4): a(f"v_maximum3_f32 {v(LV)}, |{v(RT_+2*i)}|, |{v(RT_+2*i+1)}|, {v(LV)}")
        a(f"v_cmp_ngt_f32 vcc, {s(sLIM)}, {v(LV)}")
        a(f"s_nop 0")
        if FORCE_FB: a(f"s_bitcmp1_b32 {s(sJ)}, 0"); a(f"s_cbranch_scc1 G_fb")
        a(f"s_cbranch_vccnz G_fb")
        a.label(f"G_ret{k}")
        for i in range(4): a(f"v_pk_mul_f32 {v(RT_+2*i,2)}, {v(RT_+2*i,2)}, {v(LV+2,2)} op_sel_hi:[1,0]")
        for i in range(4): a(f"v_cvt_pk_bf16_f32 {v(RT_+8+i)}, {v(RT_+2*i)}, {v(RT_+2*i+1)}")
        if k: a(f"s_add_u32 {s(sOP)}, {s(sOP)}, 4096")
        a(f"buffer_store_dwordx4 {v(RT_+8,4)}, {v(vL16)}, {s(rWS,4)}, {s(sOP)} offen sc1")
    def cons(hs, bufs):
        name = "G_c" + "".join(map(str, hs))
        if hs == [3]:
            spin_begin(a, f"G_g3")
            a(f"ds_read_b32 {v(LV+4)}, {v(vFG)} offset:{2048*3 + 128}")
            a(f"s_waitcnt lgkmcnt(0)")
            a(f"v_cmp_eq_u32 vcc, 0, {v(LV+4)}")
            a(f"s_nop 0")
            a(f"s_cbranch_vccz G_g3_ok")
            spin_retry(a, f"G_g3", 2)
        spin_begin(a, name)
        a(f"s_add_u32 s6, {s(sOC)}, {2048*hs[0]}")
        regs = []
        for g2 in range(8):
            for hh, ob in zip(hs, bufs):
                a(f"buffer_load_dwordx4 {v(ob+4*g2,4)}, {v(vL16)}, {s(rWS,4)}, s6 offen offset:{2048*(hh-hs[0])} sc1")
                regs.append(ob + 4*g2)
            if g2 < 7: a(f"s_add_u32 s6, s6, 8192")
        for n, b in enumerate(regs):
            a(f"s_waitcnt vmcnt({len(regs)-1-n})")
            if n == 0:
                a(f"v_max3_u32 {v(LV+4)}, {v(b)}, {v(b+1)}, {v(b+2)}")
                a(f"v_max_u32 {v(LV+4)}, {v(LV+4)}, {v(b+3)}")
            else:
                a(f"v_max3_u32 {v(LV+4)}, {v(b)}, {v(b+1)}, {v(LV+4)}")
                a(f"v_max3_u32 {v(LV+4)}, {v(b+2)}, {v(b+3)}, {v(LV+4)}")
        a(f"v_cmp_eq_u32 vcc, -1, {v(LV+4)}")
        a(f"s_nop 0")
        a(f"s_cbranch_vccz {name}_ok")
        spin_retry(a, name, 0 if hs == [3] else 4)
        if hs != [3]: a(f"s_setprio {GLO}")
        for hh, ob in zip(hs, bufs):
            for g2 in range(8):
                a(f"v_mfma_f32_32x32x16_bf16 {v(ACC,16)}, {v(WFR(hh,g2),4)}, {v(ob+4*g2,4)}, {v(ACC,16)}")
        if hs != [3]: a(f"s_setprio {GHI}")
    red(0)
    for q in range(8):
        a(f"v_lshlrev_b32 {v(XU+2*q)}, 16, {v(XD+q)}")
        a(f"v_and_b32 {v(XU+2*q+1)}, 0xffff0000, {v(XD+q)}")
    lds_wait(a, "G_r1", vSY, SY_RED1, 4, LV+4)
    for lam in range(1, 4):
        for q in range(4):
            a(f"ds_read_b128 {v(ACC+16*lam+4*q,4)}, {v(vSK+lam)} offset:{(lam-1)*4096 + q*1024}")
    a(f"s_waitcnt lgkmcnt(4)")
    for i in range(8):
        a(f"v_pk_add_f32 {v(ACC+2*i,2)}, {v(ACC+2*i,2)}, {v(ACC+16+2*i,2)}")
    for i in range(8):
        a(f"v_pk_add_f32 {v(ACC+2*i,2)}, {v(ACC+2*i,2)}, {v(ACC+32+2*i,2)}")
    a(f"s_waitcnt lgkmcnt(0)")
    for i in range(8):
        a(f"v_pk_add_f32 {v(ACC+2*i,2)}, {v(ACC+2*i,2)}, {v(ACC+48+2*i,2)}")
    for i in range(8):
        a(f"v_pk_fma_f32 {v(ACC+2*i,2)}, {v(ACC+2*i,2)}, {v(vRS,2)}, {v(XU+2*i,2)} op_sel_hi:[1,0,1]")
    wread(3)
    stamp(a, 7)
    cons([0, 1], [OB, RT_])
    stamp(a, 9)
    red(1)
    stamp(a, 10)
    cons([2], [OB]); cons([3], [OB])
    stamp(a, 11)
    a.nop(12)
    for q in range(2):
        for i in range(4):
            a(f"v_cvt_pk_bf16_f32 {v(RT_+4*q+i)}, {v(ACC+8*q+2*i)}, {v(ACC+8*q+2*i+1)}")
        a(f"buffer_store_dwordx4 {v(RT_+4*q,4)}, {v(vXO)}, {s(rOUT,4)}, {s(sXO)} offen offset:{16*q}{['', ' sc1', ' nt', ' sc0 sc1', ' sc1 nt'][OST]}")
    a(f"s_add_u32 s6, s2, {s(sJ)}")
    a(f"s_cmp_eq_u32 s6, 0")
    a(f"s_cbranch_scc0 G_end")
    a(f"s_mov_b64 exec, 1")
    a(f"v_mov_b32 v56, {s(sTAG)}")
    a(f"v_mov_b32 v57, {s(sTAG+1)}")
    a(f"s_mov_b32 s6, {EP}")
    a(f"buffer_store_dwordx2 v[56:57], off, {s(rWS,4)}, s6 sc1")
    a.label("G_end")
    endpgm(a, 12)

    a.label("G_fb")
    FS, FC, FO, FK, FV, FQ, FI, FVo = 80, 96, RT_, 112, 116, 124, 56, 57
    a(f"s_lshl_b32 s6, {s(sC)}, 13")
    a(f"s_lshl_b32 s7, {s(sPHS)}, 10")
    a(f"s_add_u32 s6, s6, s7")
    a(f"s_add_u32 s6, s6, {QF}")
    a(f"buffer_load_dwordx4 {v(FQ,4)}, {v(vL16)}, {s(rWS,4)}, s6 offen sc1")
    a(f"v_mov_b32 {v(FI)}, 0xdddddddd")
    a(f"v_mov_b32 {v(FC)}, 0xff800000")
    a(f"s_mov_b32 s6, {KF}")
    a.label("G_fb1")
    a(f"buffer_load_dwordx4 {v(FK,4)}, {v(vL16)}, {s(rWS,4)}, s6 offen sc1")
    a(f"s_waitcnt vmcnt(0)")
    a(f"v_mfma_f32_32x32x16_bf16 {v(FS,16)}, {v(FK,4)}, {v(FQ,4)}, 0")
    a.nop(12)
    for i in range(8):
        a(f"v_maximum3_f32 {v(FC)}, {v(FC)}, {v(FS+2*i)}, {v(FS+2*i+1)}")
    a(f"s_add_u32 s6, s6, 1024")
    a(f"s_cmp_lt_u32 s6, {KF + 65536}")
    a(f"s_cbranch_scc1 G_fb1")
    a(f"v_mov_b32 {v(FC+1)}, {v(FC)}")
    a(f"s_nop 1")
    a(f"v_permlane32_swap_b32 {v(FC)}, {v(FC+1)}")
    a(f"v_and_b32 {v(FVo)}, 31, v1")
    a(f"v_cmp_eq_u32 vcc, 16, {v(FVo)}")
    a(f"v_maximum3_f32 {v(FC)}, {v(FC)}, {v(FC+1)}, {v(FC+1)}")
    a(f"v_mov_b32 {v(FV)}, 0x3f803f80")
    a(f"v_cndmask_b32 {v(FV)}, 0, {v(FV)}, vcc")
    a(f"v_sub_f32 {v(FC)}, 0, {v(FC)}")
    for i in range(1, 8): a(f"v_mov_b32 {v(FV+i)}, {v(FV)}")
    for i in range(1, 16): a(f"v_mov_b32 {v(FC+i)}, {v(FC)}")
    for i in range(16): a(f"v_mov_b32 {v(FO+i)}, 0")
    a(f"v_and_b32 {v(FVo)}, 15, v1")
    a(f"v_lshrrev_b32 {v(FS)}, 5, v1")
    a(f"v_lshlrev_b32 {v(FVo)}, 4, {v(FVo)}")
    a(f"v_lshl_add_u32 {v(FVo)}, {v(FS)}, 8, {v(FVo)}")
    a(f"s_mov_b32 s6, {KF}")
    a.label("G_fb2")
    a(f"s_add_u32 s7, s6, {VF - KF}")
    a(f"buffer_load_dwordx4 {v(FK,4)}, {v(vL16)}, {s(rWS,4)}, s6 offen sc1")
    a(f"s_mov_b32 exec_lo, 0xffff")
    a(f"s_mov_b32 exec_hi, 0xffff")
    a(f"buffer_load_dwordx4 {v(FV,4)}, {v(FVo)}, {s(rWS,4)}, s7 offen sc1")
    a(f"buffer_load_dwordx4 {v(FV+4,4)}, {v(FVo)}, {s(rWS,4)}, s7 offen offset:512 sc1")
    a(f"s_mov_b64 exec, -1")
    a(f"s_waitcnt vmcnt(0)")
    a(f"v_mfma_f32_32x32x16_bf16 {v(FS,16)}, {v(FK,4)}, {v(FQ,4)}, {v(FC,16)}")
    a.nop(12)
    for i in range(16): a(f"v_exp_f32 {v(FS+i)}, {v(FS+i)}")
    a(f"s_nop 1")
    a(f"v_smfmac_f32_32x32x32_bf16 {v(FO,16)}, {v(FV,4)}, {v(FS,8)}, {v(FI)}")
    a(f"v_smfmac_f32_32x32x32_bf16 {v(FO,16)}, {v(FV+4,4)}, {v(FS+8,8)}, {v(FI)}")
    a.nop(16)
    a(f"s_add_u32 s6, s6, 1024")
    a(f"s_cmp_lt_u32 s6, {KF + 65536}")
    a(f"s_cbranch_scc1 G_fb2")
    a(f"v_mov_b32 {v(FO+9)}, {v(FO+8)}")
    a(f"s_nop 1")
    a(f"v_permlane32_swap_b32 {v(FO+8)}, {v(FO+9)}")
    a(f"s_nop 1")
    a(f"v_rcp_f32 {v(LV+2)}, {v(FO+8)}")
    a(f"s_cmp_lt_u32 {s(sPHS)}, 4")
    a(f"s_cbranch_scc1 G_ret0")
    a(f"s_branch G_ret1")

    a.label("G_idle")
    a(f"s_waitcnt vmcnt(0) lgkmcnt(0)")
    lds_inc(a, vSY, SY_WQ, vONE)
    fix_tag(a)
    stamp(a, 1)
    stamp(a, 2)
    stamp(a, 3)
    lds_inc(a, vSY, SY_XFREE, vONE)
    a(f"s_branch G_hpub")


def gen_kv(a, isv):
    real = a
    if isv: a = Asm()
    vm = VM(a)
    sfx = "v" if isv else "k"
    a("s_setprio 3")
    ids(a)
    vSY, vONE, vU = 2, 3, 4
    WK, XK = 128, 64
    vL16, vBW, vTk, vXk = 5, 6, 7, 11
    MA, SX, CS, ON, Q0, Q1 = 20, 24, 28, 32, 36, 37
    sTG = T + 1
    a(f"v_lshlrev_b32 {v(vL16)}, 4, v1")
    a(f"v_lshrrev_b32 v12, 4, v1")
    a(f"v_and_b32 v13, 15, v1")
    a(f"v_lshlrev_b32 {v(vXk)}, 10, v13")
    a(f"v_lshl_add_u32 {v(vXk)}, v12, 4, {v(vXk)}")
    a(f"s_and_b32 {s(sTG)}, {s(sG)}, 3")
    a(f"s_lshl_b32 {s(T+4)}, {s(sB)}, 16")
    a(f"s_lshl_b32 s6, {s(sTG)}, 14")
    a(f"s_add_u32 {s(T+4)}, {s(T+4)}, s6")
    a(f"s_waitcnt lgkmcnt(0)")
    srd(a, rX, sPX, 2097152)
    for u in range(16):
        vm.issue(("xk", u), f"buffer_load_dwordx4 {v(XK+4*u,4)}, {v(vXk)}, {s(rX,4)}, {s(T+4)} offen offset:{64*u}")
    a(f"s_cmp_ge_u32 {s(sG)}, 4")
    a(f"s_cselect_b32 s6, {s(sPWV)}, {s(sPWK)}")
    a(f"s_cselect_b32 s7, {s(sPWV+1)}, {s(sPWK+1)}")
    srd(a, rWB, 6, 16384)
    for u in range(16):
        if u % 4 == 0: a(f"s_movk_i32 s6, {u*1024}")
        vm.issue(("wk", u), f"buffer_load_dwordx4 {v(WK+4*u,4)}, {v(vL16)}, {s(rWB,4)}, s6 offen offset:{(u%4)*1024}")
    args_ready(a)
    a(f"s_cmp_ge_u32 {s(sG)}, 4")
    a(f"s_cbranch_scc1 V_start")
    a = real; vm.a = a
    srd(a, rWS, sPWS, WS_SIZE)
    a(f"s_mov_b32 {s(sJ)}, 3")
    a(f"v_mov_b32 {v(vSY)}, {L_SY}")
    a(f"v_mov_b32 {v(vONE)}, 1")
    a(f"v_add_u32 {v(vBW)}, {L_BNC + 3*4096}, {v(vL16)}")
    a(f"v_bfe_u32 v14, v1, 2, 2")
    a(f"v_lshl_add_u32 v14, v12, 3, v14")
    a(f"v_and_b32 v15, 3, v1")
    a(f"v_lshlrev_b32 v15, 3, v15")
    a(f"v_lshl_add_u32 {v(vTk)}, v14, 5, v15")
    a(f"v_add_u32 {v(vTk)}, {L_BNC + 3*4096}, {v(vTk)}")
    a(f"v_and_b32 v14, 1, v12")
    a(f"v_lshrrev_b32 v15, 1, v12")
    a(f"v_lshlrev_b32 v13, 4, v13")
    if isv:
        a(f"v_lshl_add_u32 v19, v15, 8, v13")
        a(f"v_lshl_add_u32 v19, v14, 3, v19")
    else:
        a(f"v_lshl_add_u32 v18, v14, 9, v13")
        a(f"v_lshl_add_u32 v18, v15, 3, v18")
    a(f"s_lshr_b32 s7, {s(sTG)}, 1")
    a(f"s_lshl1_add_u32 s7, {s(sB)}, s7")
    a(f"s_lshl_b32 s7, s7, 10")
    a(f"s_and_b32 s6, {s(sTG)}, 1")
    a(f"s_lshl_b32 {s(T+2+isv)}, s6, {8+isv}")
    a(f"s_add_u32 {s(T+2+isv)}, {s(T+2+isv)}, s7")
    a(f"s_add_u32 {s(T+2+isv)}, {s(T+2+isv)}, {VF if isv else KF}")
    a(f"v_lshlrev_b32 v16, 12, v1")
    a(f"s_and_b32 s6, s2, 7")
    a(f"s_lshr_b32 s7, s2, 3")
    a(f"s_lshl_b32 {s(T+6)}, s6, 12")
    a(f"s_add_u32 {s(T+6)}, {s(T+6)}, {FL_KV}")
    a(f"s_lshl_b32 s6, s6, 5")
    a(f"s_add_u32 s6, s6, s7")
    a(f"s_lshl_b32 s6, s6, 2")
    a(f"s_add_u32 {s(T+5)}, s6, {FL_KV}")
    for i in range(4): a(f"v_mov_b32 {v(ON+i)}, 0x3f803f80")
    a(f"v_mov_b32 {v(Q0)}, 0")
    a(f"v_mov_b32 {v(Q1)}, 0")
    inv = f2u(1.0/512)
    for u in range(16):
        vm.wait(("xk", u))
        a(f"v_mfma_f32_16x16x32_bf16 {v(SX,4)}, {v(ON,4)}, {v(XK+4*u,4)}, {'0' if u == 0 else v(SX,4)}")
        for d in range(4): a(f"v_dot2_f32_bf16 {v(Q0+d%2)}, {v(XK+4*u+d)}, {v(XK+4*u+d)}, {v(Q0+d%2)}")
    a(f"s_waitcnt lgkmcnt(0)")
    fix_tag(a)
    stamp(a, 1)
    stats = [
        [f"v_add_f32 {v(Q0)}, {v(Q0)}, {v(Q1)}", f"v_mov_b32 {v(Q1)}, {v(Q0)}"],
        [f"v_permlane16_swap_b32 {v(Q0)}, {v(Q1)}", f"v_mul_f32 {v(SX)}, {inv:#x}, {v(SX)}", f"v_add_f32 {v(Q0)}, {v(Q0)}, {v(Q1)}",
         f"v_mov_b32 {v(Q1)}, {v(Q0)}", f"v_mul_f32 {v(SX+1)}, {v(SX)}, {v(SX)}"],
        [f"v_permlane32_swap_b32 {v(Q0)}, {v(Q1)}", f"v_mov_b32 {v(SX+2)}, {inv:#x}", f"v_add_f32 {v(Q0)}, {v(Q0)}, {v(Q1)}",
         f"v_fma_f32 {v(Q0)}, {v(Q0)}, {v(SX+2)}, -{v(SX+1)}", f"v_max_f32 {v(Q0)}, 0, {v(Q0)}"],
        [f"v_cvt_pk_bf16_f32 {v(Q0)}, {v(SX)}, {v(Q0)}", f"v_lshlrev_b32 {v(SX)}, 16, {v(Q0)}", f"v_and_b32 {v(Q0)}, 0xffff0000, {v(Q0)}",
         f"v_add_f32 {v(Q0)}, {f2u(1e-5):#x}, {v(Q0)}"],
        [f"v_cvt_pk_bf16_f32 {v(Q0)}, {v(Q0)}, {v(Q0)}", f"v_and_b32 {v(Q0)}, 0xffff0000, {v(Q0)}", f"v_sqrt_f32 {v(Q0)}, {v(Q0)}"],
        [f"v_cvt_pk_bf16_f32 {v(Q0)}, {v(Q0)}, {v(Q0)}", f"v_and_b32 {v(Q0)}, 0xffff0000, {v(Q0)}", f"v_rcp_f32 {v(Q0)}, {v(Q0)}"]]
    if True:
        fill = [list(x) for x in stats]
        if isv:
            for src_, dst in ((SX, 40), (Q0, 44)):
                for G_ in range(4):
                    fill.append([f"v_mov_b32_dpp {v(dst+r)}, {v(src_)} row_newbcast:{4*G_+r} row_mask:{1<<G_:#x} bank_mask:0xf" for r in range(4)])
        def mm(u):
            c = lambda r: "0" if u == 0 else v(r, 4)
            if isv:
                a(f"v_mfma_f32_16x16x32_bf16 {v(CS,4)}, {v(ON,4)}, {v(WK+4*u,4)}, {c(CS)}")
                a(f"v_mfma_f32_16x16x32_bf16 {v(MA,4)}, {v(XK+4*u,4)}, {v(WK+4*u,4)}, {c(MA)}")
            else:
                a(f"v_mfma_f32_16x16x32_bf16 {v(CS,4)}, {v(WK+4*u,4)}, {v(ON,4)}, {c(CS)}")
                a(f"v_mfma_f32_16x16x32_bf16 {v(MA,4)}, {v(WK+4*u,4)}, {v(XK+4*u,4)}, {c(MA)}")
        LAG = 3
        for u in range(16 + LAG):
            if u < 16:
                vm.wait(("wk", u))
                a(f"ds_write_b128 {v(vBW)}, {v(WK+4*u,4)} offset:{(u%4)*1024}")
                a(f"ds_read_b64_tr_b16 {v(WK+4*u,2)}, {v(vTk)} offset:{(u%4)*1024}")
                a(f"ds_read_b64_tr_b16 {v(WK+4*u+2,2)}, {v(vTk)} offset:{(u%4)*1024+128}")
            if fill:
                for ins in fill.pop(0): a(ins)
            if u >= LAG:
                a(f"s_waitcnt lgkmcnt({3*(min(u, 15) - (u - LAG))})")
                mm(u - LAG)
        assert not fill
        a.nop(8)
        if isv:
            for i in range(2):
                a(f"v_pk_fma_f32 {v(MA+2*i,2)}, {v(CS+2*i,2)}, {v(40+2*i,2)}, {v(MA+2*i,2)} neg_lo:[1,0,0] neg_hi:[1,0,0]")
            for i in range(2): a(f"v_pk_mul_f32 {v(MA+2*i,2)}, {v(MA+2*i,2)}, {v(44+2*i,2)}")
        else:
            for i in range(2):
                a(f"v_pk_fma_f32 {v(MA+2*i,2)}, {v(CS+2*i,2)}, {v(SX,2)}, {v(MA+2*i,2)} op_sel_hi:[1,0,1] neg_lo:[1,0,0] neg_hi:[1,0,0]")
            for i in range(2): a(f"v_pk_mul_f32 {v(MA+2*i,2)}, {v(MA+2*i,2)}, {v(Q0,2)} op_sel_hi:[1,0]")
        a(f"v_cvt_pk_bf16_f32 {v(MA)}, {v(MA)}, {v(MA+1)}")
        a(f"v_cvt_pk_bf16_f32 {v(MA+1)}, {v(MA+2)}, {v(MA+3)}")
        a(f"buffer_store_dwordx2 {v(MA,2)}, v{18+isv}, {s(rWS,4)}, {s(T+2+isv)} offen sc1")
    stamp(a, 2)
    a(f"v_mov_b32 v17, {s(sTAG)}")
    a(f"s_mov_b64 exec, 0xff")
    a(f"s_waitcnt vmcnt(0)")
    a(f"buffer_store_dword v17, v16, {s(rWS,4)}, {s(T+5)} offen sc1")
    a(f"s_mov_b64 exec, -1")
    stamp(a, 3)
    pl = lambda q: a(f"buffer_load_dwordx4 {v(20+4*q,4)}, {v(vL16)}, {s(rWS,4)}, {s(T+6)} offen sc1")
    for q in range(NPOLL - 1):
        pl(q)
        if PGAP: a(f"s_sleep {PGAP}")
    spin_begin(a, "G_pk" + sfx)
    for q in range(NPOLL):
        pl((q - 1) % NPOLL)
        a(f"s_waitcnt vmcnt({NPOLL-1})")
        b_ = 20 + 4*q
        for i in range(4): a(f"v_xor_b32 {v(b_+i)}, {v(b_+i)}, v17")
        a(f"v_or3_b32 {v(b_)}, {v(b_)}, {v(b_+1)}, {v(b_+2)}")
        a(f"v_or_b32 {v(b_)}, {v(b_)}, {v(b_+3)}")
        a(f"v_cmp_ne_u32 vcc, 0, {v(b_)}")
        a(f"s_nop 0")
        a(f"s_cbranch_vccz G_pk{sfx}_ok")
        if q < NPOLL - 1 and PSLEEP: a(f"s_sleep {PSLEEP}")
    spin_retry(a, "G_pk" + sfx, PSLEEP)
    a(f"ds_write_b32 {v(vSY)}, {v(vONE)} offset:{SY_KVRDY}")
    stamp(a, 13)
    a(f"s_setprio {GLO}")
    if not isv:
        a(f"s_branch G_kvd")
        return
    a.label("G_kvd")
    setup_u(a)
    lds_wait(a, "G_wq3", vSY, SY_QCNT, 4, 16)
    a(f"v_add_u32 v16, {L_QT}, {v(vL16)}")
    a(f"s_lshl_b32 s6, {s(sC)}, 13")
    a(f"s_add_u32 s6, s6, {QF}")
    a(f"s_add_u32 s7, s6, 4096")
    for p in range(8): a(f"ds_read_b128 {v(64+4*p,4)}, v16 offset:{1024*p}")
    lds_inc(a, vSY, SY_XFREE, vONE)
    a(f"s_waitcnt lgkmcnt(0)")
    for p in range(8):
        a(f"buffer_store_dwordx4 {v(64+4*p,4)}, {v(vL16)}, {s(rWS,4)}, s{6+p//4} offen offset:{(p%4)*1024} sc1")
    stamp(a, 4)
    srd(a, rWA, sPWO, 524288)
    a(f"v_add_u32 v5, {8192-1024}, {v(vU)}")
    a(f"s_and_b32 {s(T+2)}, {s(sB)}, 7")
    if WOPF:
        a(f"v_and_b32 v16, 3, v1")
        a(f"v_lshl_add_u32 v16, v16, 2, {v(vSY)}")
        spin_begin(a, "G_pf")
        a(f"ds_read_b32 v17, v16 offset:{SY_CF}")
        a(f"s_waitcnt lgkmcnt(0)")
        a(f"v_cmp_eq_u32 vcc, 0, v17")
        a(f"s_nop 0")
        a(f"s_cbranch_vccz G_pf_ok")
        spin_retry(a, "G_pf", 4)
        a(f"s_lshl_b32 s7, {s(T+2)}, 16")
        for u in range(8):
            a(f"buffer_load_dwordx4 {v(128+4*u,4)}, {v(vU)}, {s(rWA,4)}, s7 offen")
            a(f"s_add_u32 s7, s7, 8192")
    lds_wait2(a, "G_wqf", vSY, SY_QCNT, 8, 16, 1)
    a(f"s_setprio {GHI}")
    for hh in range(4):
        for g2 in range(8):
            a(f"s_mov_b32 m0, {L_STG + 16384*hh + 2048*g2}")
            a(f"s_mov_b32 s7, {65536*g2 + 16384*hh}")
            a(f"buffer_load_dwordx4 {v(vU)}, {s(rWA,4)}, s7 offen lds")
            a(f"buffer_load_dwordx4 v5, {s(rWA,4)}, s7 offen offset:1024 lds")
    a(f"s_waitcnt vmcnt(16)")
    a(f"ds_write_b32 {v(vSY)}, {v(vONE)} offset:{SY_WO}")
    stamp(a, 14)
    a(f"s_branch G_ffn2")

def descriptor(name, vgpr=256, sgpr=102):
    return f""".amdhsa_kernel {name}
  .amdhsa_next_free_vgpr {vgpr}
  .amdhsa_next_free_sgpr {sgpr}
  .amdhsa_accum_offset {min(256, (vgpr+3)//4*4)}
  .amdhsa_group_segment_fixed_size 0
  .amdhsa_kernarg_size 88
  .amdhsa_user_sgpr_count 2
  .amdhsa_user_sgpr_kernarg_segment_ptr 1
  .amdhsa_system_sgpr_workgroup_id_x 1
.end_amdhsa_kernel
"""

def main(out):
    hdr = open("cdna_kernels/" + NAME + ".s.ref").read().split("; Override")[0]
    a = Asm()
    name = NAME + "_kernel"
    a('.amdgcn_target "amdgcn-amd-amdhsa--gfx950"')
    a(".text")
    a(f".globl {name}")
    a(f".p2align 8")
    a(f".type {name},@function")
    a.label(name)
    a(f"s_cmp_ge_u32 s2, 256")
    a(f"s_cbranch_scc1 K_exit")
    stamp(a, 0)
    if PROF:
        for i in range(1, 15): a(f"s_mov_b32 {s(70+2*i)}, 0")
    a(f"s_load_dwordx16 s[8:23], s[0:1], 0")
    a(f"s_load_dwordx4 s[24:27], s[0:1], 64")
    a(f"s_load_dwordx2 s[28:29], s[0:1], 80")
    a(f"v_lshrrev_b32 v1, 6, v0")
    a(f"s_nop 0")
    a(f"v_readfirstlane_b32 {s(sW)}, v1")
    assert MAP84
    a(f"s_cmp_lt_u32 {s(sW)}, 4")
    a(f"s_cbranch_scc1 A_start")
    a(f"s_cmp_lt_u32 {s(sW)}, 7")
    a(f"s_cbranch_scc1 G_start")
    gen_kv(a, 0)
    a(".p2align 6")
    a.label("V_start")
    gen_kv(a, 1)
    a(".p2align 6")
    a.label("A_start")
    gen_a(a)
    a.label("K_exit")
    a("s_endpgm")
    a(".p2align 6")
    a.label("G_start")
    gen_g(a)
    pr = check_hazards(a.lines, name)
    for p in pr[:5]: print("HAZARD", p)
    launch = f"; @launch grid=(256,1,1) block=(512,1,1) lds={LDS_TOTAL}\n"
    txt = hdr + launch + a.text() + '.section .rodata,"a"\n.p2align 6\n' + descriptor(name)
    open(out, "w").write(txt)
    print("wrote", out, len(txt), "bytes; LDS", LDS_TOTAL)

if __name__ == "__main__":
    main(sys.argv[1] if len(sys.argv) > 1 and not sys.argv[1].startswith("--") else "cdna_kernels/" + NAME + ".s")
```

```python
import sys, struct
from asmlib import Asm, v, s, check_hazards

NAME = "parallel_sum__grouped_kv_mqa__dense_activation_relu__prompt"
QF, KF, VF, FL_KV, FL_H, EP, OF, HF = 0x040000, 0x300000, 0x310000, 0x320000, 0x328000, 0x32A000, 0x400000, 0x600000
HSTR = 88
WS_SIZE = 0x1000000
CSCALE = 0x3eb8aa3b
BIAS = 96.0
def f2u(x): return struct.unpack("<I", struct.pack("<f", x))[0]
def opt(name, default):
    for a_ in sys.argv[1:]:
        if a_.startswith("--" + name + "="): return int(a_.split("=")[1])
    return default
PROF = "--prof" in sys.argv
PROF_OFF = 0xF00000
HPROF = "--hprof" in sys.argv
FORCE_FB = "--forcefb" in sys.argv
DP0 = opt("dp0", 3)
DPRE = opt("dpre", 7)
SPIN_MAX = 1 << 15
APRIO = opt("aprio", 1)
GHI = opt("ghi", 3)
GLO = opt("glo", 0)
PSLEEP = opt("psleep", 0)
W1D = opt("w1d", 12)
W1ROT = opt("w1rot", 7)
KVFIRST = opt("kvfirst", 1)
DBG = opt("dbg", 0)
F1PRIO = opt("f1prio", 0)
KVROT = opt("kvrot", 1)
F2ROT = opt("f2rot", 1)
MAP84 = opt("map84", 1)
FD = opt("fd", 6)
F1W = opt("f1w", 0); QLA = opt("qla", 5)
NREP = opt("nrep", 8); RSTR = opt("rstr", 70656); FL_KV = opt("flkv", 0x340000); LSTR = opt("lstr", 640)
assert FL_KV + 7*RSTR + 7*LSTR + 128 <= OF and (8*LSTR <= RSTR or 8*RSTR <= LSTR)
FLW = opt("flw", 0)
OST = opt("ost", 0)
WOPF = opt("wopf", 1)
RSL = opt("rsl", 0)
NPOLL = opt("npoll", 1); PGAP = opt("pgap", 4); ASL = opt("asl", 0)
GX = opt("gx", 0)
W1F = opt("w1f", 8); W1POS = opt("w1pos", 99)
VFULL = opt("vfull", 1)
NS = 2; KSP = opt("ksp", 1); WKPF = opt("wkpf", 0); XP = opt("xp", 0x14735260); KHI = opt("khi", 1); SL1 = opt("sl1", 1); SL2 = opt("sl2", 4); SL3 = opt("sl3", 2)
SPOS = opt("spos", 1); GX4 = opt("gx4", 0); CSL = opt("csl", 0); KLS = opt("kls", 0)
DEF = opt("def", 1); MSK = opt("msk", 1); MPD = opt("mpd", 0); MSL = opt("msl", 0); MSP = opt("msp", 4); PRE2 = opt("pre2", 1)
P1 = opt("p1", 2); PQ = opt("pq", 5); P0 = opt("p0", 10)

sW, sB, sG = 3, 4, 5
sPX, sPWQ, sPWK, sPWV, sPWO, sPBX, sPW1, sPW2 = 8, 10, 12, 14, 16, 18, 20, 22
sPOUT, sPDBG, sPWS = 24, 26, 28
sC, sJ = 30, 31
rX, rWA, rWB, rWS, rOUT = 32, 36, 40, 44, 48
sTAG = 52
sSPIN = 54
T = 56

XN_STRIDE = 1040
L_STG = 0
L_R2 = 64 * XN_STRIDE
L_KROT = L_R2
L_L = L_R2 + 16384
L_QO = L_L + 8192
L_BNC = L_QO + 5 * 8192
assert L_BNC == L_R2 + 65536
L_QT = L_QO + 7 * 8192
L_C = L_QT + 8192
L_SY = L_C + 4096
LDS_TOTAL = L_SY + 1024
TID_OFF = 49152
SY_LN, SY_WQ, SY_KVRDY, SY_QCNT, SY_XFREE, SY_HCNT, SY_RED1 = 0, 4, 8, 12, 16, 20, 28
SY_CF, SY_RED2, SY_WO, SY_RS, SY_KS = 32, 48, 52, 256, 24
L_KS = L_BNC + 3 * 4096

class VM:
    def __init__(self, a): self.a, self.q = a, []
    def issue(self, tag, txt):
        self.a(txt); self.q.append(tag)
        assert len(self.q) < 4000
    def n_after(self, tags):
        if not isinstance(tags, (list, set)): tags = [tags]
        idx = max(i for i, t in enumerate(self.q) if t in tags)
        return len(self.q) - 1 - idx
    def wait(self, tags, extra=""):
        n = self.n_after(tags)
        assert n <= 63, n
        self.a(f"s_waitcnt vmcnt({n}){extra}")
    def drained(self): self.q = []

def stamp(a, i):
    if PROF: a(f"s_memrealtime {s(70+2*i,2)}")
def endpgm(a, n):
    if PROF:
        a("s_waitcnt vmcnt(0)")
        stamp(a, n); n += 1
        a("s_waitcnt lgkmcnt(0)")
        a("s_mov_b64 exec, 1")
        for i in range(15):
            a(f"v_mov_b32 {v(240+i)}, {s(70+2*i)}")
        a(f"v_mov_b32 v255, 15")
        a(f"s_lshl_b32 s6, s2, 3")
        a(f"s_add_u32 s6, s6, {s(sW)}")
        a(f"s_lshl_b32 s6, s6, 6")
        a(f"s_add_u32 s6, s6, {PROF_OFF}")
        a(f"v_mov_b32 v239, 0")
        for q in range(4):
            a(f"buffer_store_dwordx4 {v(240+4*q,4)}, v239, {s(rWS,4)}, s6 offen offset:{16*q}")
    if PROF and HPROF:
        n -= 1
        isA = n == 11
        srd(a, rX, sPDBG, 256)
        def amax(word, val):
            a(f"v_mov_b32 v238, {val}")
            a(f"buffer_atomic_umax v238, v239, {s(rX,4)}, 0 offen offset:{4*word} sc1")
            a(f"s_waitcnt vmcnt(0)")
        a(f"s_not_b32 s6, s70")
        amax(0, "s6"); amax(1, "s70"); amax(14, s(70+2*n))
        if isA:
            for w_, st_ in enumerate((3, 4, 6, 9, 10, 11)): amax(2 + w_, s(70+2*st_))
        else:
            lab = a.newlabel("HP")
            a(f"s_cmp_eq_u32 {s(sJ)}, 3")
            a(f"s_cbranch_scc1 {lab}")
            for w_, st_ in enumerate((3, 5, 6)): amax(8 + w_, s(70+2*st_))
            a(f"s_endpgm")
            a.label(lab)
            for w_, st_ in enumerate((1, 3, 13)): amax(11 + w_, s(70+2*st_))
            a(f"s_not_b32 s6, {s(70+2*13)}")
            amax(15, "s6")
    a("s_endpgm")

def srd(a, r, ptr, size):
    a(f"s_mov_b32 {s(r)}, {s(ptr)}")
    a(f"s_and_b32 {s(r+1)}, {s(ptr+1)}, 0xffff")
    a(f"s_mov_b32 {s(r+2)}, {size}")
    a(f"s_mov_b32 {s(r+3)}, 0x20000")

def ids(a):
    a(f"s_and_b32 s6, s2, 7")
    if XP:
        a(f"s_lshl_b32 s6, s6, 2")
        a(f"s_lshr_b32 s6, {XP:#x}, s6")
        a(f"s_and_b32 s6, s6, 7")
    a(f"s_lshr_b32 s7, s2, 3")
    if MAP84:
        a(f"s_and_b32 {s(sG)}, s7, 3")
        if GX: a(f"s_xor_b32 {s(sG)}, {s(sG)}, {GX}")
        a(f"s_and_b32 {s(sB)}, s6, 1")
        a(f"s_lshl2_add_u32 {s(sG)}, {s(sB)}, {s(sG)}")
        if GX4: a(f"s_xor_b32 {s(sG)}, {s(sG)}, 4")
        a(f"s_lshr_b32 s6, s6, 1")
        a(f"s_lshr_b32 s7, s7, 2")
        a(f"s_lshl3_add_u32 {s(sB)}, s6, s7")
    else:
        a(f"s_and_b32 {s(sG)}, s7, 7")
        a(f"s_lshr_b32 s7, s7, 3")
        a(f"s_lshl2_add_u32 {s(sB)}, s6, s7")
    a(f"s_lshl3_add_u32 {s(sC)}, {s(sB)}, {s(sG)}")
    a(f"v_and_b32 v1, 63, v0")

def args_ready(a):
    a(f"s_waitcnt lgkmcnt(0)")
    a(f"s_barrier")
    a(f"s_add_u32 s6, {s(sPWS)}, {EP}")
    a(f"s_addc_u32 s7, {s(sPWS+1)}, 0")
    a(f"s_load_dwordx2 {s(sTAG,2)}, s[6:7], 0")

def fix_tag(a):
    a(f"s_add_u32 {s(sTAG)}, {s(sTAG)}, 1")
    a(f"s_addc_u32 {s(sTAG+1)}, {s(sTAG+1)}, 0")

def spin_begin(a, name):
    a(f"s_mov_b32 {s(sSPIN)}, {SPIN_MAX}")
    a.label(name + "_top")
def spin_retry(a, name, sleep=1):
    a(f"s_sleep {sleep}")
    a(f"s_sub_u32 {s(sSPIN)}, {s(sSPIN)}, 1")
    a(f"s_cmp_lg_u32 {s(sSPIN)}, 0")
    a(f"s_cbranch_scc1 {name}_top")
    a.label(name + "_ok")

def lds_wait(a, name, vaddr, off, val, vt, sleep=1):
    spin_begin(a, name)
    a(f"ds_read_b32 {v(vt)}, {v(vaddr)} offset:{off}")
    a(f"s_waitcnt lgkmcnt(0)")
    a(f"v_readfirstlane_b32 s6, {v(vt)}")
    a(f"s_cmp_ge_u32 s6, {val}")
    a(f"s_cbranch_scc1 {name}_ok")
    spin_retry(a, name, sleep)

def lds_inc(a, vsy, off, vone):
    a(f"s_mov_b64 exec, 1")
    a(f"ds_add_u32 {v(vsy)}, {v(vone)} offset:{off}")
    a(f"s_mov_b64 exec, -1")

def publish(a, name, vsy, off, last, vone, vt, flbase):
    a(f"s_lshl_b32 s6, {s(sB)}, 7")
    a(f"s_lshl3_add_u32 s6, {s(sG)}, s6")
    a(f"s_add_u32 s7, s6, {flbase}")
    a(f"v_mov_b32 {v(vt)}, {s(sTAG)}")
    a(f"v_mov_b32 {v(vt+1)}, {s(sTAG+1)}")
    a(f"s_mov_b64 exec, 1")
    a(f"s_waitcnt vmcnt(0)")
    if last > 0:
        a(f"ds_add_rtn_u32 {v(vt+2)}, {v(vsy)}, {v(vone)} offset:{off}")
        a(f"s_waitcnt lgkmcnt(0)")
        a(f"v_readfirstlane_b32 s6, {v(vt+2)}")
        a(f"s_cmp_eq_u32 s6, {last}")
        a(f"s_cbranch_scc0 {name}_skip")
    a(f"buffer_store_dwordx2 {v(vt,2)}, off, {s(rWS,4)}, s7 sc1")
    a.label(name + "_skip")
    a(f"s_mov_b64 exec, -1")

def lds_wait2(a, name, vaddr, off, val, vt, sleep=1):
    spin_begin(a, name)
    a(f"ds_read2_b32 {v(vt,2)}, {v(vaddr)} offset0:{off//4} offset1:{off//4+1}")
    a(f"s_waitcnt lgkmcnt(0)")
    a(f"v_add_u32 {v(vt)}, {v(vt)}, {v(vt+1)}")
    a(f"s_nop 0")
    a(f"v_readfirstlane_b32 s6, {v(vt)}")
    a(f"s_cmp_ge_u32 s6, {val}")
    a(f"s_cbranch_scc1 {name}_ok")
    spin_retry(a, name, sleep)

def gen_a(a):
    vm = VM(a)
    a("s_setprio 2")
    ids(a)
    vKR, vQO, vIDX, vCA, vQV = 2, 3, 4, 6, 7
    Q, KROT, S0, S1_, C, O, KR, VR = 8, 12, 16, 32, 48, 64, 80, 128
    rot = (0, 4, 8, 12)
    res = [t for t in range(16) if t not in rot]
    kreg = lambda t: KROT if t in rot else KR + 4*res.index(t)
    kslot = lambda t: (t//8)*8192 + ((t//4) & 1)*1024
    sMASK, sKB, sVB, sKD, sPH = T, T+2, T+6, T+10, T+11
    sONES, sLO, sHI = T+12, T+13, 55
    vXW, vRSW, vTR, vXR, vRSR, vQT, vXL = 8, 9, 10, 11, 12, kreg(11)+3, 15
    vSY, vQ0, vZA = kreg(11), kreg(11)+1, kreg(11)+2
    vCW, vCF, vCP, vONE = kreg(13), kreg(13)+1, kreg(13)+2, kreg(13)+3
    XRAW, TMP = 16, 96
    t0, t1, t2, t3, t4, t5 = 96, 97, 98, 99, 100, 101
    a(f"v_lshrrev_b32 {v(t0)}, 3, v1")
    a(f"v_and_b32 {v(t1)}, 7, v1")
    a(f"v_lshlrev_b32 {v(vXL)}, 10, {v(t0)}")
    a(f"v_lshl_add_u32 {v(vXL)}, {v(t1)}, 4, {v(vXL)}")
    a(f"s_lshl_b32 s6, {s(sW)}, 4")
    a(f"v_add_u32 {v(t0)}, s6, {v(t0)}")
    a(f"v_mul_u32_u24 {v(vXW)}, {XN_STRIDE}, {v(t0)}")
    a(f"v_lshl_add_u32 {v(vXW)}, {v(t1)}, 4, {v(vXW)}")
    a(f"v_mov_b32 {v(vSY)}, {L_SY}")
    a(f"v_lshl_add_u32 {v(vRSW)}, {v(t0)}, 2, {v(vSY)}")
    a(f"v_mov_b32 {v(vONE)}, 1")
    a(f"s_lshl_b32 s6, {s(sW)}, 8")
    a(f"s_add_u32 s6, s6, {L_L + 128}")
    a(f"v_lshlrev_b32 {v(vZA)}, 10, {v(t1)}")
    a(f"v_add_u32 {v(vZA)}, s6, {v(vZA)}")
    a(f"v_lshrrev_b32 {v(t2)}, 5, v1")
    a(f"v_bfe_u32 {v(t3)}, v1, 2, 2")
    a(f"v_lshlrev_b32 {v(vTR)}, 10, {v(t2)}")
    a(f"v_lshl_add_u32 {v(vTR)}, {v(t3)}, 7, {v(vTR)}")
    a(f"v_bfe_u32 {v(t4)}, v1, 4, 1")
    a(f"v_lshl_add_u32 {v(vTR)}, {v(t4)}, 5, {v(vTR)}")
    a(f"v_and_b32 {v(t4)}, 3, v1")
    a(f"v_lshl_add_u32 {v(vTR)}, {v(t4)}, 3, {v(vTR)}")
    a(f"v_lshl_add_u32 {v(vCP)}, {v(t4)}, 2, {v(vSY)}")
    a(f"v_lshrrev_b32 {v(t3)}, 1, {v(t3)}")
    a(f"s_and_b32 s6, {s(sW)}, 1")
    a(f"s_lshr_b32 s7, {s(sW)}, 1")
    a(f"v_xor_b32 {v(t3)}, s6, {v(t3)}")
    a(f"v_lshl_add_u32 {v(vTR)}, {v(t3)}, 6, {v(vTR)}")
    a(f"v_add_u32 {v(vTR)}, {L_R2}, {v(vTR)}")
    a(f"s_lshl2_add_u32 s6, s6, s7")
    a(f"s_lshl_b32 s6, s6, 10")
    a(f"v_lshlrev_b32 {v(t5)}, 4, v1")
    a(f"v_add_u32 {v(vQ0)}, {L_QT}, {v(t5)}")
    a(f"v_add_u32 {v(vQT)}, s6, {v(vQ0)}")
    a(f"v_and_b32 {v(t0)}, 31, v1")
    a(f"s_lshl_b32 s6, s7, 5")
    a(f"v_add_u32 {v(t3)}, s6, {v(t0)}")
    a(f"v_mul_u32_u24 {v(vXR)}, {XN_STRIDE}, {v(t3)}")
    a(f"v_lshl_add_u32 {v(vXR)}, {v(t2)}, 4, {v(vXR)}")
    a(f"v_lshl_add_u32 {v(vRSR)}, {v(t3)}, 2, {v(vSY)}")
    a(f"s_mov_b32 {s(sONES)}, 0x3f803f80")
    a(f"s_mov_b32 {s(sLO)}, 0x00003f80")
    a(f"s_mov_b32 {s(sHI)}, 0x3f800000")
    a(f"s_mov_b32 {s(sMASK)}, 0x0000ffff")
    a(f"s_mov_b32 {s(sMASK+1)}, 0x0000ffff")
    a(f"s_lshl_b32 {s(sKD)}, {s(sW)}, 11")
    a(f"s_add_u32 {s(sKD)}, {s(sKD)}, {L_KROT}")
    a(f"v_add_u32 {v(vKR)}, {s(sKD)}, {v(t5)}")
    a(f"s_lshl_b32 s6, {s(sW)}, 11")
    a(f"s_add_u32 s7, s6, {L_QO}")
    a(f"v_add_u32 {v(vQO)}, s7, {v(t5)}")
    a(f"v_mov_b32 {v(vIDX)}, 0xdddddddd")
    a(f"v_mov_b32 {v(vIDX+1)}, 0xdddddddd")
    a(f"v_lshlrev_b32 {v(vCA)}, 4, {v(t0)}")
    a(f"v_add_u32 {v(vCA)}, {L_C}, {v(vCA)}")
    a(f"s_and_b32 s6, {s(sW)}, 1")
    a(f"s_lshr_b32 s7, {s(sW)}, 1")
    a(f"s_lshl2_add_u32 s7, s6, s7")
    a(f"s_lshl_b32 s7, s7, 9")
    a(f"v_add_u32 {v(vCW)}, s7, {v(vCA)}")
    a(f"s_lshl_b32 s7, {s(sW)}, 2")
    a(f"v_add_u32 {v(vCF)}, s7, {v(vSY)}")
    a(f"v_and_b32 {v(t3)}, 15, v1")
    a(f"v_lshlrev_b32 {v(vQV)}, 4, {v(t3)}")
    a(f"v_lshl_add_u32 {v(vQV)}, {v(t2)}, 8, {v(vQV)}")
    if VFULL:
        a(f"v_bfe_u32 {v(t4)}, v1, 4, 1")
        a(f"v_lshl_add_u32 {v(vQV)}, {v(t4)}, 9, {v(vQV)}")
    a(f"s_lshl_b32 s6, {s(sW)}, 14")
    a(f"s_add_u32 {s(sVB)}, s6, {VF}")
    a(f"s_add_u32 {s(sKB)}, s6, {KF}")
    a(f"s_sub_u32 {s(sKB)}, {s(sKB)}, {s(sKD)}")
    if KVROT:
        a(f"s_and_b32 s7, {s(sG)}, 3")
        a(f"s_lshl_b32 s7, s7, 12")
    else:
        a(f"s_mov_b32 s7, 0")
    for i in (3, 2, 1, 0):
        a(f"s_xor_b32 s6, s7, {4096*i}")
        a(f"s_add_u32 {s(sKB+i)}, {s(sKB)}, s6")
        a(f"s_add_u32 {s(sVB+i)}, {s(sVB)}, s6")
    a(f"v_cmp_eq_u32 vcc, 20, v1")
    a(f"v_mov_b32 v0, 0x3f80")
    a(f"v_mov_b32 v1, 0")
    a(f"v_cndmask_b32 v0, 0, v0, vcc")
    if VFULL: a(f"v_cmp_eq_u32 vcc, 0, {v(t3)}")
    else: a(f"v_cmp_eq_u32 vcc, 16, {v(t0)}")
    a(f"v_mov_b32 v92, 0x3f803f80")
    a(f"s_lshl_b32 s6, {s(sB)}, 16")
    a(f"v_cndmask_b32 v92, 0, v92, vcc")
    a(f"v_mov_b32 v93, v92")
    a(f"s_lshl_b32 s7, {s(sW)}, 14")
    a(f"s_add_u32 s6, s6, s7")
    a(f"s_add_u32 s7, s6, 8192")
    a(f"s_waitcnt lgkmcnt(0)")
    srd(a, rX, sPX, 2097152)
    a(f"s_barrier")
    for st in range(2):
        for j in range(8):
            vm.issue(("x", st, j), f"buffer_load_dwordx4 {v(XRAW+32*st+4*j,4)}, {v(vXL)}, {s(rX,4)}, s{6+st} offen offset:{128*j}")
    srd(a, rWS, sPWS, WS_SIZE)
    for r in range(128, 256, 2):
        if not VFULL or r & 4: a(f"v_pk_mov_b32 {v(r,2)}, v[92:93], v[92:93]")
    S1, S2 = 80, 82
    for i in range(4): a(f"v_mov_b32 {v(80+i)}, 0")
    inv = f2u(1.0/512)
    k = 0
    for st in range(2):
        for j in range(8):
            vm.wait(("x", st, j))
            for d in range(4):
                x = XRAW + 32*st + 4*j + d
                a(f"v_dot2_f32_bf16 {v(S1+st)}, {v(x)}, {s(sONES)}, {v(S1+st)}")
                a(f"v_dot2_f32_bf16 {v(S2+st)}, {v(x)}, {v(x)}, {v(S2+st)}")
        if st == 1: stamp(a, 1)
        a("s_nop 2")
        for dpp in ("quad_perm:[1,0,3,2]", "quad_perm:[2,3,0,1]", "row_half_mirror"):
            for r in (S1+st, S2+st):
                a(f"v_add_f32_dpp {v(r)}, {v(r)}, {v(r)} {dpp} row_mask:0xf bank_mask:0xf")
            a("s_nop 0")
        for r in (S1+st, S2+st): a(f"v_mul_f32 {v(r)}, {inv:#x}, {v(r)}")
        a(f"v_fma_f32 {v(S2+st)}, -{v(S1+st)}, {v(S1+st)}, {v(S2+st)}")
        a(f"v_max_f32 {v(S2+st)}, 0, {v(S2+st)}")
        a(f"v_cvt_pk_bf16_f32 {v(84+st)}, {v(S1+st)}, {v(S2+st)}")
        a(f"v_lshlrev_b32 {v(S1+st)}, 16, {v(84+st)}")
        r = 84 + st
        rs_ops = [f"v_and_b32 {v(r)}, 0xffff0000, {v(r)}",
                  f"v_add_f32 {v(r)}, {f2u(1e-5):#x}, {v(r)}",
                  f"v_cvt_pk_bf16_f32 {v(r)}, {v(r)}, {v(r)}",
                  f"v_and_b32 {v(r)}, 0xffff0000, {v(r)}",
                  f"v_sqrt_f32 {v(r)}, {v(r)}",
                  f"v_cvt_pk_bf16_f32 {v(r)}, {v(r)}, {v(r)}",
                  f"v_and_b32 {v(r)}, 0xffff0000, {v(r)}",
                  f"v_rcp_f32 {v(r)}, {v(r)}"]
        for j in range(8):
            t = TMP + 8*(k % 2); k += 1
            for d in range(4):
                x = XRAW + 32*st + 4*j + d
                a(f"v_dot2_f32_bf16 {v(t+2*d)}, {v(x)}, {s(sLO)}, {v(S1+st)} neg_lo:[0,0,1]")
                a(f"v_dot2_f32_bf16 {v(t+2*d+1)}, {v(x)}, {s(sHI)}, {v(S1+st)} neg_lo:[0,0,1]")
            a(rs_ops[j])
            for d in range(4):
                x = XRAW + 32*st + 4*j + d
                a(f"v_cvt_pk_bf16_f32 {v(x)}, {v(t+2*d)}, {v(t+2*d+1)}")
            a(f"ds_write_b128 {v(vXW)}, {v(XRAW+32*st+4*j,4)} offset:{128*j + st*8*XN_STRIDE}")
        a(f"ds_write_b32 {v(vRSW)}, {v(84+st)} offset:{SY_RS + 32*st}")
    lds_inc(a, vSY, SY_LN, vONE)
    stamp(a, 2)
    lds_wait2(a, "A_ln", vSY, SY_LN, 7, 96, 0)
    stamp(a, 3)
    ACC, WF, XF = 64, 16, 40
    LA = QLA
    vSC, vFLG, KS = kreg(9), kreg(9)+2, [Q, kreg(10)]
    QA, QB = kreg(14), kreg(15)
    sLD = T + 11
    a(f"ds_read_b32 {v(vSC)}, {v(vRSR)} offset:{SY_RS}")
    def rd(st):
        a(f"ds_read_b64_tr_b16 {v(WF+4*(st%6),2)}, {v(vTR)} offset:{2048*st}")
        a(f"ds_read_b64_tr_b16 {v(WF+4*(st%6)+2,2)}, {v(vTR)} offset:{2048*st+512}")
        a(f"ds_read_b128 {v(XF+4*(st%6),4)}, {v(vXR)} offset:{32*st}")
    def rdks():
        for i in range(NS//2): a(f"ds_read_b128 {v(KS[i],4)}, {v(vQ0)} offset:{1024*i}")
    a(f"v_add_u32 {v(vQ0)}, {(L_KS - L_QT) & 0xffffffff}, {v(vQ0)}")
    assert L_QT - L_KS == 4096
    for st in range(LA): rd(st)
    ex = 0
    for st in range(32):
        if st + LA < 32: rd(st + LA)
        if st == 30:
            a(f"ds_read2_b32 {v(vFLG,2)}, {v(vSY)} offset0:{SY_KVRDY//4} offset1:{SY_KS//4}")
            rdks(); ex = 1 + NS//2
        a(f"s_waitcnt lgkmcnt({3*min(LA, 31-st) + ex})")
        c = "0" if st == 0 else v(ACC, 16)
        a(f"v_mfma_f32_32x32x16_bf16 {v(ACC,16)}, {v(WF+4*(st%6),4)}, {v(XF+4*(st%6),4)}, {c}")
    a(f"s_setprio 3")
    vm.drained()
    def ldK(t, tag):
        vm.issue(tag, f"buffer_load_dwordx4 {v(kreg(t),4)}, {v(vKR)}, {s(rWS,4)}, {s(sKB+t//4)} offen offset:{(t%4)*1024} sc1")
    def dmaK(t, tag):
        a(f"s_add_u32 m0, {s(sKD)}, {kslot(t)}")
        a(f"s_nop 0")
        vm.issue(tag, f"buffer_load_dwordx4 {v(vKR)}, {s(rWS,4)}, {s(sKB+t//4)} offen sc1 lds")
    def group(t, dma=True, regs=True):
        tag = ("g", t)
        if dma and t == 9: dmaK(0, tag)
        if dma and t + 2 in rot: dmaK(t + 2, tag)
        if not regs: return
        if t + 1 in res: ldK(t + 1, tag)
        vm.issue(tag, f"buffer_load_dwordx4 {v(VR+8*t,4)}, {v(vQV)}, {s(rWS,4)}, {s(sVB+t//4)} offen offset:{(t%4)*1024} sc1")
    assert VFULL and DPRE <= 8
    def first_loads():
        vm.drained()
        ldK(0, "k0")
        for t in range(DPRE): group(t, dma=False)
    a(f"v_mul_f32 {v(vSC)}, {CSCALE:#x}, {v(vSC)}")
    a(f"s_waitcnt lgkmcnt({NS//2})")
    a(f"v_readfirstlane_b32 {s(sLD)}, {v(vFLG)}")
    a(f"v_readfirstlane_b32 s7, {v(vFLG+1)}")
    stamp(a, 4)
    a(f"s_cmp_eq_u32 {s(sLD)}, 0")
    a(f"s_cbranch_scc1 A_nol")
    first_loads()
    a.label("A_nol")
    a.nop(8)
    for hh in range(2):
        d = (QA, QB)[hh]
        for i in range(4):
            r = ACC + 8*hh + 2*i
            a(f"v_pk_mul_f32 {v(r,2)}, {v(r,2)}, {v(vSC,2)} op_sel_hi:[1,0]")
        for i in range(4):
            r = ACC + 8*hh + 2*i
            a(f"v_cvt_pk_bf16_f32 {v(d+i)}, {v(r)}, {v(r+1)}")
        a(f"ds_write_b128 {v(vQT)}, {v(d,4)} offset:{2048*hh}")
    a(f"s_cmp_lg_u32 s7, 0")
    a(f"s_waitcnt lgkmcnt(2)")
    a(f"s_cbranch_scc1 A_ks_ok")
    spin_begin(a, "A_ks")
    a(f"ds_read_b32 {v(vFLG)}, {v(vSY)} offset:{SY_KS}")
    rdks()
    a(f"s_waitcnt lgkmcnt(0)")
    a(f"v_readfirstlane_b32 s7, {v(vFLG)}")
    a(f"s_cmp_lg_u32 s7, 0")
    a(f"s_cbranch_scc1 A_ks_ok")
    spin_retry(a, "A_ks", 0)
    for hh in range(2):
        a(f"v_mfma_f32_32x32x16_bf16 {v((S0, C)[hh],16)}, {v(KS[0],4)}, {v((QA, QB)[hh],4)}, 0")
    if NS == 2: a(f"v_mfma_f32_32x32x8_bf16 {v(O,16)}, v[0:1], {v(vIDX,2)}, 0")
    a.nop(10)
    nr = 8*NS
    for base in (S0, C):
        for i in range(0, nr - 2, 2):
            a(f"v_max3_f32 {v(base)}, {v(base)}, {v(base+i+1)}, {v(base+i+2)}")
        a(f"v_max_f32 {v(base)}, {v(base)}, {v(base+nr-1)}")
    for base in (S0, C): a(f"v_mov_b32 {v(base+1)}, {v(base)}")
    a(f"s_nop 0")
    for base in (S0, C): a(f"v_permlane32_swap_b32 {v(base)}, {v(base+1)}")
    if NS == 4: a(f"v_mfma_f32_32x32x8_bf16 {v(O,16)}, v[0:1], {v(vIDX,2)}, 0")
    else: a(f"s_nop 0")
    for base in (S0, C): a(f"v_max_f32 {v(base)}, {v(base)}, {v(base+1)}")
    for base in (S0, C): a(f"v_sub_f32 {v(base)}, {f2u(-BIAS):#x}, {v(base)}")
    for i in range(1, 4):
        for base in (S0, C): a(f"v_mov_b32 {v(base+i)}, {v(base)}")
    a(f"ds_write_b128 {v(vCW)}, {v(S0,4)}")
    a(f"ds_write_b128 {v(vCW)}, {v(C,4)} offset:1024")
    lds_inc(a, vSY, SY_QCNT, vONE)
    stamp(a, 6)
    a(f"s_cmp_lg_u32 {s(sLD)}, 0")
    a(f"s_cbranch_scc1 A_kvb")
    lds_wait(a, "A_kw", vSY, SY_KVRDY, 1, S0, ASL)
    first_loads()
    a.label("A_kvb")
    spin_begin(a, "A_c")
    a(f"ds_read_b32 {v(S0)}, {v(vSY)} offset:{SY_QCNT}")
    a(f"ds_read_b128 {v(Q,4)}, {v(vQ0)} offset:4096")
    for i in range(4): a(f"ds_read_b128 {v(C+4*i,4)}, {v(vCA)}")
    a(f"s_waitcnt lgkmcnt(5)")
    a(f"v_readfirstlane_b32 s6, {v(S0)}")
    a(f"s_cmp_ge_u32 s6, 4")
    a(f"s_cbranch_scc1 A_c_ok")
    spin_retry(a, "A_c", CSL)
    stamp(a, 7)
    for t in range(DPRE): group(t, regs=False)
    a(f"ds_write_b32 {v(vZA)}, v1")
    a(f"ds_write_b32 {v(vCF)}, {v(vONE)} offset:{SY_CF}")
    stamp(a, 9)
    def PV(t, half):
        sb = (S0 if t % 2 == 0 else S1_) + 8*half
        a(f"v_smfmac_f32_32x32x32_bf16 {v(O,16)}, {v(VR+8*t+4*half,4)}, {v(sb,8)}, {v(vIDX)}")
    def QK(t):
        sb = S0 if t % 2 == 0 else S1_
        a(f"v_mfma_f32_32x32x16_bf16 {v(sb,16)}, {v(kreg(t),4)}, {v(Q,4)}, {v(C,16)}")
    def rdK(t): a(f"ds_read_b128 {v(KROT,4)}, {v(vKR)} offset:{kslot(t)}")
    def rdQC(p):
        a(f"ds_read_b128 {v(Q,4)}, {v(vQV)} offset:{1024*p}")
        for i in range(4): a(f"ds_read_b128 {v(C+4*i,4)}, {v(vCA)} offset:{512*p}")
    def flush(p):
        r, o = (vQO, 8192*p) if p < 7 else (vKR, 0)
        a(f"ds_write_b128 {v(r)}, {v(O,4)} offset:{o}")
        a(f"ds_write_b128 {v(r)}, {v(O+4,4)} offset:{o+1024}")
        a(f"ds_write_addtid_b32 {v(O+8)} offset:{TID_OFF + 1024*p}")
    vm.wait("k0", " lgkmcnt(2)")
    a(f"s_setprio {APRIO}")
    QK(0)
    a.nop(12)
    for t in range(16):
        cur = S0 if t % 2 == 0 else S1_
        E = lambda i: a(f"v_exp_f32 {v(cur+i)}, {v(cur+i)}")
        if t == 0: stamp(a, 1)
        if t == 4: stamp(a, 2)
        if t == 8: stamp(a, 5)
        if t == 12: stamp(a, 8)
        E(0); E(1)
        if t > 0: PV(t-1, 1)
        if t + DPRE < 16: group(t + DPRE)
        if t == 16 - DPRE:
            a(f"s_sub_u32 s6, {L_QT}, {s(sKD)}")
            a(f"v_add_u32 {v(vQV)}, s6, {v(vKR)}")
            a(f"s_lshl_b32 s6, {s(sW)}, 8")
            a(f"s_add_u32 m0, s6, {L_L - TID_OFF}")
        E(2); E(3); E(4)
        nt = (t + 1) % 16
        vm.wait(("g", t), " lgkmcnt(0)" if nt in rot else "")
        QK(nt)
        if (t + 2) % 16 in rot: rdK((t + 2) % 16)
        if t == 15: rdK(4)
        for i in range(5, 10):
            if VFULL and i < 7:
                for q in range(2): a(f"v_permlane16_swap_b32 {v(VR+8*t+2*(i-5)+q)}, {v(VR+8*t+4+2*(i-5)+q)}")
            E(i)
        PV(t, 0)
        if t == 14: rdQC(1)
        for i in range(10, 16): E(i)
    stamp(a, 10)
    if PROF: a(f"s_memtime {s(70+2*12,2)}")
    for p in range(1, 8):
      for t in range(16):
        cur = S0 if t % 2 == 0 else S1_
        E = lambda i: a(f"v_exp_f32 {v(cur+i)}, {v(cur+i)}")
        nt = (t + 1) % 16
        if t == 0:
            E(0); E(1); PV(15, 1); E(2); E(3); E(4); QK(1)
            for i in range(5, 13):
                E(i)
                if p == 6 and i == 6: a(f"v_readfirstlane_b32 s6, {v(vIDX+1)}")
                if p == 6 and i == 8: a(f"s_cmp_lt_u32 s6, 4")
                if p == 6 and i == 8: a(f"s_cbranch_scc1 A_chk")
                if p == 6 and i == 8: a.label("A_back")
                if p == 6 and i == 9: a(f"v_mov_b32 {v(vIDX+1)}, {v(vIDX)}")
            flush(p - 1)
            a(f"v_mfma_f32_32x32x8_bf16 {v(O,16)}, v[0:1], {v(vIDX,2)}, 0")
            E(13); E(14); E(15)
            PV(0, 0)
            continue
        last = p == 7 and t == 15
        p1 = max(P1, 3) if t == 1 else P1
        pq = max(PQ, p1)
        for i in range(16 + 1):
            if i == p1: PV(t-1, 1)
            if i == pq and not last:
                if nt in rot: a(f"s_waitcnt lgkmcnt(0)")
                QK(nt)
                if nt in rot and not (p == 7 and nt == 12): rdK((nt + 4) % 16)
            if i == P0: PV(t, 0)
            if i == 10 and t == 14 and p < 7:
                rdQC(p + 1)
                if p == 5: a(f"ds_read_b32 {v(vIDX+1)}, {v(vCA)} offset:{L_SY + SY_XFREE - L_C}")
            if i < 16: E(i)
    if PROF: a(f"s_memtime {s(70+2*13,2)}")
    stamp(a, 14)
    a(f"s_nop 1")
    PV(15, 1)
    a.nop(12)
    flush(7)
    endpgm(a, 11)
    a.label("A_chk")
    lds_wait(a, "A_x", vCA, L_SY + SY_XFREE - L_C, 4, vIDX+1)
    a(f"s_branch A_back")

def setup_u(a, vU=4, vONE=3):
    a(f"v_lshrrev_b32 v8, 3, v1")
    a(f"v_and_b32 v9, 7, v1")
    a(f"v_lshrrev_b32 v10, 2, v1")
    a(f"v_and_b32 v10, 4, v10")
    a(f"v_xor_b32 v10, v9, v10")
    a(f"v_lshlrev_b32 {v(vU)}, 10, v8")
    a(f"v_lshl_add_u32 {v(vU)}, v10, 4, {v(vU)}")
    a(f"s_lshl_b32 s6, {s(sG)}, 7")
    a(f"v_add_u32 {v(vU)}, s6, {v(vU)}")
    a(f"v_mov_b32 {v(vONE)}, 1")

def gen_g(a):
    vm = VM(a)
    ids(a)
    a(f"s_sub_u32 {s(sJ)}, {s(sW)}, 4")
    vSY, vONE, vU = 2, 3, 4
    a(f"v_mov_b32 {v(vSY)}, {L_SY}")
    a(f"v_lshl_add_u32 v12, v1, 2, {v(vSY)}")
    a(f"v_mov_b32 v13, 0")
    a(f"ds_write_b32 v12, v13")
    setup_u(a)
    sP, sWo, sRho, sW0 = T+1, T+2, T+3, T+4
    vW1, vBW, vT0, vT1, vXR, vX0 = 5, 6, 7, 11, 12, 48
    ACC, AF, XF, ST = 64, 16, 32, 128
    a(f"s_mul_i32 {s(sP)}, {s(sG)}, 3")
    a(f"s_cmp_eq_u32 {s(sG)}, 7")
    a(f"s_cselect_b32 {s(sP)}, 20, {s(sP)}")
    a(f"s_add_u32 {s(sP)}, {s(sP)}, {s(sJ)}")
    a(f"s_movk_i32 s6, 2752")
    a(f"v_lshlrev_b32 v13, 4, v9")
    a(f"v_mad_u32_u24 {v(vW1)}, v8, s6, v13")
    a(f"s_lshl_b32 {s(sW0)}, {s(sP)}, 7")
    a(f"s_and_b32 {s(sRho)}, {s(sB)}, {W1ROT}")
    a(f"s_lshl_b32 {s(T+6)}, {s(sRho)}, 13")
    a(f"s_lshl_b32 {s(T+7)}, {s(sJ)}, 10")
    args_ready(a)
    srd(a, rWA, sPWQ, 524288)
    srd(a, rWB, sPW1, 1409024)
    a(f"s_lshr_b32 s6, {s(sG)}, 1")
    a(f"s_add_u32 s6, s6, {s(sJ)}")
    a(f"s_cmp_eq_u32 s6, 5")
    a(f"s_cselect_b32 {s(rWB+2)}, 0, {s(rWB+2)}")
    a(f"s_cselect_b32 {s(T+8)}, 1, 0")
    R = W1D
    assert R % 2 == 0 and 4 <= R <= 32
    def ldw(u):
        if u % 8 == 0:
            a(f"s_xor_b32 s6, {s(sRho)}, {u//8}")
            a(f"s_mul_i32 s6, s6, {64*2752}")
            a(f"s_add_u32 {s(sWo)}, {s(sW0)}, s6")
        if not (DBG & 2): vm.issue(("w1", u), f"buffer_load_dwordx4 {v(ST+4*(u%R),4)}, {v(vW1)}, {s(rWB,4)}, {s(sWo)} offen")
        if u % 8 != 7: a(f"s_add_u32 {s(sWo)}, {s(sWo)}, {8*2752}")
    for i in range(22):
        if i == W1POS:
            for u in range(W1F): ldw(u)
        if i == 21: a(f"s_mov_b32 {s(T+7)}, {63*1024}")
        a(f"s_xor_b32 s6, {s(T+7)}, {s(T+6)}")
        a(f"s_add_u32 m0, s6, {L_R2}")
        a(f"s_lshl_b32 s6, s6, 3")
        vm.issue("wq", f"buffer_load_dwordx4 {v(vU)}, {s(rWA,4)}, s6 offen lds")
        if i < 20: a(f"s_add_u32 {s(T+7)}, {s(T+7)}, 3072")
    srd(a, rWS, sPWS, WS_SIZE)
    a(f"s_cmp_eq_u32 {s(T+8)}, 1")
    a(f"s_cbranch_scc1 G_idle")
    for u in range(W1F if W1POS < 22 else 0, R): ldw(u)
    a(f"s_lshl_b32 s6, {s(sJ)}, 12")
    a(f"s_add_u32 s6, s6, {L_BNC}")
    a(f"v_lshlrev_b32 {v(vBW)}, 7, v8")
    a(f"v_lshl_add_u32 {v(vBW)}, v10, 4, {v(vBW)}")
    a(f"v_add_u32 {v(vBW)}, s6, {v(vBW)}")
    a(f"v_lshrrev_b32 v13, 5, v1")
    a(f"v_bfe_u32 v14, v1, 2, 2")
    a(f"v_lshlrev_b32 {v(vT0)}, 10, v13")
    a(f"v_lshl_add_u32 {v(vT0)}, v14, 7, {v(vT0)}")
    a(f"v_bfe_u32 v15, v1, 4, 1")
    a(f"v_lshl_add_u32 {v(vT0)}, v15, 5, {v(vT0)}")
    a(f"v_and_b32 v15, 3, v1")
    a(f"v_lshl_add_u32 {v(vT0)}, v15, 3, {v(vT0)}")
    a(f"v_lshrrev_b32 v14, 1, v14")
    a(f"v_lshl_add_u32 {v(vT0)}, v14, 6, {v(vT0)}")
    a(f"v_xor_b32 {v(vT1)}, 64, {v(vT0)}")
    a(f"v_add_u32 {v(vT0)}, s6, {v(vT0)}")
    a(f"v_add_u32 {v(vT1)}, s6, {v(vT1)}")
    a(f"v_and_b32 v14, 31, v1")
    a(f"v_mul_u32_u24 {v(vXR)}, {XN_STRIDE}, v14")
    a(f"v_lshl_add_u32 {v(vXR)}, v13, 4, {v(vXR)}")
    for q in range(8):
        a(f"s_xor_b32 s6, {s(sRho)}, {q}")
        a(f"s_lshl_b32 s6, s6, 7")
        a(f"v_add_u32 {v(vX0+q)}, s6, {v(vXR)}")
    for i in range(4): a(f"v_mov_b32 {v(56+i)}, -1")
    a(f"v_lshlrev_b32 v60, 4, v1")
    a(f"s_lshl1_add_u32 {s(T+5)}, {s(sC)}, {s(sJ)}")
    a(f"s_lshl_b32 {s(T+5)}, {s(T+5)}, 12")
    a(f"s_add_u32 {s(T+5)}, {s(T+5)}, {OF}")
    def wr1(u):
        if not (DBG & 1): vm.wait(("w1", u))
        a(f"ds_write_b128 {v(vBW)}, {v(ST+4*(u%R),4)} offset:{(u%4)*1024}")
    def trd(st, ct):
        b = AF + 8*(st % 2) + 4*ct; o = (st % 2)*2048
        a(f"ds_read_b64_tr_b16 {v(b,2)}, {v(vT1 if ct else vT0)} offset:{o}")
        a(f"ds_read_b64_tr_b16 {v(b+2,2)}, {v(vT1 if ct else vT0)} offset:{o+512}")
    def xrd(st, rt):
        a(f"ds_read_b128 {v(XF+8*(st%2)+4*rt,4)}, {v(vX0+st//4)} offset:{32*(st%4) + rt*32*XN_STRIDE}")
    vm.wait("wq")
    lds_inc(a, vSY, SY_WQ, vONE)
    for u in range(4): wr1(u)
    trd(0, 0); trd(0, 1)
    a(f"s_waitcnt lgkmcnt(0)")
    for u in range(R, R + 4): ldw(u)
    fix_tag(a)
    stamp(a, 1)
    lds_wait(a, "G_ln", vSY, SY_LN, 4, 61, 1)
    if F1W: lds_wait(a, "G_q", vSY, SY_QCNT, F1W, 61, 1)
    stamp(a, 2)
    if F1PRIO: a(f"s_setprio {F1PRIO}")
    xrd(0, 0); xrd(0, 1)
    for st in range(32):
        a(f"s_waitcnt lgkmcnt({2 if 0 < st < 31 else 0})")
        if st == 10: stamp(a, 13)
        if st == 20: stamp(a, 14)
        k = 0
        for ct in range(2):
            for rt in range(2):
                acc = ACC + 32*ct + 16*rt
                c = "0" if st == 0 else v(acc, 16)
                a(f"v_mfma_f32_32x32x16_bf16 {v(acc,16)}, {v(AF+8*(st%2)+4*ct,4)}, {v(XF+8*(st%2)+4*rt,4)}, {c}")
                if k < 2 and st + 1 < 32:
                    trd(st + 1, k); xrd(st + 1, k)
                if k >= 2 and st + 2 < 32:
                    u = 2*(st+2) + k - 2
                    wr1(u)
                    if u + R < 64: ldw(u + R)
                k += 1
    stamp(a, 3)
    a(f"s_setprio {GHI}")
    lds_inc(a, vSY, SY_XFREE, vONE)
    a(f"s_cmp_eq_u32 {s(sJ)}, 2")
    a(f"s_cbranch_scc1 G_nop")
    for p in range(4):
        a(f"buffer_store_dwordx4 v[56:59], v60, {s(rWS,4)}, {s(T+5)} offen offset:{p*1024} sc1")
    a.label("G_nop")
    a(f"v_lshlrev_b32 v8, 4, v1")
    a(f"s_mul_i32 s6, {s(sB)}, {2*HSTR}")
    a(f"s_lshl2_add_u32 s6, {s(sP)}, s6")
    a(f"s_lshl_b32 s6, s6, 10")
    a(f"s_add_u32 s6, s6, {HF}")
    a(f"s_add_u32 s7, s6, {HSTR*1024}")
    k = 0
    for ct in range(2):
        for rt in range(2):
            for hh in range(2):
                d = ST + 4*k; k += 1
                for i in range(4):
                    r = ACC + 32*ct + 16*rt + 8*hh + 2*i
                    a(f"v_cvt_pk_bf16_f32 {v(d+i)}, {v(r)}, {v(r+1)}")
                for i in range(4):
                    a(f"v_pk_max_i16 {v(d+i)}, {v(d+i)}, 0")
                a(f"buffer_store_dwordx4 {v(d,4)}, v8, {s(rWS,4)}, s{6+rt} offen offset:{1024*(2*ct+hh)} sc1")
    a.label("G_hpub")
    publish(a, "G_pubh", vSY, SY_HCNT, 2, vONE, 16, FL_H)
    stamp(a, 4)
    a.label("G_ffn2")
    if DBG & 4: a(f"s_branch G_end")
    a(f"s_setprio {GHI}")
    vm.drained()
    sStg, sWo, sHo, sCT, sRT, sXO, sWj, sHb = T, T+2, T+3, T+4, T+5, T+6, T+7, T+9
    vA1, vB0, vB1, vT0, vT1, vXO, vL16, vTW = 5, 6, 7, 11, 12, 10, 13, 14
    ACC, AF, XD, XU = 64, 16, 144, 128
    BFS = [32, 40, 48, 56, 128, 136]
    WFR = lambda hh, g2: (160 + 32*hh if hh < 3 else 128) + 4*g2
    assert FD <= 6
    a(f"s_lshl_b32 {s(sWj)}, {s(sJ)}, 14")
    a(f"s_mul_i32 {s(sStg)}, {s(sJ)}, 12288")
    a(f"s_add_u32 {s(sStg)}, {s(sStg)}, {L_STG}")
    srd(a, rWA, sPW2, 1409024)
    srd(a, rX, sPX, 2097152)
    srd(a, rOUT, sPOUT, 2097152)
    a(f"v_add_u32 {v(vA1)}, {8192-1024}, {v(vU)}")
    N = 22
    if F2ROT:
        a(f"s_lshl1_add_u32 s6, {s(sG)}, {s(sB)}")
        a(f"s_and_b32 s6, s6, 7")
        a(f"s_mul_i32 s6, s6, 11")
        a(f"s_lshr_b32 s6, s6, 2")
    else:
        a(f"s_mov_b32 s6, 0")
    a(f"s_lshl_b32 {s(sHo)}, s6, 12")
    a(f"s_lshl_b32 {s(sWo)}, s6, 16")
    a(f"s_add_u32 {s(sWo)}, {s(sWo)}, {s(sWj)}")
    def issueW(i):
        a(f"s_add_u32 m0, {s(sStg)}, {(i % FD)*2048}")
        a(f"s_nop 0")
        vm.issue(("f", i), f"buffer_load_dwordx4 {v(vU)}, {s(rWA,4)}, {s(sWo)} offen lds")
        vm.issue(("f", i), f"buffer_load_dwordx4 {v(vA1)}, {s(rWA,4)}, {s(sWo)} offen offset:1024 lds")
        a(f"s_add_u32 {s(sWo)}, {s(sWo)}, {4*16384}")
        a(f"s_cmp_ge_u32 {s(sWo)}, {N*65536}")
        a(f"s_cselect_b32 {s(sWo)}, {s(sWj)}, {s(sWo)}")
    def issueH(i):
        vm.issue(("f", i), f"buffer_load_dwordx4 {v(BFS[i%FD],4)}, {v(vB0)}, {s(rWS,4)}, {s(sHo)} offen sc1")
        vm.issue(("f", i), f"buffer_load_dwordx4 {v(BFS[i%FD]+4,4)}, {v(vB1)}, {s(rWS,4)}, {s(sHo)} offen sc1")
        a(f"s_add_u32 {s(sHo)}, {s(sHo)}, 4096")
        a(f"s_cmp_ge_u32 {s(sHo)}, {N*4096}")
        a(f"s_cselect_b32 {s(sHo)}, 0, {s(sHo)}")
    a(f"s_and_b32 {s(sCT)}, {s(sJ)}, 1")
    a(f"s_lshr_b32 {s(sRT)}, {s(sJ)}, 1")
    a(f"v_and_b32 v8, 31, v1")
    a(f"v_lshrrev_b32 v9, 5, v1")
    a(f"v_lshlrev_b32 {v(vXO)}, 10, v8")
    a(f"v_lshl_add_u32 {v(vXO)}, v9, 5, {v(vXO)}")
    a(f"s_lshl_b32 s6, {s(sB)}, 16")
    a(f"s_lshl_b32 s7, {s(sRT)}, 15")
    a(f"s_add_u32 {s(sXO)}, s6, s7")
    a(f"s_lshl_b32 s6, {s(sG)}, 7")
    a(f"s_lshl_b32 s7, {s(sCT)}, 6")
    a(f"s_add_u32 s6, s6, s7")
    a(f"s_add_u32 {s(sXO)}, {s(sXO)}, s6")
    for q in range(2):
        vm.issue("xd", f"buffer_load_dwordx4 {v(XD+4*q,4)}, {v(vXO)}, {s(rX,4)}, {s(sXO)} offen offset:{16*q}")
    a(f"v_lshlrev_b32 {v(vL16)}, 4, v1")
    a(f"s_mul_i32 {s(sHb)}, {s(sB)}, {2*HSTR*1024}")
    a(f"s_lshl_b32 s6, {s(sJ)}, 10")
    a(f"s_add_u32 {s(sHb)}, {s(sHb)}, s6")
    a(f"s_add_u32 {s(sHb)}, {s(sHb)}, {HF}")
    a(f"s_mul_i32 s6, {s(sRT)}, {HSTR*1024}")
    a(f"s_add_u32 s7, s6, {s(sHb)}")
    a(f"v_add_u32 {v(vB0)}, s7, {v(vL16)}")
    a(f"s_sub_u32 s6, {HSTR*1024}, s6")
    a(f"s_add_u32 s7, s6, {s(sHb)}")
    a(f"v_add_u32 {v(vB1)}, s7, {v(vL16)}")
    a(f"v_bfe_u32 v16, v1, 2, 2")
    a(f"v_lshl_add_u32 {v(vTW)}, v9, 2, v16")
    a(f"v_lshlrev_b32 {v(vTW)}, 7, {v(vTW)}")
    a(f"v_bfe_u32 v15, v1, 4, 1")
    a(f"v_lshl_add_u32 {v(vTW)}, v15, 4, {v(vTW)}")
    a(f"v_and_b32 v15, 1, v1")
    a(f"v_lshl_add_u32 {v(vTW)}, v15, 5, {v(vTW)}")
    a(f"v_bfe_u32 v15, v1, 1, 1")
    a(f"v_lshl_add_u32 {v(vTW)}, v15, 3, {v(vTW)}")
    a(f"v_lshrrev_b32 v16, 1, v16")
    a(f"v_xor_b32 v16, {s(sCT)}, v16")
    a(f"v_lshl_add_u32 {v(vTW)}, v16, 6, {v(vTW)}")
    assert L_STG == 0
    a(f"v_xor_b32 {v(vT1)}, 64, {v(vTW)}")
    a(f"v_add_u32 {v(vT0)}, {s(sStg)}, {v(vTW)}")
    a(f"v_add_u32 {v(vT1)}, {s(sStg)}, {v(vT1)}")
    a(f"v_and_b32 v16, 3, v1")
    a(f"v_lshl_add_u32 v16, v16, 2, {v(vSY)}")
    spin_begin(a, "G_cf")
    a(f"ds_read_b32 v17, v16 offset:{SY_CF}")
    a(f"s_waitcnt lgkmcnt(0)")
    a(f"v_cmp_eq_u32 vcc, 0, v17")
    a(f"s_nop 0")
    a(f"s_cbranch_vccz G_cf_ok")
    spin_retry(a, "G_cf", 2)
    lds_wait(a, "G_wo", vSY, SY_WO, 1, 16, SL1)
    def wread(hh):
        for g2 in range(8):
            o = 16384*hh + 2048*g2
            a(f"ds_read_b64_tr_b16 {v(WFR(hh,g2),2)}, {v(vTW)} offset:{o}")
            a(f"ds_read_b64_tr_b16 {v(WFR(hh,g2)+2,2)}, {v(vTW)} offset:{o+1024}")
            if g2 % 4 == 3: a(f"s_waitcnt lgkmcnt(4)")
    for hh in range(3): wread(hh)
    a(f"s_waitcnt vmcnt(0) lgkmcnt(0)")
    lds_inc(a, vSY, SY_RED2, vONE)
    a(f"v_and_b32 v15, 7, v1")
    a(f"v_lshlrev_b32 v15, 3, v15")
    lds_wait(a, "G_r2", vSY, SY_RED2, 4, 16)
    stamp(a, 8)
    for i in range(FD - 1): issueW(i)
    a(f"s_lshl_b32 s7, {s(sB)}, 7")
    a(f"s_add_u32 s7, s7, {FL_H}")
    spin_begin(a, "G_h")
    a(f"buffer_load_dwordx2 v[16:17], v15, {s(rWS,4)}, s7 offen sc1")
    a(f"s_waitcnt vmcnt(0)")
    a(f"v_cmp_ne_u64 vcc, {s(sTAG,2)}, v[16:17]")
    a(f"s_nop 0")
    a(f"s_cbranch_vccz G_h_ok")
    spin_retry(a, "G_h", 4)
    stamp(a, 5)
    vm.drained()
    for i in range(FD - 1): issueH(i)
    def aread(i, ct):
        base = AF + 8*(i % 2) + 4*ct; o = (i % FD)*2048
        a(f"ds_read_b64_tr_b16 {v(base,2)}, {v(vT1 if ct else vT0)} offset:{o}")
        a(f"ds_read_b64_tr_b16 {v(base+2,2)}, {v(vT1 if ct else vT0)} offset:{o+1024}")
    vm.wait(("f", 0))
    aread(0, 1); aread(0, 0)
    a(f"s_setprio {GLO}")
    for i in range(N):
        a(f"s_waitcnt lgkmcnt(0)")
        k = 0
        for rt in (1, 0):
            for ct in (1, 0):
                acc = ACC + 16*(2*rt + ct)
                c = "0" if i == 0 else v(acc, 16)
                a(f"v_mfma_f32_32x32x16_bf16 {v(acc,16)}, {v(AF+8*(i%2)+4*ct,4)}, {v(BFS[i%FD]+4*rt,4)}, {c}")
                if k == 0 and i + 1 < N:
                    vm.wait(("f", i + 1)); aread(i + 1, 1)
                if k == 1 and i + 1 < N: aread(i + 1, 0)
                if k == 2 and i + FD - 1 < N: issueW(i + FD - 1)
                if k == 3 and i + FD - 1 < N: issueH(i + FD - 1)
                k += 1
    stamp(a, 6)
    a(f"s_setprio {GHI}")
    vm.drained()
    vOR, vLR, vFL, vFG = 5, 6, 7, 15
    OB, RT_, LV = 80, 16, 48
    vSK, vRS = 152, 156
    sOP, sOC, sLIM, sPHS = T+1, T+3, T+4, T+8
    a(f"v_add_u32 {v(vSK)}, {s(sStg)}, {v(vL16)}")
    for lam in range(1, 4):
        a(f"s_xor_b32 s6, {s(sJ)}, {lam}")
        a(f"s_mul_i32 s6, s6, 12288")
        a(f"v_add_u32 {v(vSK+lam)}, s6, {v(vL16)}")
    a(f"s_lshl_b32 s6, {s(sRT)}, 7")
    a(f"v_lshl_add_u32 {v(vRS)}, v8, 2, {v(vSY)}")
    a(f"v_add_u32 {v(vRS)}, s6, {v(vRS)}")
    a(f"s_lshl_b32 s6, {s(sJ)}, 13")
    a(f"s_add_u32 s6, s6, {L_QO}")
    a(f"v_add_u32 {v(vOR)}, s6, {v(vL16)}")
    for lam in (3, 2, 1):
        for q in range(4):
            a(f"ds_write_b128 {v(vSK)}, {v(ACC+16*lam+4*q,4)} offset:{(lam-1)*4096 + q*1024}")
    lds_inc(a, vSY, SY_RED1, vONE)
    a(f"ds_read_b32 {v(vRS)}, {v(vRS)} offset:{SY_RS}")
    a(f"s_lshl_b32 s6, {s(sJ)}, 10")
    a(f"s_add_u32 s7, s6, {L_L}")
    a(f"v_lshlrev_b32 {v(vLR)}, 2, v8")
    a(f"v_add_u32 {v(vLR)}, s7, {v(vLR)}")
    a(f"v_and_b32 {v(vFG)}, 3, v1")
    a(f"v_lshlrev_b32 {v(vFG)}, 8, {v(vFG)}")
    a(f"v_add_u32 {v(vFL)}, s7, {v(vFG)}")
    a(f"s_lshl_b32 s7, {s(sRT)}, 10")
    a(f"s_add_u32 {s(sOC)}, s7, {L_L}")
    if DEF: a(f"v_add_u32 {v(vFG)}, {L_L + 1024}, {v(vFG)}")
    else: a(f"v_add_u32 {v(vFG)}, {s(sOC)}, {v(vFG)}")
    a(f"s_lshl_b32 {s(sOP)}, {s(sC)}, 13")
    a(f"s_add_u32 {s(sOP)}, {s(sOP)}, s6")
    a(f"s_add_u32 {s(sOP)}, {s(sOP)}, {OF}")
    a(f"s_lshl_b32 {s(sOC)}, {s(sB)}, 16")
    a(f"s_add_u32 {s(sOC)}, {s(sOC)}, s7")
    a(f"s_add_u32 {s(sOC)}, {s(sOC)}, {OF}")
    a(f"s_mov_b32 {s(sLIM)}, {f2u(2.0**120):#x}")
    def red(k):
        spin_begin(a, f"G_o{k}")
        a(f"ds_read_b32 {v(LV+4)}, {v(vFL)} offset:{4096*k + 128}")
        a(f"s_waitcnt lgkmcnt(0)")
        a(f"v_cmp_eq_u32 vcc, 0, {v(LV+4)}")
        a(f"s_nop 0")
        a(f"s_cbranch_vccz G_o{k}_ok")
        spin_retry(a, f"G_o{k}", RSL if k else 2)
        a(f"ds_read2st64_b32 {v(LV,2)}, {v(vLR)} offset0:{16*k} offset1:{16*k+1}")
        a(f"ds_read2st64_b32 {v(LV+2,2)}, {v(vLR)} offset0:{16*k+2} offset1:{16*k+3}")
        for w in range(4):
            for hf in range(2):
                a(f"ds_read_b128 {v(RT_+8*w+4*hf,4)}, {v(vOR)} offset:{2048*w + 1024*hf}")
        if k == 0:
            a(f"s_cmp_eq_u32 {s(sJ)}, 3")
            a(f"s_mov_b32 s6, 32768")
            a(f"s_cselect_b32 s6, {(L_KROT - L_QO - 3*8192) & 0xffffffff}, s6")
            a(f"v_add_u32 {v(vOR)}, s6, {v(vOR)}")
        a(f"s_add_u32 {s(sPHS)}, {s(sJ)}, {4*k}")
        a(f"s_waitcnt lgkmcnt(8)")
        a(f"v_pk_add_f32 {v(LV,2)}, {v(LV,2)}, {v(LV+2,2)}")
        a(f"s_waitcnt lgkmcnt(4)")
        a(f"v_add_f32 {v(LV)}, {v(LV)}, {v(LV+1)}")
        for i in range(4): a(f"v_pk_add_f32 {v(RT_+2*i,2)}, {v(RT_+2*i,2)}, {v(RT_+8+2*i,2)}")
        a(f"v_rcp_f32 {v(LV+2)}, {v(LV)}")
        a(f"s_waitcnt lgkmcnt(0)")
        for i in range(4): a(f"v_pk_add_f32 {v(RT_+16+2*i,2)}, {v(RT_+16+2*i,2)}, {v(RT_+24+2*i,2)}")
        for i in range(4): a(f"v_pk_add_f32 {v(RT_+2*i,2)}, {v(RT_+2*i,2)}, {v(RT_+16+2*i,2)}")
        for i in range(4): a(f"v_maximum3_f32 {v(LV)}, |{v(RT_+2*i)}|, |{v(RT_+2*i+1)}|, {v(LV)}")
        a(f"v_cmp_ngt_f32 vcc, {s(sLIM)}, {v(LV)}")
        a(f"s_nop 0")
        if FORCE_FB: a(f"s_bitcmp1_b32 {s(sJ)}, 0"); a(f"s_cbranch_scc1 G_fb")
        a(f"s_cbranch_vccnz G_fb")
        a.label(f"G_ret{k}")
        for i in range(4): a(f"v_pk_mul_f32 {v(RT_+2*i,2)}, {v(RT_+2*i,2)}, {v(LV+2,2)} op_sel_hi:[1,0]")
        for i in range(4): a(f"v_cvt_pk_bf16_f32 {v(RT_+8+i)}, {v(RT_+2*i)}, {v(RT_+2*i+1)}")
        if k: a(f"s_add_u32 {s(sOP)}, {s(sOP)}, 4096")
        a(f"buffer_store_dwordx4 {v(RT_+8,4)}, {v(vL16)}, {s(rWS,4)}, {s(sOP)} offen sc1")
    def cons(hs, bufs):
        name = "G_c" + "".join(map(str, hs))
        if hs == [3]:
            spin_begin(a, f"G_g3")
            a(f"ds_read_b32 {v(LV+4)}, {v(vFG)} offset:{2048*3 + 128}")
            a(f"s_waitcnt lgkmcnt(0)")
            a(f"v_cmp_eq_u32 vcc, 0, {v(LV+4)}")
            a(f"s_nop 0")
            a(f"s_cbranch_vccz G_g3_ok")
            spin_retry(a, f"G_g3", 2)
        spin_begin(a, name)
        a(f"s_add_u32 s6, {s(sOC)}, {2048*hs[0]}")
        regs = []
        for g2 in range(8):
            for hh, ob in zip(hs, bufs):
                a(f"buffer_load_dwordx4 {v(ob+4*g2,4)}, {v(vL16)}, {s(rWS,4)}, s6 offen offset:{2048*(hh-hs[0])} sc1")
                regs.append(ob + 4*g2)
            if g2 < 7: a(f"s_add_u32 s6, s6, 8192")
        for n, b in enumerate(regs):
            a(f"s_waitcnt vmcnt({len(regs)-1-n})")
            if n == 0:
                a(f"v_max3_u32 {v(LV+4)}, {v(b)}, {v(b+1)}, {v(b+2)}")
                a(f"v_max_u32 {v(LV+4)}, {v(LV+4)}, {v(b+3)}")
            else:
                a(f"v_max3_u32 {v(LV+4)}, {v(b)}, {v(b+1)}, {v(LV+4)}")
                a(f"v_max3_u32 {v(LV+4)}, {v(b+2)}, {v(b+3)}, {v(LV+4)}")
        a(f"v_cmp_eq_u32 vcc, -1, {v(LV+4)}")
        a(f"s_nop 0")
        a(f"s_cbranch_vccz {name}_ok")
        spin_retry(a, name, 0 if hs == [3] else 4)
        if hs != [3]: a(f"s_setprio {GLO}")
        for hh, ob in zip(hs, bufs):
            for g2 in range(8):
                a(f"v_mfma_f32_32x32x16_bf16 {v(ACC,16)}, {v(WFR(hh,g2),4)}, {v(ob+4*g2,4)}, {v(ACC,16)}")
        if hs != [3]: a(f"s_setprio {GHI}")
    red(0)
    for q in range(8):
        a(f"v_lshlrev_b32 {v(XU+2*q)}, 16, {v(XD+q)}")
        a(f"v_and_b32 {v(XU+2*q+1)}, 0xffff0000, {v(XD+q)}")
    lds_wait(a, "G_r1", vSY, SY_RED1, 4, LV+4)
    for lam in range(1, 4):
        for q in range(4):
            a(f"ds_read_b128 {v(ACC+16*lam+4*q,4)}, {v(vSK+lam)} offset:{(lam-1)*4096 + q*1024}")
    a(f"s_waitcnt lgkmcnt(4)")
    for i in range(8):
        a(f"v_pk_add_f32 {v(ACC+2*i,2)}, {v(ACC+2*i,2)}, {v(ACC+16+2*i,2)}")
    for i in range(8):
        a(f"v_pk_add_f32 {v(ACC+2*i,2)}, {v(ACC+2*i,2)}, {v(ACC+32+2*i,2)}")
    a(f"s_waitcnt lgkmcnt(0)")
    for i in range(8):
        a(f"v_pk_add_f32 {v(ACC+2*i,2)}, {v(ACC+2*i,2)}, {v(ACC+48+2*i,2)}")
    for i in range(8):
        a(f"v_pk_fma_f32 {v(ACC+2*i,2)}, {v(ACC+2*i,2)}, {v(vRS,2)}, {v(XU+2*i,2)} op_sel_hi:[1,0,1]")
    wread(3)
    stamp(a, 7)
    def c_ld(items):
        h0 = min(h for h, _, _ in items)
        a(f"s_add_u32 s6, {s(sOC)}, {2048*h0}")
        for g2 in range(8):
            for hh, g_, r in items:
                if g_ == g2: a(f"buffer_load_dwordx4 {v(r,4)}, {v(vL16)}, {s(rWS,4)}, s6 offen offset:{2048*(hh-h0)} sc1")
            if g2 < 7: a(f"s_add_u32 s6, s6, 8192")
    def c_chk(items, later=0):
        regs = [r for g2 in range(8) for _, g_, r in items if g_ == g2]
        for n, b in enumerate(regs):
            a(f"s_waitcnt vmcnt({len(regs)-1-n+later})")
            if n == 0:
                a(f"v_max3_u32 {v(LV+4)}, {v(b)}, {v(b+1)}, {v(b+2)}")
                a(f"v_max_u32 {v(LV+4)}, {v(LV+4)}, {v(b+3)}")
            else:
                a(f"v_max3_u32 {v(LV+4)}, {v(b)}, {v(b+1)}, {v(LV+4)}")
                a(f"v_max3_u32 {v(LV+4)}, {v(b+2)}, {v(b+3)}, {v(LV+4)}")
        a(f"v_cmp_eq_u32 vcc, -1, {v(LV+4)}")
        a(f"s_nop 0")
    def c_mm(items):
        for hh, g2, r in items:
            a(f"v_mfma_f32_32x32x16_bf16 {v(ACC,16)}, {v(WFR(hh,g2),4)}, {v(r,4)}, {v(ACC,16)}")
    def c_spin(name, items, sleep):
        spin_begin(a, name)
        c_ld(items); c_chk(items)
        a(f"s_cbranch_vccz {name}_ok")
        spin_retry(a, name, sleep)
    I0 = [(0, g2, OB + 4*g2) for g2 in range(8)]
    I1a = [(1, g2, 112 + 4*g2) for g2 in range(4)]
    I1b = [(1, g2, RT_ + 4*(g2-4)) for g2 in range(4, 8)]
    I2 = [(2, g2, RT_ + 4*g2) for g2 in range(8)]
    I3 = [(3, g2, OB + 4*g2) for g2 in range(8)]
    if DEF:
        sO3 = rWA
        for n in range(8): a(f"s_add_u32 {s(sO3+n)}, {s(sOC)}, {2048*3 + 8192*n}")
        a(f"s_cmp_eq_u32 {s(sJ)}, 3")
        a(f"s_cbranch_scc1 G_e01")
        a.label("G_red1")
        red(1)
        stamp(a, 10)
        a(f"s_cmp_eq_u32 {s(sJ)}, 3")
        a(f"s_cbranch_scc1 G_w3")
        a.label("G_e01")
        c_spin("G_c01", I0 + I1a + I1b, SL2)
        a(f"s_setprio {GLO}")
        c_mm(I1b)
        a(f"s_setprio {GHI}")
        stamp(a, 9)
        a(f"s_cmp_eq_u32 {s(sJ)}, 3")
        a(f"s_cbranch_scc1 G_x3")
        if PRE2: c_spin("G_p2", I2, SL2)
        spin_begin(a, f"G_g3")
        a(f"ds_read_b32 {v(LV+4)}, {v(vFG)} offset:{2048*3 + 128}")
        a(f"s_waitcnt lgkmcnt(0)")
        a(f"v_cmp_eq_u32 vcc, 0, {v(LV+4)}")
        a(f"s_nop 0")
        a(f"s_cbranch_vccz G_g3_ok")
        spin_retry(a, f"G_g3", SL3)
        if PRE2:
            c_mm(I0)
            c_ld(I3)
            c_mm(I1a)
            c_mm(I2)
            a(f"s_branch G_k3")
        assert PRE2
        sF = T + 2
        I2x = [(2, g2, OB + 4*g2) for g2 in range(8)]
        a.label("G_x3")
        a(f"s_setprio {GLO}")
        c_mm(I0)
        c_ld(I2x)
        c_mm(I1a)
        a(f"s_setprio {GHI}")
        c_chk(I2x)
        a(f"s_mov_b32 {s(sF)}, 0")
        a(f"s_cbranch_vccnz G_red1")
        a(f"s_mov_b32 {s(sF)}, 1")
        c_mm(I2x)
        a(f"s_branch G_red1")
        a.label("G_w3")
        c_ld(I3)
        a(f"s_cmp_eq_u32 {s(sF)}, 0")
        a(f"s_cbranch_scc1 G_s2")
        a.label("G_k3")
        if MSK:
            def m_chk(later):
                for n, (_, g2, b) in enumerate(I3):
                    a(f"s_waitcnt vmcnt({7-n+later})")
                    a(f"v_max3_u32 {v(LV+4+n%2)}, {v(b)}, {v(b+1)}, {v(b+2)}")
                    a(f"v_max_u32 {v(LV+4+n%2)}, {v(LV+4+n%2)}, {v(b+3)}")
                    a(f"v_cmp_eq_u32 {s(8+2*n,2)}, -1, {v(LV+4+n%2)}")
                    if n == 1: a(f"s_or_b64 s[6:7], s[8:9], s[8:9]")
                    if n > 1: a(f"s_or_b64 s[6:7], s[6:7], {s(8+2*n-2,2)}")
                a(f"s_or_b64 s[6:7], s[6:7], s[22:23]")
                a(f"s_cbranch_scc0 G_c3_ok")
            def m_ld():
                for n, (_, g2, b) in enumerate(I3):
                    a(f"s_mov_b64 exec, {s(8+2*n,2)}")
                    a(f"buffer_load_dwordx4 {v(b,4)}, {v(vL16)}, {s(rWS,4)}, {s(sO3+n)} offen sc1")
                a(f"s_mov_b64 exec, -1")
            m_chk(0)
            for _ in range(MPD):
                m_ld()
                a(f"s_sleep {MSP}")
            spin_begin(a, "G_c3")
            m_ld()
            m_chk(8*MPD)
            spin_retry(a, "G_c3", MSL)
        else:
            c_chk(I3)
            a(f"s_cbranch_vccz G_c3_ok")
            c_spin("G_c3", I3, 0)
        c_mm(I3)
    else:
        cons([0, 1], [OB, RT_])
        stamp(a, 9)
        red(1)
        stamp(a, 10)
        cons([2], [OB]); cons([3], [OB])
    stamp(a, 11)
    a.nop(12)
    for q in range(2):
        for i in range(4):
            a(f"v_cvt_pk_bf16_f32 {v(RT_+4*q+i)}, {v(ACC+8*q+2*i)}, {v(ACC+8*q+2*i+1)}")
        a(f"buffer_store_dwordx4 {v(RT_+4*q,4)}, {v(vXO)}, {s(rOUT,4)}, {s(sXO)} offen offset:{16*q}{['', ' sc1', ' nt', ' sc0 sc1', ' sc1 nt'][OST]}")
    a(f"s_add_u32 s6, s2, {s(sJ)}")
    a(f"s_cmp_eq_u32 s6, 0")
    a(f"s_cbranch_scc0 G_end")
    a(f"s_mov_b64 exec, 1")
    a(f"v_mov_b32 v56, {s(sTAG)}")
    a(f"v_mov_b32 v57, {s(sTAG+1)}")
    a(f"s_mov_b32 s6, {EP}")
    a(f"buffer_store_dwordx2 v[56:57], off, {s(rWS,4)}, s6 sc1")
    a.label("G_end")
    endpgm(a, 12)

    if DEF:
        a.label("G_s2")
        c_spin("G_c2", I2, 2)
        c_mm(I2)
        a(f"s_branch G_k3")
    a.label("G_fb")
    FS, FC, FO, FK, FV, FQ, FI, FVo = 80, 96, RT_, 112, 116, 124, 56, 57
    a(f"s_lshl_b32 s6, {s(sC)}, 13")
    a(f"s_lshl_b32 s7, {s(sPHS)}, 10")
    a(f"s_add_u32 s6, s6, s7")
    a(f"s_add_u32 s6, s6, {QF}")
    a(f"buffer_load_dwordx4 {v(FQ,4)}, {v(vL16)}, {s(rWS,4)}, s6 offen sc1")
    a(f"v_mov_b32 {v(FI)}, 0xdddddddd")
    a(f"v_mov_b32 {v(FC)}, 0xff800000")
    a(f"s_mov_b32 s6, {KF}")
    a.label("G_fb1")
    a(f"buffer_load_dwordx4 {v(FK,4)}, {v(vL16)}, {s(rWS,4)}, s6 offen sc1")
    a(f"s_waitcnt vmcnt(0)")
    a(f"v_mfma_f32_32x32x16_bf16 {v(FS,16)}, {v(FK,4)}, {v(FQ,4)}, 0")
    a.nop(12)
    for i in range(8):
        a(f"v_maximum3_f32 {v(FC)}, {v(FC)}, {v(FS+2*i)}, {v(FS+2*i+1)}")
    a(f"s_add_u32 s6, s6, 1024")
    a(f"s_cmp_lt_u32 s6, {KF + 65536}")
    a(f"s_cbranch_scc1 G_fb1")
    a(f"v_mov_b32 {v(FC+1)}, {v(FC)}")
    a(f"s_nop 1")
    a(f"v_permlane32_swap_b32 {v(FC)}, {v(FC+1)}")
    a(f"v_and_b32 {v(FVo)}, 31, v1")
    a(f"v_cmp_eq_u32 vcc, 16, {v(FVo)}")
    a(f"v_maximum3_f32 {v(FC)}, {v(FC)}, {v(FC+1)}, {v(FC+1)}")
    a(f"v_mov_b32 {v(FV)}, 0x3f803f80")
    a(f"v_cndmask_b32 {v(FV)}, 0, {v(FV)}, vcc")
    a(f"v_sub_f32 {v(FC)}, 0, {v(FC)}")
    for i in range(1, 8): a(f"v_mov_b32 {v(FV+i)}, {v(FV)}")
    for i in range(1, 16): a(f"v_mov_b32 {v(FC+i)}, {v(FC)}")
    for i in range(16): a(f"v_mov_b32 {v(FO+i)}, 0")
    a(f"v_and_b32 {v(FVo)}, 15, v1")
    a(f"v_lshrrev_b32 {v(FS)}, 5, v1")
    a(f"v_lshlrev_b32 {v(FVo)}, 4, {v(FVo)}")
    a(f"v_lshl_add_u32 {v(FVo)}, {v(FS)}, 8, {v(FVo)}")
    a(f"s_mov_b32 s6, {KF}")
    a.label("G_fb2")
    a(f"s_add_u32 s7, s6, {VF - KF}")
    a(f"buffer_load_dwordx4 {v(FK,4)}, {v(vL16)}, {s(rWS,4)}, s6 offen sc1")
    a(f"s_mov_b32 exec_lo, 0xffff")
    a(f"s_mov_b32 exec_hi, 0xffff")
    a(f"buffer_load_dwordx4 {v(FV,4)}, {v(FVo)}, {s(rWS,4)}, s7 offen sc1")
    a(f"buffer_load_dwordx4 {v(FV+4,4)}, {v(FVo)}, {s(rWS,4)}, s7 offen offset:512 sc1")
    a(f"s_mov_b64 exec, -1")
    a(f"s_waitcnt vmcnt(0)")
    a(f"v_mfma_f32_32x32x16_bf16 {v(FS,16)}, {v(FK,4)}, {v(FQ,4)}, {v(FC,16)}")
    a.nop(12)
    for i in range(16): a(f"v_exp_f32 {v(FS+i)}, {v(FS+i)}")
    a(f"s_nop 1")
    a(f"v_smfmac_f32_32x32x32_bf16 {v(FO,16)}, {v(FV,4)}, {v(FS,8)}, {v(FI)}")
    a(f"v_smfmac_f32_32x32x32_bf16 {v(FO,16)}, {v(FV+4,4)}, {v(FS+8,8)}, {v(FI)}")
    a.nop(16)
    a(f"s_add_u32 s6, s6, 1024")
    a(f"s_cmp_lt_u32 s6, {KF + 65536}")
    a(f"s_cbranch_scc1 G_fb2")
    a(f"v_mov_b32 {v(FO+9)}, {v(FO+8)}")
    a(f"s_nop 1")
    a(f"v_permlane32_swap_b32 {v(FO+8)}, {v(FO+9)}")
    a(f"s_nop 1")
    a(f"v_rcp_f32 {v(LV+2)}, {v(FO+8)}")
    a(f"s_cmp_lt_u32 {s(sPHS)}, 4")
    a(f"s_cbranch_scc1 G_ret0")
    a(f"s_branch G_ret1")

    a.label("G_idle")
    a(f"s_waitcnt vmcnt(0) lgkmcnt(0)")
    lds_inc(a, vSY, SY_WQ, vONE)
    fix_tag(a)
    stamp(a, 1)
    stamp(a, 2)
    stamp(a, 3)
    lds_inc(a, vSY, SY_XFREE, vONE)
    a(f"s_branch G_hpub")


def gen_kv(a, isv):
    real = a
    if isv: a = Asm()
    vm = VM(a)
    sfx = "v" if isv else "k"
    a("s_setprio 3")
    ids(a)
    vSY, vONE, vU = 2, 3, 4
    WK, XK = 128, 64
    vL16, vBW, vTk, vXk = 5, 6, 7, 11
    MA, SX, CS, ON, Q0, Q1 = 20, 24, 28, 32, 36, 37
    sTG = T + 1
    a(f"v_lshlrev_b32 {v(vL16)}, 4, v1")
    a(f"v_lshrrev_b32 v12, 4, v1")
    a(f"v_and_b32 v13, 15, v1")
    a(f"v_lshlrev_b32 {v(vXk)}, 10, v13")
    a(f"v_lshl_add_u32 {v(vXk)}, v12, 4, {v(vXk)}")
    a(f"s_and_b32 {s(sTG)}, {s(sG)}, 3")
    a(f"s_lshl_b32 {s(T+4)}, {s(sB)}, 16")
    a(f"s_lshl_b32 s6, {s(sTG)}, 14")
    a(f"s_add_u32 {s(T+4)}, {s(T+4)}, s6")
    a(f"s_waitcnt lgkmcnt(0)")
    srd(a, rX, sPX, 2097152)
    for u in range(16):
        vm.issue(("xk", u), f"buffer_load_dwordx4 {v(XK+4*u,4)}, {v(vXk)}, {s(rX,4)}, {s(T+4)} offen offset:{64*u}")
    a(f"s_cmp_{'lt' if KHI else 'ge'}_u32 {s(sG)}, 4")
    a(f"s_cselect_b32 s6, {s(sPWV)}, {s(sPWK)}")
    a(f"s_cselect_b32 s7, {s(sPWV+1)}, {s(sPWK+1)}")
    srd(a, rWB, 6, 16384)
    for u in range(16):
        if u % 4 == 0: a(f"s_movk_i32 s6, {u*1024}")
        vm.issue(("wk", u), f"buffer_load_dwordx4 {v(WK+4*u,4)}, {v(vL16)}, {s(rWB,4)}, s6 offen offset:{(u%4)*1024}")
    args_ready(a)
    a(f"s_cmp_{'lt' if KHI else 'ge'}_u32 {s(sG)}, 4")
    a(f"s_cbranch_scc1 V_start")
    a = real; vm.a = a
    srd(a, rWS, sPWS, WS_SIZE)
    a(f"s_mov_b32 {s(sJ)}, 3")
    a(f"v_mov_b32 {v(vSY)}, {L_SY}")
    a(f"v_mov_b32 {v(vONE)}, 1")
    a(f"v_add_u32 {v(vBW)}, {L_BNC + 3*4096}, {v(vL16)}")
    a(f"v_bfe_u32 v14, v1, 2, 2")
    a(f"v_lshl_add_u32 v14, v12, 3, v14")
    a(f"v_and_b32 v15, 3, v1")
    a(f"v_lshlrev_b32 v15, 3, v15")
    a(f"v_lshl_add_u32 {v(vTk)}, v14, 5, v15")
    a(f"v_add_u32 {v(vTk)}, {L_BNC + 3*4096}, {v(vTk)}")
    a(f"v_and_b32 v14, 1, v12")
    a(f"v_lshrrev_b32 v15, 1, v12")
    a(f"v_lshlrev_b32 v13, 4, v13")
    if isv:
        a(f"v_lshl_add_u32 v19, v15, 8, v13")
        a(f"v_lshl_add_u32 v19, v14, 3, v19")
    else:
        a(f"v_lshl_add_u32 v18, v14, 9, v13")
        a(f"v_lshl_add_u32 v18, v15, 3, v18")
    a(f"s_lshr_b32 s7, {s(sTG)}, 1")
    a(f"s_lshl1_add_u32 s7, {s(sB)}, s7")
    a(f"s_lshl_b32 s7, s7, 10")
    a(f"s_and_b32 s6, {s(sTG)}, 1")
    a(f"s_lshl_b32 {s(T+2+isv)}, s6, {8+isv}")
    a(f"s_add_u32 {s(T+2+isv)}, {s(T+2+isv)}, s7")
    a(f"s_add_u32 {s(T+2+isv)}, {s(T+2+isv)}, {VF if isv else KF}")
    a(f"v_mul_u32_u24 v16, {RSTR}, v1")
    a(f"s_and_b32 s6, s2, 7")
    a(f"s_lshr_b32 s7, s6, {[3,2,1,0][[1,2,4,8].index(NREP)]}")
    a(f"s_mul_i32 {s(T+6)}, s7, {RSTR}")
    a(f"s_add_u32 {s(T+6)}, {s(T+6)}, {FL_KV}")
    a(f"s_lshr_b32 s7, s2, 3")
    a(f"s_mul_i32 s6, s6, {LSTR}")
    a(f"s_lshl2_add_u32 s6, s7, s6")
    a(f"v_lshrrev_b32 v14, 3, v1")
    a(f"v_mul_u32_u24 v14, {LSTR}, v14")
    a(f"v_and_b32 v15, 7, v1")
    a(f"v_lshl_add_u32 v10, v15, 4, v14")
    a(f"s_add_u32 {s(T+5)}, s6, {FL_KV}")
    for i in range(4): a(f"v_mov_b32 {v(ON+i)}, 0x3f803f80")
    a(f"v_mov_b32 {v(Q0)}, 0")
    a(f"v_mov_b32 {v(Q1)}, 0")
    inv = f2u(1.0/512)
    for u in range(16):
        vm.wait(("xk", u))
        a(f"v_mfma_f32_16x16x32_bf16 {v(SX,4)}, {v(ON,4)}, {v(XK+4*u,4)}, {'0' if u == 0 else v(SX,4)}")
        for d in range(4): a(f"v_dot2_f32_bf16 {v(Q0+d%2)}, {v(XK+4*u+d)}, {v(XK+4*u+d)}, {v(Q0+d%2)}")
    if isv:
        srd(a, rWA, sPWK, 16384)
        if WKPF:
            a(f"v_lshlrev_b32 v14, 7, v1")
            a(f"s_movk_i32 s6, 8192")
            vm.issue("pf", f"buffer_load_dword v15, v14, {s(rWA,4)}, 0 offen")
            vm.issue("pf", f"buffer_load_dword v15, v14, {s(rWA,4)}, s6 offen")
    a(f"s_waitcnt lgkmcnt(0)")
    fix_tag(a)
    stamp(a, 1)
    stats = [
        [f"v_add_f32 {v(Q0)}, {v(Q0)}, {v(Q1)}", f"v_mov_b32 {v(Q1)}, {v(Q0)}"],
        [f"v_permlane16_swap_b32 {v(Q0)}, {v(Q1)}", f"v_mul_f32 {v(SX)}, {inv:#x}, {v(SX)}", f"v_add_f32 {v(Q0)}, {v(Q0)}, {v(Q1)}",
         f"v_mov_b32 {v(Q1)}, {v(Q0)}", f"v_mul_f32 {v(SX+1)}, {v(SX)}, {v(SX)}"],
        [f"v_permlane32_swap_b32 {v(Q0)}, {v(Q1)}", f"v_mov_b32 {v(SX+2)}, {inv:#x}", f"v_add_f32 {v(Q0)}, {v(Q0)}, {v(Q1)}",
         f"v_fma_f32 {v(Q0)}, {v(Q0)}, {v(SX+2)}, -{v(SX+1)}", f"v_max_f32 {v(Q0)}, 0, {v(Q0)}"],
        [f"v_cvt_pk_bf16_f32 {v(Q0)}, {v(SX)}, {v(Q0)}", f"v_lshlrev_b32 {v(SX)}, 16, {v(Q0)}", f"v_and_b32 {v(Q0)}, 0xffff0000, {v(Q0)}",
         f"v_add_f32 {v(Q0)}, {f2u(1e-5):#x}, {v(Q0)}"],
        [f"v_cvt_pk_bf16_f32 {v(Q0)}, {v(Q0)}, {v(Q0)}", f"v_and_b32 {v(Q0)}, 0xffff0000, {v(Q0)}", f"v_sqrt_f32 {v(Q0)}, {v(Q0)}"],
        [f"v_cvt_pk_bf16_f32 {v(Q0)}, {v(Q0)}, {v(Q0)}", f"v_and_b32 {v(Q0)}, 0xffff0000, {v(Q0)}", f"v_rcp_f32 {v(Q0)}, {v(Q0)}"]]
    if True:
        fill = [list(x) for x in stats]
        if isv:
            for src_, dst in ((SX, 40), (Q0, 44)):
                for G_ in range(4):
                    fill.append([f"v_mov_b32_dpp {v(dst+r)}, {v(src_)} row_newbcast:{4*G_+r} row_mask:{1<<G_:#x} bank_mask:0xf" for r in range(4)])
        def mm(u):
            c = lambda r: "0" if u == 0 else v(r, 4)
            if isv:
                a(f"v_mfma_f32_16x16x32_bf16 {v(CS,4)}, {v(ON,4)}, {v(WK+4*u,4)}, {c(CS)}")
                a(f"v_mfma_f32_16x16x32_bf16 {v(MA,4)}, {v(XK+4*u,4)}, {v(WK+4*u,4)}, {c(MA)}")
            else:
                a(f"v_mfma_f32_16x16x32_bf16 {v(CS,4)}, {v(WK+4*u,4)}, {v(ON,4)}, {c(CS)}")
                a(f"v_mfma_f32_16x16x32_bf16 {v(MA,4)}, {v(WK+4*u,4)}, {v(XK+4*u,4)}, {c(MA)}")
        LAG = 3
        for u in range(16 + LAG):
            if u < 16:
                vm.wait(("wk", u))
                a(f"ds_write_b128 {v(vBW)}, {v(WK+4*u,4)} offset:{(u%4)*1024}")
                a(f"ds_read_b64_tr_b16 {v(WK+4*u,2)}, {v(vTk)} offset:{(u%4)*1024}")
                a(f"ds_read_b64_tr_b16 {v(WK+4*u+2,2)}, {v(vTk)} offset:{(u%4)*1024+128}")
            if fill:
                for ins in fill.pop(0): a(ins)
            if u >= LAG:
                a(f"s_waitcnt lgkmcnt({3*(min(u, 15) - (u - LAG))})")
                mm(u - LAG)
        assert not fill
        a.nop(8)
        if isv:
            for i in range(2):
                a(f"v_pk_fma_f32 {v(MA+2*i,2)}, {v(CS+2*i,2)}, {v(40+2*i,2)}, {v(MA+2*i,2)} neg_lo:[1,0,0] neg_hi:[1,0,0]")
            for i in range(2): a(f"v_pk_mul_f32 {v(MA+2*i,2)}, {v(MA+2*i,2)}, {v(44+2*i,2)}")
        else:
            for i in range(2):
                a(f"v_pk_fma_f32 {v(MA+2*i,2)}, {v(CS+2*i,2)}, {v(SX,2)}, {v(MA+2*i,2)} op_sel_hi:[1,0,1] neg_lo:[1,0,0] neg_hi:[1,0,0]")
            for i in range(2): a(f"v_pk_mul_f32 {v(MA+2*i,2)}, {v(MA+2*i,2)}, {v(Q0,2)} op_sel_hi:[1,0]")
        a(f"v_cvt_pk_bf16_f32 {v(MA)}, {v(MA)}, {v(MA+1)}")
        a(f"v_cvt_pk_bf16_f32 {v(MA+1)}, {v(MA+2)}, {v(MA+3)}")
        a(f"buffer_store_dwordx2 {v(MA,2)}, v{18+isv}, {s(rWS,4)}, {s(T+2+isv)} offen sc1")
    stamp(a, 2)
    X2 = 192
    vm.drained()
    def sloads():
        if isv:
            for u in range(16):
                if u % 4 == 0: a(f"s_movk_i32 s6, {u*1024}")
                vm.issue(("w2", u), f"buffer_load_dwordx4 {v(WK+4*u,4)}, {v(vL16)}, {s(rWA,4)}, s6 offen offset:{(u%4)*1024}")
    if SPOS == 1: sloads()
    a(f"v_mov_b32 v17, {s(sTAG)}")
    a(f"s_mov_b64 exec, {(1 << NREP) - 1}")
    a(f"s_waitcnt vmcnt({len(vm.q)})")
    vm.issue("fl", f"buffer_store_dword v17, v16, {s(rWS,4)}, {s(T+5)} offen sc1")
    a(f"s_mov_b64 exec, -1")
    stamp(a, 3)
    pl = lambda q: a(f"buffer_load_dwordx4 {v(20+4*q,4)}, v10, {s(rWS,4)}, {s(T+6)} offen sc1")
    if DBG & 8:
        a(f"s_waitcnt vmcnt(0)")
        stamp(a, 5)
        pl(0)
        a(f"s_waitcnt vmcnt(0)")
        stamp(a, 6)
        pl(0)
        a(f"s_waitcnt vmcnt(0)")
        stamp(a, 7)
    a(f"s_setprio {KSP}")
    if SPOS == 0: sloads()
    if not isv:
        a(f"s_branch G_ks")
        return
    a(f"v_and_b32 v14, 1, v12")
    a(f"v_lshrrev_b32 v15, 1, v12")
    a(f"v_lshl_add_u32 v18, v14, 9, v13")
    a(f"v_lshl_add_u32 v18, v15, 3, v18")
    LG = 3
    for u in range(16 + LG):
        if u < 16:
            vm.wait(("w2", u))
            a(f"ds_write_b128 {v(vBW)}, {v(WK+4*u,4)} offset:{(u%4)*1024}")
            a(f"ds_read_b64_tr_b16 {v(WK+4*u,2)}, {v(vTk)} offset:{(u%4)*1024}")
            a(f"ds_read_b64_tr_b16 {v(WK+4*u+2,2)}, {v(vTk)} offset:{(u%4)*1024+128}")
        if u >= LG:
            q = u - LG
            c = lambda r: "0" if q == 0 else v(r, 4)
            a(f"s_waitcnt lgkmcnt({3*(min(u, 15) - q)})")
            a(f"v_mfma_f32_16x16x32_bf16 {v(CS,4)}, {v(WK+4*q,4)}, {v(ON,4)}, {c(CS)}")
            a(f"v_mfma_f32_16x16x32_bf16 {v(MA,4)}, {v(WK+4*q,4)}, {v(XK+4*q,4)}, {c(MA)}")
    a.nop(8)
    for i in range(2):
        a(f"v_pk_fma_f32 {v(MA+2*i,2)}, {v(CS+2*i,2)}, {v(SX,2)}, {v(MA+2*i,2)} op_sel_hi:[1,0,1] neg_lo:[1,0,0] neg_hi:[1,0,0]")
    for i in range(2): a(f"v_pk_mul_f32 {v(MA+2*i,2)}, {v(MA+2*i,2)}, {v(Q0,2)} op_sel_hi:[1,0]")
    a(f"v_cvt_pk_bf16_f32 {v(MA)}, {v(MA)}, {v(MA+1)}")
    a(f"v_cvt_pk_bf16_f32 {v(MA+1)}, {v(MA+2)}, {v(MA+3)}")
    a.label("G_ks")
    if DBG & 16: stamp(a, 5)
    a(f"v_add_u32 v18, {L_KS}, v18")
    a(f"s_xor_b32 s6, {s(sTG)}, 1")
    a(f"ds_write_b64 v18, {v(MA,2)}")
    a(f"s_lshl_b32 s6, s6, 8")
    a(f"v_add_u32 v15, s6, v13")
    a(f"v_mul_u32_u24 v14, {XN_STRIDE//16}, v15")
    a(f"v_lshl_add_u32 v14, v12, 4, v14")
    a(f"v_lshrrev_b32 v15, 2, v15")
    a(f"v_add_u32 v15, {v(vSY)}, v15")
    lds_wait(a, "G_kl", vSY, SY_LN, 4, 19, KLS)
    if DBG & 16: stamp(a, 6)
    a(f"s_setprio 3")
    for u in range(14): a(f"ds_read_b128 {v(XK+4*u,4)}, v14 offset:{64*u}")
    pl(0)
    for u in range(16):
        if u < 2: a(f"ds_read_b128 {v(XK+4*(14+u),4)}, v14 offset:{64*(14+u)}")
        if u == 2: a(f"ds_read_b32 v56, v15 offset:{SY_RS}")
        a(f"s_waitcnt lgkmcnt({14 if u < 3 else 16-u})")
        a(f"v_mfma_f32_16x16x32_bf16 {v(44+4*(u&1),4)}, {v(WK+4*u,4)}, {v(XK+4*u,4)}, {'0' if u < 2 else v(44+4*(u&1),4)}")
    a(f"s_waitcnt lgkmcnt(0)")
    a.nop(7)
    for i in range(2): a(f"v_pk_add_f32 {v(44+2*i,2)}, {v(44+2*i,2)}, {v(48+2*i,2)}")
    for i in range(2): a(f"v_pk_mul_f32 {v(44+2*i,2)}, {v(44+2*i,2)}, v[56:57] op_sel_hi:[1,0]")
    for i in range(2): a(f"v_cvt_pk_bf16_f32 {v(44+i)}, {v(44+2*i)}, {v(44+2*i+1)}")
    a(f"ds_write_b64 v18, v[44:45] offset:256")
    a(f"ds_write_b32 {v(vSY)}, {v(vONE)} offset:{SY_KS}")
    stamp(a, 14)
    assert NPOLL == 1
    a(f"s_mov_b32 {s(sSPIN)}, {SPIN_MAX}")
    a(f"s_branch G_pk{sfx}_in")
    a.label(f"G_pk{sfx}_top")
    for q in range(NPOLL):
        pl((q - 1) % NPOLL)
        a.label(f"G_pk{sfx}_in")
        a(f"s_waitcnt vmcnt({NPOLL-1})")
        b_ = 20 + 4*q
        for i in range(4): a(f"v_xor_b32 {v(b_+i)}, {v(b_+i)}, v17")
        a(f"v_or3_b32 {v(b_)}, {v(b_)}, {v(b_+1)}, {v(b_+2)}")
        a(f"v_or_b32 {v(b_)}, {v(b_)}, {v(b_+3)}")
        a(f"v_cmp_ne_u32 vcc, 0, {v(b_)}")
        a(f"s_nop 0")
        a(f"s_cbranch_vccz G_pk{sfx}_ok")
        if q < NPOLL - 1 and PSLEEP: a(f"s_sleep {PSLEEP}")
    spin_retry(a, "G_pk" + sfx, PSLEEP)
    a(f"ds_write_b32 {v(vSY)}, {v(vONE)} offset:{SY_KVRDY}")
    if DBG & 8:
        a(f"s_sub_u32 s6, {SPIN_MAX}, {s(sSPIN)}")
        a(f"s_mul_i32 s6, s6, 100")
        a(f"s_add_u32 {s(70+2*8)}, s6, s70")
        pl(0)
        a(f"s_waitcnt vmcnt(0)")
        stamp(a, 9)
    stamp(a, 13)
    a(f"s_setprio {GLO}")
    setup_u(a)
    lds_wait(a, "G_wq3", vSY, SY_QCNT, 4, 16)
    a(f"v_add_u32 v16, {L_QT}, {v(vL16)}")
    a(f"s_lshl_b32 s6, {s(sC)}, 13")
    a(f"s_add_u32 s6, s6, {QF}")
    a(f"s_add_u32 s7, s6, 4096")
    for p in range(8): a(f"ds_read_b128 {v(64+4*p,4)}, v16 offset:{1024*p}")
    lds_inc(a, vSY, SY_XFREE, vONE)
    a(f"s_waitcnt lgkmcnt(0)")
    for p in range(8):
        a(f"buffer_store_dwordx4 {v(64+4*p,4)}, {v(vL16)}, {s(rWS,4)}, s{6+p//4} offen offset:{(p%4)*1024} sc1")
    stamp(a, 4)
    srd(a, rWA, sPWO, 524288)
    a(f"v_add_u32 v5, {8192-1024}, {v(vU)}")
    a(f"s_and_b32 {s(T+2)}, {s(sB)}, 7")
    if WOPF:
        a(f"v_and_b32 v16, 3, v1")
        a(f"v_lshl_add_u32 v16, v16, 2, {v(vSY)}")
        spin_begin(a, "G_pf")
        a(f"ds_read_b32 v17, v16 offset:{SY_CF}")
        a(f"s_waitcnt lgkmcnt(0)")
        a(f"v_cmp_eq_u32 vcc, 0, v17")
        a(f"s_nop 0")
        a(f"s_cbranch_vccz G_pf_ok")
        spin_retry(a, "G_pf", 4)
        a(f"s_lshl_b32 s7, {s(T+2)}, 16")
        for u in range(8):
            a(f"buffer_load_dwordx4 {v(128+4*u,4)}, {v(vU)}, {s(rWA,4)}, s7 offen")
            a(f"s_add_u32 s7, s7, 8192")
    lds_wait2(a, "G_wqf", vSY, SY_QCNT, 8, 16, SL1)
    a(f"s_setprio {GHI}")
    for hh in range(4):
        for g2 in range(8):
            a(f"s_mov_b32 m0, {L_STG + 16384*hh + 2048*g2}")
            a(f"s_mov_b32 s7, {65536*g2 + 16384*hh}")
            a(f"buffer_load_dwordx4 {v(vU)}, {s(rWA,4)}, s7 offen lds")
            a(f"buffer_load_dwordx4 v5, {s(rWA,4)}, s7 offen offset:1024 lds")
    a(f"s_waitcnt vmcnt(16)")
    a(f"ds_write_b32 {v(vSY)}, {v(vONE)} offset:{SY_WO}")
    a(f"s_branch G_ffn2")

def descriptor(name, vgpr=256, sgpr=102):
    return f""".amdhsa_kernel {name}
  .amdhsa_next_free_vgpr {vgpr}
  .amdhsa_next_free_sgpr {sgpr}
  .amdhsa_accum_offset {min(256, (vgpr+3)//4*4)}
  .amdhsa_group_segment_fixed_size 0
  .amdhsa_kernarg_size 88
  .amdhsa_user_sgpr_count 2
  .amdhsa_user_sgpr_kernarg_segment_ptr 1
  .amdhsa_system_sgpr_workgroup_id_x 1
.end_amdhsa_kernel
"""

def main(out):
    hdr = open("cdna_kernels/" + NAME + ".s.ref").read().split("; Override")[0]
    a = Asm()
    name = NAME + "_kernel"
    a('.amdgcn_target "amdgcn-amd-amdhsa--gfx950"')
    a(".text")
    a(f".globl {name}")
    a(f".p2align 8")
    a(f".type {name},@function")
    a.label(name)
    a(f"s_cmp_ge_u32 s2, 256")
    a(f"s_cbranch_scc1 K_exit")
    stamp(a, 0)
    if PROF:
        for i in range(1, 15): a(f"s_mov_b32 {s(70+2*i)}, 0")
    a(f"s_load_dwordx16 s[8:23], s[0:1], 0")
    a(f"s_load_dwordx4 s[24:27], s[0:1], 64")
    a(f"s_load_dwordx2 s[28:29], s[0:1], 80")
    a(f"v_lshrrev_b32 v1, 6, v0")
    a(f"s_nop 0")
    a(f"v_readfirstlane_b32 {s(sW)}, v1")
    assert MAP84
    a(f"s_cmp_lt_u32 {s(sW)}, 4")
    a(f"s_cbranch_scc1 A_start")
    a(f"s_cmp_lt_u32 {s(sW)}, 7")
    a(f"s_cbranch_scc1 G_start")
    gen_kv(a, 0)
    a(".p2align 6")
    a.label("V_start")
    gen_kv(a, 1)
    a(".p2align 6")
    a.label("A_start")
    gen_a(a)
    a.label("K_exit")
    a("s_endpgm")
    a(".p2align 6")
    a.label("G_start")
    gen_g(a)
    pr = check_hazards(a.lines, name)
    for p in pr[:5]: print("HAZARD", p)
    launch = f"; @launch grid=(256,1,1) block=(512,1,1) lds={LDS_TOTAL}\n"
    txt = hdr + launch + a.text() + '.section .rodata,"a"\n.p2align 6\n' + descriptor(name)
    open(out, "w").write(txt)
    print("wrote", out, len(txt), "bytes; LDS", LDS_TOTAL)

if __name__ == "__main__":
    main(sys.argv[1] if len(sys.argv) > 1 and not sys.argv[1].startswith("--") else "cdna_kernels/" + NAME + ".s")
```

```python
import sys, struct
from asmlib import Asm, v, s, check_hazards

NAME = "parallel_sum__grouped_kv_mqa__dense_activation_relu__prompt"
QF, KF, VF, FL_KV, FL_H, EP, OF, HF = 0x040000, 0x300000, 0x310000, 0x320000, 0x328000, 0x32A000, 0x400000, 0x600000
HSTR = 88
WS_SIZE = 0x1000000
CSCALE = 0x3eb8aa3b
BIAS = 96.0
def f2u(x): return struct.unpack("<I", struct.pack("<f", x))[0]
def opt(name, default):
    for a_ in sys.argv[1:]:
        if a_.startswith("--" + name + "="): return int(a_.split("=")[1])
    return default
PROF = "--prof" in sys.argv
PROF_OFF = 0xF00000
HPROF = "--hprof" in sys.argv
FORCE_FB = "--forcefb" in sys.argv
DP0 = opt("dp0", 3)
DPRE = opt("dpre", 7)
SPIN_MAX = 1 << 15
APRIO = opt("aprio", 1)
GHI = opt("ghi", 3)
GLO = opt("glo", 0)
PSLEEP = opt("psleep", 0)
W1D = opt("w1d", 12)
W1ROT = opt("w1rot", 7)
KVFIRST = opt("kvfirst", 1)
DBG = opt("dbg", 0)
F1PRIO = opt("f1prio", 0)
KVROT = opt("kvrot", 1)
F2ROT = opt("f2rot", 1)
MAP84 = opt("map84", 1)
FD = opt("fd", 6)
F1W = opt("f1w", 0); QLA = opt("qla", 5)
NREP = opt("nrep", 8); RSTR = opt("rstr", 70656); FL_KV = opt("flkv", 0x340000); LSTR = opt("lstr", 640)
assert FL_KV + 7*RSTR + 7*LSTR + 128 <= OF and (8*LSTR <= RSTR or 8*RSTR <= LSTR)
FLW = opt("flw", 0)
OST = opt("ost", 0)
WOPF = opt("wopf", 1)
RSL = opt("rsl", 0)
NPOLL = opt("npoll", 1); PGAP = opt("pgap", 4); ASL = opt("asl", 0)
GX = opt("gx", 0)
W1F = opt("w1f", 8); W1POS = opt("w1pos", 99)
VFULL = opt("vfull", 1)
NS = 2; KSP = opt("ksp", 1); WKPF = opt("wkpf", 0); XP = opt("xp", 0x14735260); KHI = opt("khi", 1); SL1 = opt("sl1", 1); SL2 = opt("sl2", 4); SL3 = opt("sl3", 2)
IP = opt("ip", 5); SL4 = opt("sl4", 4); WOPS = opt("wops", 8); BAL = opt("bal", 0); F3P = opt("f3p", 2)
SPOS = opt("spos", 1); GX4 = opt("gx4", 0); CSL = opt("csl", 0); KLS = opt("kls", 0)
DEF = opt("def", 1); MSK = opt("msk", 1); MPD = opt("mpd", 0); MSL = opt("msl", 0); MSP = opt("msp", 4); PRE2 = opt("pre2", 1)
P1 = opt("p1", 2); PQ = opt("pq", 5); P0 = opt("p0", 10)

sW, sB, sG = 3, 4, 5
sPX, sPWQ, sPWK, sPWV, sPWO, sPBX, sPW1, sPW2 = 8, 10, 12, 14, 16, 18, 20, 22
sPOUT, sPDBG, sPWS = 24, 26, 28
sC, sJ = 30, 31
rX, rWA, rWB, rWS, rOUT = 32, 36, 40, 44, 48
sTAG = 52
sSPIN = 54
T = 56

XN_STRIDE = 1040
L_STG = 0
L_R2 = 64 * XN_STRIDE
L_KROT = L_R2
L_L = L_R2 + 16384
L_QO = L_L + 8192
L_BNC = L_QO + 5 * 8192
assert L_BNC == L_R2 + 65536
L_QT = L_QO + 7 * 8192
L_C = L_QT + 8192
L_SY = L_C + 4096
LDS_TOTAL = L_SY + 1024
TID_OFF = 49152
SY_LN, SY_WQ, SY_KVRDY, SY_QCNT, SY_XFREE, SY_HCNT, SY_RED1 = 0, 4, 8, 12, 16, 20, 28
SY_CF, SY_RED2, SY_WO, SY_RS, SY_KS = 32, 48, 52, 256, 24
L_KS = L_BNC + 3 * 4096

class VM:
    def __init__(self, a): self.a, self.q = a, []
    def issue(self, tag, txt):
        self.a(txt); self.q.append(tag)
        assert len(self.q) < 4000
    def n_after(self, tags):
        if not isinstance(tags, (list, set)): tags = [tags]
        idx = max(i for i, t in enumerate(self.q) if t in tags)
        return len(self.q) - 1 - idx
    def wait(self, tags, extra=""):
        n = self.n_after(tags)
        assert n <= 63, n
        self.a(f"s_waitcnt vmcnt({n}){extra}")
    def drained(self): self.q = []

def stamp(a, i):
    if PROF: a(f"s_memrealtime {s(70+2*i,2)}")
def endpgm(a, n):
    if PROF:
        a("s_waitcnt vmcnt(0)")
        stamp(a, n); n += 1
        a("s_waitcnt lgkmcnt(0)")
        a("s_mov_b64 exec, 1")
        for i in range(15):
            a(f"v_mov_b32 {v(240+i)}, {s(70+2*i)}")
        a(f"v_mov_b32 v255, 15")
        a(f"s_lshl_b32 s6, s2, 3")
        a(f"s_add_u32 s6, s6, {s(sW)}")
        a(f"s_lshl_b32 s6, s6, 6")
        a(f"s_add_u32 s6, s6, {PROF_OFF}")
        a(f"v_mov_b32 v239, 0")
        for q in range(4):
            a(f"buffer_store_dwordx4 {v(240+4*q,4)}, v239, {s(rWS,4)}, s6 offen offset:{16*q}")
    if PROF and HPROF:
        n -= 1
        isA = n == 11
        srd(a, rX, sPDBG, 256)
        def amax(word, val):
            a(f"v_mov_b32 v238, {val}")
            a(f"buffer_atomic_umax v238, v239, {s(rX,4)}, 0 offen offset:{4*word} sc1")
            a(f"s_waitcnt vmcnt(0)")
        a(f"s_not_b32 s6, s70")
        amax(0, "s6"); amax(1, "s70"); amax(14, s(70+2*n))
        if isA:
            for w_, st_ in enumerate((3, 4, 6, 9, 10, 11)): amax(2 + w_, s(70+2*st_))
        else:
            lab = a.newlabel("HP")
            a(f"s_cmp_eq_u32 {s(sJ)}, 3")
            a(f"s_cbranch_scc1 {lab}")
            for w_, st_ in enumerate((3, 5, 6)): amax(8 + w_, s(70+2*st_))
            a(f"s_endpgm")
            a.label(lab)
            for w_, st_ in enumerate((1, 3, 13)): amax(11 + w_, s(70+2*st_))
            a(f"s_not_b32 s6, {s(70+2*13)}")
            amax(15, "s6")
    a("s_endpgm")

def srd(a, r, ptr, size):
    a(f"s_mov_b32 {s(r)}, {s(ptr)}")
    a(f"s_and_b32 {s(r+1)}, {s(ptr+1)}, 0xffff")
    a(f"s_mov_b32 {s(r+2)}, {size}")
    a(f"s_mov_b32 {s(r+3)}, 0x20000")

def ids(a):
    a(f"s_and_b32 s6, s2, 7")
    if XP:
        a(f"s_lshl_b32 s6, s6, 2")
        a(f"s_lshr_b32 s6, {XP:#x}, s6")
        a(f"s_and_b32 s6, s6, 7")
    a(f"s_lshr_b32 s7, s2, 3")
    if MAP84:
        a(f"s_and_b32 {s(sG)}, s7, 3")
        if GX: a(f"s_xor_b32 {s(sG)}, {s(sG)}, {GX}")
        a(f"s_and_b32 {s(sB)}, s6, 1")
        a(f"s_lshl2_add_u32 {s(sG)}, {s(sB)}, {s(sG)}")
        if GX4: a(f"s_xor_b32 {s(sG)}, {s(sG)}, 4")
        a(f"s_lshr_b32 s6, s6, 1")
        a(f"s_lshr_b32 s7, s7, 2")
        a(f"s_lshl3_add_u32 {s(sB)}, s6, s7")
    else:
        a(f"s_and_b32 {s(sG)}, s7, 7")
        a(f"s_lshr_b32 s7, s7, 3")
        a(f"s_lshl2_add_u32 {s(sB)}, s6, s7")
    a(f"s_lshl3_add_u32 {s(sC)}, {s(sB)}, {s(sG)}")
    a(f"v_and_b32 v1, 63, v0")

def args_ready(a):
    a(f"s_waitcnt lgkmcnt(0)")
    a(f"s_barrier")
    a(f"s_add_u32 s6, {s(sPWS)}, {EP}")
    a(f"s_addc_u32 s7, {s(sPWS+1)}, 0")
    a(f"s_load_dwordx2 {s(sTAG,2)}, s[6:7], 0")

def fix_tag(a):
    a(f"s_add_u32 {s(sTAG)}, {s(sTAG)}, 1")
    a(f"s_addc_u32 {s(sTAG+1)}, {s(sTAG+1)}, 0")

def spin_begin(a, name):
    a(f"s_mov_b32 {s(sSPIN)}, {SPIN_MAX}")
    a.label(name + "_top")
def spin_retry(a, name, sleep=1):
    a(f"s_sleep {sleep}")
    a(f"s_sub_u32 {s(sSPIN)}, {s(sSPIN)}, 1")
    a(f"s_cmp_lg_u32 {s(sSPIN)}, 0")
    a(f"s_cbranch_scc1 {name}_top")
    a.label(name + "_ok")

def lds_wait(a, name, vaddr, off, val, vt, sleep=1):
    spin_begin(a, name)
    a(f"ds_read_b32 {v(vt)}, {v(vaddr)} offset:{off}")
    a(f"s_waitcnt lgkmcnt(0)")
    a(f"v_readfirstlane_b32 s6, {v(vt)}")
    a(f"s_cmp_ge_u32 s6, {val}")
    a(f"s_cbranch_scc1 {name}_ok")
    spin_retry(a, name, sleep)

def lds_inc(a, vsy, off, vone):
    a(f"s_mov_b64 exec, 1")
    a(f"ds_add_u32 {v(vsy)}, {v(vone)} offset:{off}")
    a(f"s_mov_b64 exec, -1")

def publish(a, name, vsy, off, last, vone, vt, flbase):
    a(f"s_lshl_b32 s6, {s(sB)}, 7")
    a(f"s_lshl3_add_u32 s6, {s(sG)}, s6")
    a(f"s_add_u32 s7, s6, {flbase}")
    a(f"v_mov_b32 {v(vt)}, {s(sTAG)}")
    a(f"v_mov_b32 {v(vt+1)}, {s(sTAG+1)}")
    a(f"s_mov_b64 exec, 1")
    a(f"s_waitcnt vmcnt(0)")
    if True:
        a(f"ds_add_rtn_u32 {v(vt+2)}, {v(vsy)}, {v(vone)} offset:{off}")
        a(f"s_waitcnt lgkmcnt(0)")
        a(f"v_readfirstlane_b32 s6, {v(vt+2)}")
        a(f"s_cmp_eq_u32 s6, {last}")
        a(f"s_cbranch_scc0 {name}_skip")
    a(f"buffer_store_dwordx2 {v(vt,2)}, off, {s(rWS,4)}, s7 sc1")
    a.label(name + "_skip")
    a(f"s_mov_b64 exec, -1")

def lds_wait2(a, name, vaddr, off, val, vt, sleep=1):
    spin_begin(a, name)
    a(f"ds_read2_b32 {v(vt,2)}, {v(vaddr)} offset0:{off//4} offset1:{off//4+1}")
    a(f"s_waitcnt lgkmcnt(0)")
    a(f"v_add_u32 {v(vt)}, {v(vt)}, {v(vt+1)}")
    a(f"s_nop 0")
    a(f"v_readfirstlane_b32 s6, {v(vt)}")
    a(f"s_cmp_ge_u32 s6, {val}")
    a(f"s_cbranch_scc1 {name}_ok")
    spin_retry(a, name, sleep)

def gen_a(a):
    vm = VM(a)
    a("s_setprio 2")
    ids(a)
    vKR, vQO, vIDX, vCA, vQV = 2, 3, 4, 6, 7
    Q, KROT, S0, S1_, C, O, KR, VR = 8, 12, 16, 32, 48, 64, 80, 128
    rot = (0, 4, 8, 12)
    res = [t for t in range(16) if t not in rot]
    kreg = lambda t: KROT if t in rot else KR + 4*res.index(t)
    kslot = lambda t: (t//8)*8192 + ((t//4) & 1)*1024
    sMASK, sKB, sVB, sKD, sPH = T, T+2, T+6, T+10, T+11
    sONES, sLO, sHI = T+12, T+13, 55
    vXW, vRSW, vTR, vXR, vRSR, vQT, vXL = 8, 9, 10, 11, 12, kreg(11)+3, 15
    vSY, vQ0, vZA = kreg(11), kreg(11)+1, kreg(11)+2
    vCW, vCF, vCP, vONE = kreg(13), kreg(13)+1, kreg(13)+2, kreg(13)+3
    XRAW, TMP = 16, 96
    t0, t1, t2, t3, t4, t5 = 96, 97, 98, 99, 100, 101
    a(f"v_lshrrev_b32 {v(t0)}, 3, v1")
    a(f"v_and_b32 {v(t1)}, 7, v1")
    a(f"v_lshlrev_b32 {v(vXL)}, 10, {v(t0)}")
    a(f"v_lshl_add_u32 {v(vXL)}, {v(t1)}, 4, {v(vXL)}")
    a(f"s_lshl_b32 s6, {s(sW)}, 4")
    a(f"v_add_u32 {v(t0)}, s6, {v(t0)}")
    a(f"v_mul_u32_u24 {v(vXW)}, {XN_STRIDE}, {v(t0)}")
    a(f"v_lshl_add_u32 {v(vXW)}, {v(t1)}, 4, {v(vXW)}")
    a(f"v_mov_b32 {v(vSY)}, {L_SY}")
    a(f"v_lshl_add_u32 {v(vRSW)}, {v(t0)}, 2, {v(vSY)}")
    a(f"v_mov_b32 {v(vONE)}, 1")
    a(f"s_lshl_b32 s6, {s(sW)}, 8")
    a(f"s_add_u32 s6, s6, {L_L + 128}")
    a(f"v_lshlrev_b32 {v(vZA)}, 10, {v(t1)}")
    a(f"v_add_u32 {v(vZA)}, s6, {v(vZA)}")
    a(f"v_lshrrev_b32 {v(t2)}, 5, v1")
    a(f"v_bfe_u32 {v(t3)}, v1, 2, 2")
    a(f"v_lshlrev_b32 {v(vTR)}, 10, {v(t2)}")
    a(f"v_lshl_add_u32 {v(vTR)}, {v(t3)}, 7, {v(vTR)}")
    a(f"v_bfe_u32 {v(t4)}, v1, 4, 1")
    a(f"v_lshl_add_u32 {v(vTR)}, {v(t4)}, 5, {v(vTR)}")
    a(f"v_and_b32 {v(t4)}, 3, v1")
    a(f"v_lshl_add_u32 {v(vTR)}, {v(t4)}, 3, {v(vTR)}")
    a(f"v_lshl_add_u32 {v(vCP)}, {v(t4)}, 2, {v(vSY)}")
    a(f"v_lshrrev_b32 {v(t3)}, 1, {v(t3)}")
    a(f"s_and_b32 s6, {s(sW)}, 1")
    a(f"s_lshr_b32 s7, {s(sW)}, 1")
    a(f"v_xor_b32 {v(t3)}, s6, {v(t3)}")
    a(f"v_lshl_add_u32 {v(vTR)}, {v(t3)}, 6, {v(vTR)}")
    a(f"v_add_u32 {v(vTR)}, {L_R2}, {v(vTR)}")
    a(f"s_lshl2_add_u32 s6, s6, s7")
    a(f"s_lshl_b32 s6, s6, 10")
    a(f"v_lshlrev_b32 {v(t5)}, 4, v1")
    a(f"v_add_u32 {v(vQ0)}, {L_QT}, {v(t5)}")
    a(f"v_add_u32 {v(vQT)}, s6, {v(vQ0)}")
    a(f"v_and_b32 {v(t0)}, 31, v1")
    a(f"s_lshl_b32 s6, s7, 5")
    a(f"v_add_u32 {v(t3)}, s6, {v(t0)}")
    a(f"v_mul_u32_u24 {v(vXR)}, {XN_STRIDE}, {v(t3)}")
    a(f"v_lshl_add_u32 {v(vXR)}, {v(t2)}, 4, {v(vXR)}")
    a(f"v_lshl_add_u32 {v(vRSR)}, {v(t3)}, 2, {v(vSY)}")
    a(f"s_mov_b32 {s(sONES)}, 0x3f803f80")
    a(f"s_mov_b32 {s(sLO)}, 0x00003f80")
    a(f"s_mov_b32 {s(sHI)}, 0x3f800000")
    a(f"s_mov_b32 {s(sMASK)}, 0x0000ffff")
    a(f"s_mov_b32 {s(sMASK+1)}, 0x0000ffff")
    a(f"s_lshl_b32 {s(sKD)}, {s(sW)}, 11")
    a(f"s_add_u32 {s(sKD)}, {s(sKD)}, {L_KROT}")
    a(f"v_add_u32 {v(vKR)}, {s(sKD)}, {v(t5)}")
    a(f"s_lshl_b32 s6, {s(sW)}, 11")
    a(f"s_add_u32 s7, s6, {L_QO}")
    a(f"v_add_u32 {v(vQO)}, s7, {v(t5)}")
    a(f"v_mov_b32 {v(vIDX)}, 0xdddddddd")
    a(f"v_mov_b32 {v(vIDX+1)}, 0xdddddddd")
    a(f"v_lshlrev_b32 {v(vCA)}, 4, {v(t0)}")
    a(f"v_add_u32 {v(vCA)}, {L_C}, {v(vCA)}")
    a(f"s_and_b32 s6, {s(sW)}, 1")
    a(f"s_lshr_b32 s7, {s(sW)}, 1")
    a(f"s_lshl2_add_u32 s7, s6, s7")
    a(f"s_lshl_b32 s7, s7, 9")
    a(f"v_add_u32 {v(vCW)}, s7, {v(vCA)}")
    a(f"s_lshl_b32 s7, {s(sW)}, 2")
    a(f"v_add_u32 {v(vCF)}, s7, {v(vSY)}")
    a(f"v_and_b32 {v(t3)}, 15, v1")
    a(f"v_lshlrev_b32 {v(vQV)}, 4, {v(t3)}")
    a(f"v_lshl_add_u32 {v(vQV)}, {v(t2)}, 8, {v(vQV)}")
    if VFULL:
        a(f"v_bfe_u32 {v(t4)}, v1, 4, 1")
        a(f"v_lshl_add_u32 {v(vQV)}, {v(t4)}, 9, {v(vQV)}")
    a(f"s_lshl_b32 s6, {s(sW)}, 14")
    a(f"s_add_u32 {s(sVB)}, s6, {VF}")
    a(f"s_add_u32 {s(sKB)}, s6, {KF}")
    a(f"s_sub_u32 {s(sKB)}, {s(sKB)}, {s(sKD)}")
    if KVROT:
        a(f"s_and_b32 s7, {s(sG)}, 3")
        a(f"s_lshl_b32 s7, s7, 12")
    else:
        a(f"s_mov_b32 s7, 0")
    for i in (3, 2, 1, 0):
        a(f"s_xor_b32 s6, s7, {4096*i}")
        a(f"s_add_u32 {s(sKB+i)}, {s(sKB)}, s6")
        a(f"s_add_u32 {s(sVB+i)}, {s(sVB)}, s6")
    a(f"v_cmp_eq_u32 vcc, 20, v1")
    a(f"v_mov_b32 v0, 0x3f80")
    a(f"v_mov_b32 v1, 0")
    a(f"v_cndmask_b32 v0, 0, v0, vcc")
    if VFULL: a(f"v_cmp_eq_u32 vcc, 0, {v(t3)}")
    else: a(f"v_cmp_eq_u32 vcc, 16, {v(t0)}")
    a(f"v_mov_b32 v92, 0x3f803f80")
    a(f"s_lshl_b32 s6, {s(sB)}, 16")
    a(f"v_cndmask_b32 v92, 0, v92, vcc")
    a(f"v_mov_b32 v93, v92")
    a(f"s_lshl_b32 s7, {s(sW)}, 14")
    a(f"s_add_u32 s6, s6, s7")
    a(f"s_add_u32 s7, s6, 8192")
    a(f"s_waitcnt lgkmcnt(0)")
    srd(a, rX, sPX, 2097152)
    a(f"s_barrier")
    for st in range(2):
        for j in range(8):
            vm.issue(("x", st, j), f"buffer_load_dwordx4 {v(XRAW+32*st+4*j,4)}, {v(vXL)}, {s(rX,4)}, s{6+st} offen offset:{128*j}")
    srd(a, rWS, sPWS, WS_SIZE)
    for r in range(128, 256, 2):
        if not VFULL or r & 4: a(f"v_pk_mov_b32 {v(r,2)}, v[92:93], v[92:93]")
    S1, S2 = 80, 82
    for i in range(4): a(f"v_mov_b32 {v(80+i)}, 0")
    inv = f2u(1.0/512)
    k = 0
    for st in range(2):
        for j in range(8):
            vm.wait(("x", st, j))
            for d in range(4):
                x = XRAW + 32*st + 4*j + d
                a(f"v_dot2_f32_bf16 {v(S1+st)}, {v(x)}, {s(sONES)}, {v(S1+st)}")
                a(f"v_dot2_f32_bf16 {v(S2+st)}, {v(x)}, {v(x)}, {v(S2+st)}")
        if st == 1: stamp(a, 1)
        a("s_nop 2")
        for dpp in ("quad_perm:[1,0,3,2]", "quad_perm:[2,3,0,1]", "row_half_mirror"):
            for r in (S1+st, S2+st):
                a(f"v_add_f32_dpp {v(r)}, {v(r)}, {v(r)} {dpp} row_mask:0xf bank_mask:0xf")
            a("s_nop 0")
        for r in (S1+st, S2+st): a(f"v_mul_f32 {v(r)}, {inv:#x}, {v(r)}")
        a(f"v_fma_f32 {v(S2+st)}, -{v(S1+st)}, {v(S1+st)}, {v(S2+st)}")
        a(f"v_max_f32 {v(S2+st)}, 0, {v(S2+st)}")
        a(f"v_cvt_pk_bf16_f32 {v(84+st)}, {v(S1+st)}, {v(S2+st)}")
        a(f"v_lshlrev_b32 {v(S1+st)}, 16, {v(84+st)}")
        r = 84 + st
        rs_ops = [f"v_and_b32 {v(r)}, 0xffff0000, {v(r)}",
                  f"v_add_f32 {v(r)}, {f2u(1e-5):#x}, {v(r)}",
                  f"v_cvt_pk_bf16_f32 {v(r)}, {v(r)}, {v(r)}",
                  f"v_and_b32 {v(r)}, 0xffff0000, {v(r)}",
                  f"v_sqrt_f32 {v(r)}, {v(r)}",
                  f"v_cvt_pk_bf16_f32 {v(r)}, {v(r)}, {v(r)}",
                  f"v_and_b32 {v(r)}, 0xffff0000, {v(r)}",
                  f"v_rcp_f32 {v(r)}, {v(r)}"]
        for j in range(8):
            t = TMP + 8*(k % 2); k += 1
            for d in range(4):
                x = XRAW + 32*st + 4*j + d
                a(f"v_dot2_f32_bf16 {v(t+2*d)}, {v(x)}, {s(sLO)}, {v(S1+st)} neg_lo:[0,0,1]")
                a(f"v_dot2_f32_bf16 {v(t+2*d+1)}, {v(x)}, {s(sHI)}, {v(S1+st)} neg_lo:[0,0,1]")
            a(rs_ops[j])
            for d in range(4):
                x = XRAW + 32*st + 4*j + d
                a(f"v_cvt_pk_bf16_f32 {v(x)}, {v(t+2*d)}, {v(t+2*d+1)}")
            a(f"ds_write_b128 {v(vXW)}, {v(XRAW+32*st+4*j,4)} offset:{128*j + st*8*XN_STRIDE}")
        a(f"ds_write_b32 {v(vRSW)}, {v(84+st)} offset:{SY_RS + 32*st}")
    lds_inc(a, vSY, SY_LN, vONE)
    stamp(a, 2)
    lds_wait2(a, "A_ln", vSY, SY_LN, 7, 96, 0)
    stamp(a, 3)
    ACC, WF, XF = 64, 16, 40
    LA = QLA
    vSC, vFLG, KS = kreg(9), kreg(9)+2, [Q, kreg(10)]
    QA, QB = kreg(14), kreg(15)
    sLD = T + 11
    a(f"ds_read_b32 {v(vSC)}, {v(vRSR)} offset:{SY_RS}")
    def rd(st):
        a(f"ds_read_b64_tr_b16 {v(WF+4*(st%6),2)}, {v(vTR)} offset:{2048*st}")
        a(f"ds_read_b64_tr_b16 {v(WF+4*(st%6)+2,2)}, {v(vTR)} offset:{2048*st+512}")
        a(f"ds_read_b128 {v(XF+4*(st%6),4)}, {v(vXR)} offset:{32*st}")
    def rdks():
        for i in range(NS//2): a(f"ds_read_b128 {v(KS[i],4)}, {v(vQ0)} offset:{1024*i}")
    a(f"v_add_u32 {v(vQ0)}, {(L_KS - L_QT) & 0xffffffff}, {v(vQ0)}")
    assert L_QT - L_KS == 4096
    for st in range(LA): rd(st)
    ex = 0
    for st in range(32):
        if st + LA < 32: rd(st + LA)
        if st == 30:
            a(f"ds_read2_b32 {v(vFLG,2)}, {v(vSY)} offset0:{SY_KVRDY//4} offset1:{SY_KS//4}")
            rdks(); ex = 1 + NS//2
        a(f"s_waitcnt lgkmcnt({3*min(LA, 31-st) + ex})")
        c = "0" if st == 0 else v(ACC, 16)
        a(f"v_mfma_f32_32x32x16_bf16 {v(ACC,16)}, {v(WF+4*(st%6),4)}, {v(XF+4*(st%6),4)}, {c}")
    a(f"s_setprio 3")
    vm.drained()
    def ldK(t, tag):
        vm.issue(tag, f"buffer_load_dwordx4 {v(kreg(t),4)}, {v(vKR)}, {s(rWS,4)}, {s(sKB+t//4)} offen offset:{(t%4)*1024} sc1")
    def dmaK(t, tag):
        a(f"s_add_u32 m0, {s(sKD)}, {kslot(t)}")
        a(f"s_nop 0")
        vm.issue(tag, f"buffer_load_dwordx4 {v(vKR)}, {s(rWS,4)}, {s(sKB+t//4)} offen sc1 lds")
    def group(t, dma=True, regs=True):
        tag = ("g", t)
        if dma and t == 9: dmaK(0, tag)
        if dma and t + 2 in rot: dmaK(t + 2, tag)
        if not regs: return
        if t + 1 in res: ldK(t + 1, tag)
        vm.issue(tag, f"buffer_load_dwordx4 {v(VR+8*t,4)}, {v(vQV)}, {s(rWS,4)}, {s(sVB+t//4)} offen offset:{(t%4)*1024} sc1")
    assert VFULL and DPRE <= 8
    def first_loads():
        vm.drained()
        ldK(0, "k0")
        for t in range(DPRE): group(t, dma=False)
    a(f"v_mul_f32 {v(vSC)}, {CSCALE:#x}, {v(vSC)}")
    a(f"s_waitcnt lgkmcnt({NS//2})")
    a(f"v_readfirstlane_b32 {s(sLD)}, {v(vFLG)}")
    a(f"v_readfirstlane_b32 s7, {v(vFLG+1)}")
    stamp(a, 4)
    a(f"s_cmp_eq_u32 {s(sLD)}, 0")
    a(f"s_cbranch_scc1 A_nol")
    first_loads()
    a.label("A_nol")
    a.nop(8)
    for hh in range(2):
        d = (QA, QB)[hh]
        for i in range(4):
            r = ACC + 8*hh + 2*i
            a(f"v_pk_mul_f32 {v(r,2)}, {v(r,2)}, {v(vSC,2)} op_sel_hi:[1,0]")
        for i in range(4):
            r = ACC + 8*hh + 2*i
            a(f"v_cvt_pk_bf16_f32 {v(d+i)}, {v(r)}, {v(r+1)}")
        a(f"ds_write_b128 {v(vQT)}, {v(d,4)} offset:{2048*hh}")
    a(f"s_cmp_lg_u32 s7, 0")
    a(f"s_waitcnt lgkmcnt(2)")
    a(f"s_cbranch_scc1 A_ks_ok")
    spin_begin(a, "A_ks")
    a(f"ds_read_b32 {v(vFLG)}, {v(vSY)} offset:{SY_KS}")
    rdks()
    a(f"s_waitcnt lgkmcnt(0)")
    a(f"v_readfirstlane_b32 s7, {v(vFLG)}")
    a(f"s_cmp_lg_u32 s7, 0")
    a(f"s_cbranch_scc1 A_ks_ok")
    spin_retry(a, "A_ks", 0)
    for hh in range(2):
        a(f"v_mfma_f32_32x32x16_bf16 {v((S0, C)[hh],16)}, {v(KS[0],4)}, {v((QA, QB)[hh],4)}, 0")
    if NS == 2: a(f"v_mfma_f32_32x32x8_bf16 {v(O,16)}, v[0:1], {v(vIDX,2)}, 0")
    a.nop(10)
    nr = 8*NS
    for base in (S0, C):
        for i in range(0, nr - 2, 2):
            a(f"v_max3_f32 {v(base)}, {v(base)}, {v(base+i+1)}, {v(base+i+2)}")
        a(f"v_max_f32 {v(base)}, {v(base)}, {v(base+nr-1)}")
    for base in (S0, C): a(f"v_mov_b32 {v(base+1)}, {v(base)}")
    a(f"s_nop 0")
    for base in (S0, C): a(f"v_permlane32_swap_b32 {v(base)}, {v(base+1)}")
    if NS == 4: a(f"v_mfma_f32_32x32x8_bf16 {v(O,16)}, v[0:1], {v(vIDX,2)}, 0")
    else: a(f"s_nop 0")
    for base in (S0, C): a(f"v_max_f32 {v(base)}, {v(base)}, {v(base+1)}")
    for base in (S0, C): a(f"v_sub_f32 {v(base)}, {f2u(-BIAS):#x}, {v(base)}")
    for i in range(1, 4):
        for base in (S0, C): a(f"v_mov_b32 {v(base+i)}, {v(base)}")
    a(f"ds_write_b128 {v(vCW)}, {v(S0,4)}")
    a(f"ds_write_b128 {v(vCW)}, {v(C,4)} offset:1024")
    lds_inc(a, vSY, SY_QCNT, vONE)
    stamp(a, 6)
    a(f"s_cmp_lg_u32 {s(sLD)}, 0")
    a(f"s_cbranch_scc1 A_kvb")
    lds_wait(a, "A_kw", vSY, SY_KVRDY, 1, S0, ASL)
    first_loads()
    a.label("A_kvb")
    spin_begin(a, "A_c")
    a(f"ds_read_b32 {v(S0)}, {v(vSY)} offset:{SY_QCNT}")
    a(f"ds_read_b128 {v(Q,4)}, {v(vQ0)} offset:4096")
    for i in range(4): a(f"ds_read_b128 {v(C+4*i,4)}, {v(vCA)}")
    a(f"s_waitcnt lgkmcnt(5)")
    a(f"v_readfirstlane_b32 s6, {v(S0)}")
    a(f"s_cmp_ge_u32 s6, 4")
    a(f"s_cbranch_scc1 A_c_ok")
    spin_retry(a, "A_c", CSL)
    stamp(a, 7)
    for t in range(DPRE): group(t, regs=False)
    a(f"ds_write_b32 {v(vZA)}, v1")
    a(f"ds_write_b32 {v(vCF)}, {v(vONE)} offset:{SY_CF}")
    stamp(a, 9)
    def PV(t, half):
        sb = (S0 if t % 2 == 0 else S1_) + 8*half
        a(f"v_smfmac_f32_32x32x32_bf16 {v(O,16)}, {v(VR+8*t+4*half,4)}, {v(sb,8)}, {v(vIDX)}")
    def QK(t):
        sb = S0 if t % 2 == 0 else S1_
        a(f"v_mfma_f32_32x32x16_bf16 {v(sb,16)}, {v(kreg(t),4)}, {v(Q,4)}, {v(C,16)}")
    def rdK(t): a(f"ds_read_b128 {v(KROT,4)}, {v(vKR)} offset:{kslot(t)}")
    def rdQC(p):
        a(f"ds_read_b128 {v(Q,4)}, {v(vQV)} offset:{1024*p}")
        for i in range(4): a(f"ds_read_b128 {v(C+4*i,4)}, {v(vCA)} offset:{512*p}")
    def flush(p):
        r, o = (vQO, 8192*p) if p < 7 else (vKR, 0)
        a(f"ds_write_b128 {v(r)}, {v(O,4)} offset:{o}")
        a(f"ds_write_b128 {v(r)}, {v(O+4,4)} offset:{o+1024}")
        a(f"ds_write_addtid_b32 {v(O+8)} offset:{TID_OFF + 1024*p}")
    vm.wait("k0", " lgkmcnt(2)")
    a(f"s_setprio {APRIO}")
    QK(0)
    a.nop(12)
    for t in range(16):
        cur = S0 if t % 2 == 0 else S1_
        E = lambda i: a(f"v_exp_f32 {v(cur+i)}, {v(cur+i)}")
        if t == 0: stamp(a, 1)
        if t == 4: stamp(a, 2)
        if t == 8: stamp(a, 5)
        if t == 12: stamp(a, 8)
        E(0); E(1)
        if t > 0: PV(t-1, 1)
        if t + DPRE < 16: group(t + DPRE)
        if t == 16 - DPRE:
            a(f"s_sub_u32 s6, {L_QT}, {s(sKD)}")
            a(f"v_add_u32 {v(vQV)}, s6, {v(vKR)}")
            a(f"s_lshl_b32 s6, {s(sW)}, 8")
            a(f"s_add_u32 m0, s6, {L_L - TID_OFF}")
        E(2); E(3); E(4)
        nt = (t + 1) % 16
        vm.wait(("g", t), " lgkmcnt(0)" if nt in rot else "")
        QK(nt)
        if (t + 2) % 16 in rot: rdK((t + 2) % 16)
        if t == 15: rdK(4)
        for i in range(5, 10):
            if VFULL and i < 7:
                for q in range(2): a(f"v_permlane16_swap_b32 {v(VR+8*t+2*(i-5)+q)}, {v(VR+8*t+4+2*(i-5)+q)}")
            E(i)
        PV(t, 0)
        if t == 14: rdQC(1)
        for i in range(10, 16): E(i)
    stamp(a, 10)
    if PROF: a(f"s_memtime {s(70+2*12,2)}")
    for p in range(1, 8):
      for t in range(16):
        cur = S0 if t % 2 == 0 else S1_
        E = lambda i: a(f"v_exp_f32 {v(cur+i)}, {v(cur+i)}")
        nt = (t + 1) % 16
        if t == 0:
            E(0); E(1); PV(15, 1); E(2); E(3); E(4); QK(1)
            for i in range(5, 13):
                E(i)
                if p == 6 and i == 6: a(f"v_readfirstlane_b32 s6, {v(vIDX+1)}")
                if p == 6 and i == 8: a(f"s_cmp_lt_u32 s6, 4")
                if p == 6 and i == 8: a(f"s_cbranch_scc1 A_chk")
                if p == 6 and i == 8: a.label("A_back")
                if p == 6 and i == 9: a(f"v_mov_b32 {v(vIDX+1)}, {v(vIDX)}")
            flush(p - 1)
            a(f"v_mfma_f32_32x32x8_bf16 {v(O,16)}, v[0:1], {v(vIDX,2)}, 0")
            E(13); E(14); E(15)
            PV(0, 0)
            continue
        last = p == 7 and t == 15
        p1 = max(P1, 3) if t == 1 else P1
        pq = max(PQ, p1)
        for i in range(16 + 1):
            if i == p1: PV(t-1, 1)
            if i == pq and not last:
                if nt in rot: a(f"s_waitcnt lgkmcnt(0)")
                QK(nt)
                if nt in rot and not (p == 7 and nt == 12): rdK((nt + 4) % 16)
            if i == P0: PV(t, 0)
            if i == 10 and t == 14 and p < 7:
                rdQC(p + 1)
                if p == 5: a(f"ds_read_b32 {v(vIDX+1)}, {v(vCA)} offset:{L_SY + SY_XFREE - L_C}")
            if i < 16: E(i)
    if PROF: a(f"s_memtime {s(70+2*13,2)}")
    stamp(a, 14)
    a(f"s_nop 1")
    PV(15, 1)
    a.nop(12)
    flush(7)
    endpgm(a, 11)
    a.label("A_chk")
    lds_wait(a, "A_x", vCA, L_SY + SY_XFREE - L_C, 4, vIDX+1)
    a(f"s_branch A_back")

def setup_u(a, vU=4, vONE=3):
    a(f"v_lshrrev_b32 v8, 3, v1")
    a(f"v_and_b32 v9, 7, v1")
    a(f"v_lshrrev_b32 v10, 2, v1")
    a(f"v_and_b32 v10, 4, v10")
    a(f"v_xor_b32 v10, v9, v10")
    a(f"v_lshlrev_b32 {v(vU)}, 10, v8")
    a(f"v_lshl_add_u32 {v(vU)}, v10, 4, {v(vU)}")
    a(f"s_lshl_b32 s6, {s(sG)}, 7")
    a(f"v_add_u32 {v(vU)}, s6, {v(vU)}")
    a(f"v_mov_b32 {v(vONE)}, 1")

def gen_g(a):
    vm = VM(a)
    ids(a)
    a(f"s_sub_u32 {s(sJ)}, {s(sW)}, 4")
    vSY, vONE, vU = 2, 3, 4
    a(f"v_mov_b32 {v(vSY)}, {L_SY}")
    a(f"v_lshl_add_u32 v12, v1, 2, {v(vSY)}")
    a(f"v_mov_b32 v13, 0")
    a(f"ds_write_b32 v12, v13")
    setup_u(a)
    sP, sWo, sRho, sW0 = T+1, T+2, T+3, T+4
    vW1, vBW, vT0, vT1, vXR, vX0 = 5, 6, 7, 11, 12, 48
    ACC, AF, XF, ST = 64, 16, 32, 128
    sHR = T + 9
    if BAL:
        a(f"s_mul_i32 s6, {s(sG)}, 3")
        a(f"s_add_u32 {s(sP)}, s6, {s(sJ)}")
        a(f"s_add_u32 s6, {s(sP)}, 12")
        a(f"s_and_b32 {s(sHR)}, s6, 1")
        a(f"s_lshr_b32 s6, s6, 1")
        a(f"s_cmp_ge_u32 {s(sG)}, 4")
        a(f"s_cselect_b32 {s(sP)}, s6, {s(sP)}")
        a(f"s_cselect_b32 {s(sHR)}, {s(sHR)}, 0")
    else:
        a(f"s_mul_i32 {s(sP)}, {s(sG)}, 3")
        a(f"s_cmp_eq_u32 {s(sG)}, 7")
        a(f"s_cselect_b32 {s(sP)}, 20, {s(sP)}")
        a(f"s_add_u32 {s(sP)}, {s(sP)}, {s(sJ)}")
    a(f"s_movk_i32 s6, 2752")
    a(f"v_lshlrev_b32 v13, 4, v9")
    a(f"v_mad_u32_u24 {v(vW1)}, v8, s6, v13")
    a(f"s_lshl_b32 {s(sW0)}, {s(sP)}, 7")
    a(f"s_and_b32 {s(sRho)}, {s(sB)}, {W1ROT}")
    a(f"s_lshl_b32 {s(T+6)}, {s(sRho)}, 13")
    a(f"s_lshl_b32 {s(T+7)}, {s(sJ)}, 10")
    args_ready(a)
    srd(a, rWA, sPWQ, 524288)
    srd(a, rWB, sPW1, 1409024)
    if not BAL:
        a(f"s_lshr_b32 s6, {s(sG)}, 1")
        a(f"s_add_u32 s6, s6, {s(sJ)}")
        a(f"s_cmp_eq_u32 s6, 5")
        a(f"s_cselect_b32 {s(rWB+2)}, 0, {s(rWB+2)}")
        a(f"s_cselect_b32 {s(T+8)}, 1, 0")
    R = W1D
    assert R % 2 == 0 and 4 <= R <= 32
    def ldw(u):
        if u % 8 == 0:
            a(f"s_xor_b32 s6, {s(sRho)}, {u//8}")
            a(f"s_mul_i32 s6, s6, {64*2752}")
            a(f"s_add_u32 {s(sWo)}, {s(sW0)}, s6")
        if not (DBG & 2): vm.issue(("w1", u), f"buffer_load_dwordx4 {v(ST+4*(u%R),4)}, {v(vW1)}, {s(rWB,4)}, {s(sWo)} offen")
        if u % 8 != 7: a(f"s_add_u32 {s(sWo)}, {s(sWo)}, {8*2752}")
    for i in range(22):
        if i == W1POS:
            for u in range(W1F): ldw(u)
        if i == 21: a(f"s_mov_b32 {s(T+7)}, {63*1024}")
        a(f"s_xor_b32 s6, {s(T+7)}, {s(T+6)}")
        a(f"s_add_u32 m0, s6, {L_R2}")
        a(f"s_lshl_b32 s6, s6, 3")
        vm.issue("wq", f"buffer_load_dwordx4 {v(vU)}, {s(rWA,4)}, s6 offen lds")
        if i < 20: a(f"s_add_u32 {s(T+7)}, {s(T+7)}, 3072")
    srd(a, rWS, sPWS, WS_SIZE)
    if not BAL:
        a(f"s_cmp_eq_u32 {s(T+8)}, 1")
        a(f"s_cbranch_scc1 G_idle")
    for u in range(W1F if W1POS < 22 else 0, R): ldw(u)
    a.label("G_f1")
    if BAL:
        srd(a, rWA, sPWO, 524288)
        a(f"s_and_b32 s6, {s(sB)}, 7")
        a(f"s_lshl2_add_u32 s6, s6, {s(sJ)}")
        a(f"s_lshl_b32 {s(T+10)}, s6, 14")
        a(f"s_add_u32 {s(T+11)}, {s(T+10)}, 8192")
    a(f"s_lshl_b32 s6, {s(sJ)}, 12")
    a(f"s_add_u32 s6, s6, {L_BNC}")
    a(f"v_lshlrev_b32 {v(vBW)}, 7, v8")
    a(f"v_lshl_add_u32 {v(vBW)}, v10, 4, {v(vBW)}")
    a(f"v_add_u32 {v(vBW)}, s6, {v(vBW)}")
    a(f"v_lshrrev_b32 v13, 5, v1")
    a(f"v_bfe_u32 v14, v1, 2, 2")
    a(f"v_lshlrev_b32 {v(vT0)}, 10, v13")
    a(f"v_lshl_add_u32 {v(vT0)}, v14, 7, {v(vT0)}")
    a(f"v_bfe_u32 v15, v1, 4, 1")
    a(f"v_lshl_add_u32 {v(vT0)}, v15, 5, {v(vT0)}")
    a(f"v_and_b32 v15, 3, v1")
    a(f"v_lshl_add_u32 {v(vT0)}, v15, 3, {v(vT0)}")
    a(f"v_lshrrev_b32 v14, 1, v14")
    a(f"v_lshl_add_u32 {v(vT0)}, v14, 6, {v(vT0)}")
    a(f"v_xor_b32 {v(vT1)}, 64, {v(vT0)}")
    a(f"v_add_u32 {v(vT0)}, s6, {v(vT0)}")
    a(f"v_add_u32 {v(vT1)}, s6, {v(vT1)}")
    a(f"v_and_b32 v14, 31, v1")
    a(f"v_mul_u32_u24 {v(vXR)}, {XN_STRIDE}, v14")
    a(f"v_lshl_add_u32 {v(vXR)}, v13, 4, {v(vXR)}")
    if BAL:
        a(f"s_mul_i32 s6, {s(sHR)}, {32*XN_STRIDE}")
        a(f"v_add_u32 {v(vXR)}, s6, {v(vXR)}")
    for q in range(8):
        a(f"s_xor_b32 s6, {s(sRho)}, {q}")
        a(f"s_lshl_b32 s6, s6, 7")
        a(f"v_add_u32 {v(vX0+q)}, s6, {v(vXR)}")
    for i in range(4): a(f"v_mov_b32 {v(56+i)}, -1")
    a(f"v_lshlrev_b32 v60, 4, v1")
    a(f"s_lshl1_add_u32 {s(T+5)}, {s(sC)}, {s(sJ)}")
    a(f"s_lshl_b32 {s(T+5)}, {s(T+5)}, 12")
    a(f"s_add_u32 {s(T+5)}, {s(T+5)}, {OF}")
    def wr1(u):
        if not (DBG & 1): vm.wait(("w1", u))
        a(f"ds_write_b128 {v(vBW)}, {v(ST+4*(u%R),4)} offset:{(u%4)*1024}")
    def trd(st, ct):
        b = AF + 8*(st % 2) + 4*ct; o = (st % 2)*2048
        a(f"ds_read_b64_tr_b16 {v(b,2)}, {v(vT1 if ct else vT0)} offset:{o}")
        a(f"ds_read_b64_tr_b16 {v(b+2,2)}, {v(vT1 if ct else vT0)} offset:{o+512}")
    def xrd(st, rt):
        a(f"ds_read_b128 {v(XF+8*(st%2)+4*rt,4)}, {v(vX0+st//4)} offset:{32*(st%4) + rt*32*XN_STRIDE}")
    vm.wait("wq")
    lds_inc(a, vSY, SY_WQ, vONE)
    for u in range(4): wr1(u)
    trd(0, 0); trd(0, 1)
    a(f"s_waitcnt lgkmcnt(0)")
    for u in range(R, R + 4): ldw(u)
    fix_tag(a)
    stamp(a, 1)
    lds_wait(a, "G_ln", vSY, SY_LN, 4, 61, 1)
    if F1W: lds_wait(a, "G_q", vSY, SY_QCNT, F1W, 61, 1)
    stamp(a, 2)
    if F1PRIO or F3P == 3: a(f"s_setprio {F1PRIO}")
    q0 = list(vm.q)
    def ffn1(half):
        vm.q = list(q0)
        sf = "h" if half else ""
        rts = (0,) if half else (0, 1)
        for rt in rts: xrd(0, rt)
        for st in range(32):
            a(f"s_waitcnt lgkmcnt({2 if 0 < st < 31 else 0})")
            if BAL and WOPF and st == WOPS:
                for q in range(2): vm.issue("pf", f"buffer_load_dwordx4 {v(192+4*q,4)}, {v(vU)}, {s(rWA,4)}, {s(T+10+q)} offen")
            if st == 10: stamp(a, 13)
            if st == 20: stamp(a, 14)
            k = 0
            for ct in range(2):
                for rt in range(2):
                    acc = ACC + 32*ct + 16*rt
                    c = "0" if st == 0 else v(acc, 16)
                    if rt in rts: a(f"v_mfma_f32_32x32x16_bf16 {v(acc,16)}, {v(AF+8*(st%2)+4*ct,4)}, {v(XF+8*(st%2)+4*rt,4)}, {c}")
                    if k < 2 and st + 1 < 32:
                        trd(st + 1, k)
                        if k in rts: xrd(st + 1, k)
                    if k >= 2 and st + 2 < 32:
                        u = 2*(st+2) + k - 2
                        wr1(u)
                        if u + R < 64: ldw(u + R)
                    k += 1
        stamp(a, 3)
        a(f"s_setprio {GHI}")
        lds_inc(a, vSY, SY_XFREE, vONE)
        a(f"s_cmp_ge_u32 {s(sJ)}, 2")
        a(f"s_cbranch_scc1 G_nop{sf}")
        for p in range(4):
            a(f"buffer_store_dwordx4 v[56:59], v60, {s(rWS,4)}, {s(T+5)} offen offset:{p*1024} sc1")
        a.label("G_nop" + sf)
        a(f"v_lshlrev_b32 v8, 4, v1")
        a(f"s_mul_i32 s6, {s(sB)}, {2*HSTR}")
        a(f"s_lshl2_add_u32 s6, {s(sP)}, s6")
        if half:
            a(f"s_mul_i32 s7, {s(sHR)}, {HSTR}")
            a(f"s_add_u32 s6, s6, s7")
            a.nop(4)
        a(f"s_lshl_b32 s6, s6, 10")
        a(f"s_add_u32 s6, s6, {HF}")
        a(f"s_add_u32 s7, s6, {HSTR*1024}")
        k = 0
        for ct in range(2):
            for rt in rts:
                for hh in range(2):
                    d = ST + 4*k; k += 1
                    for i in range(4):
                        r = ACC + 32*ct + 16*rt + 8*hh + 2*i
                        a(f"v_cvt_pk_bf16_f32 {v(d+i)}, {v(r)}, {v(r+1)}")
                    for i in range(4):
                        a(f"v_pk_max_i16 {v(d+i)}, {v(d+i)}, 0")
                    a(f"buffer_store_dwordx4 {v(d,4)}, v8, {s(rWS,4)}, s{6+rt} offen offset:{1024*(2*ct+hh)} sc1")
    if BAL:
        a(f"s_cmp_lt_u32 {s(sP)}, 12")
        a(f"s_cbranch_scc1 G_full")
        ffn1(1)
        a(f"s_branch G_hpub")
        a(".p2align 6")
        a.label("G_full")
    ffn1(0)
    a.label("G_hpub")
    publish(a, "G_pubh", vSY, SY_HCNT, 3 if BAL else 2, vONE, 16, FL_H)
    stamp(a, 4)
    if BAL:
        a(f"s_cmp_eq_u32 {s(sJ)}, 2")
        a(f"s_cbranch_scc1 G_wod")
    a.label("G_ffn2")
    if DBG & 4: a(f"s_branch G_end")
    a(f"s_setprio {GHI}")
    vm.drained()
    sStg, sWo, sHo, sCT, sRT, sXO, sWj, sHb = T, T+2, T+3, T+4, T+5, T+6, T+7, T+9
    vA1, vB0, vB1, vT0, vT1, vXO, vL16, vTW = 5, 6, 7, 11, 12, 10, 13, 14
    ACC, AF, XD, XU = 64, 16, 144, 128
    BFS = [32, 40, 48, 56, 128, 136]
    WFR = lambda hh, g2: 160 + 32*(hh % 3) + 4*g2
    assert FD <= 6
    a(f"s_lshl_b32 {s(sWj)}, {s(sJ)}, 14")
    a(f"s_mul_i32 {s(sStg)}, {s(sJ)}, 12288")
    a(f"s_add_u32 {s(sStg)}, {s(sStg)}, {L_STG}")
    srd(a, rWA, sPW2, 1409024)
    srd(a, rX, sPX, 2097152)
    srd(a, rOUT, sPOUT, 2097152)
    a(f"v_add_u32 {v(vA1)}, {8192-1024}, {v(vU)}")
    N = 22
    if F2ROT:
        a(f"s_lshl1_add_u32 s6, {s(sG)}, {s(sB)}")
        a(f"s_and_b32 s6, s6, 7")
        a(f"s_mul_i32 s6, s6, 11")
        a(f"s_lshr_b32 s6, s6, 2")
    else:
        a(f"s_mov_b32 s6, 0")
    a(f"s_lshl_b32 {s(sHo)}, s6, 12")
    a(f"s_lshl_b32 {s(sWo)}, s6, 16")
    a(f"s_add_u32 {s(sWo)}, {s(sWo)}, {s(sWj)}")
    def issueW(i):
        a(f"s_add_u32 m0, {s(sStg)}, {(i % FD)*2048}")
        a(f"s_nop 0")
        vm.issue(("f", i), f"buffer_load_dwordx4 {v(vU)}, {s(rWA,4)}, {s(sWo)} offen lds")
        vm.issue(("f", i), f"buffer_load_dwordx4 {v(vA1)}, {s(rWA,4)}, {s(sWo)} offen offset:1024 lds")
        a(f"s_add_u32 {s(sWo)}, {s(sWo)}, {4*16384}")
        a(f"s_cmp_ge_u32 {s(sWo)}, {N*65536}")
        a(f"s_cselect_b32 {s(sWo)}, {s(sWj)}, {s(sWo)}")
    def issueH(i):
        vm.issue(("f", i), f"buffer_load_dwordx4 {v(BFS[i%FD],4)}, {v(vB0)}, {s(rWS,4)}, {s(sHo)} offen sc1")
        vm.issue(("f", i), f"buffer_load_dwordx4 {v(BFS[i%FD]+4,4)}, {v(vB1)}, {s(rWS,4)}, {s(sHo)} offen sc1")
        a(f"s_add_u32 {s(sHo)}, {s(sHo)}, 4096")
        a(f"s_cmp_ge_u32 {s(sHo)}, {N*4096}")
        a(f"s_cselect_b32 {s(sHo)}, 0, {s(sHo)}")
    a(f"s_and_b32 {s(sCT)}, {s(sJ)}, 1")
    a(f"s_lshr_b32 {s(sRT)}, {s(sJ)}, 1")
    a(f"v_and_b32 v8, 31, v1")
    a(f"v_lshrrev_b32 v9, 5, v1")
    a(f"v_lshlrev_b32 {v(vXO)}, 10, v8")
    a(f"v_lshl_add_u32 {v(vXO)}, v9, 5, {v(vXO)}")
    a(f"s_lshl_b32 s6, {s(sB)}, 16")
    a(f"s_lshl_b32 s7, {s(sRT)}, 15")
    a(f"s_add_u32 {s(sXO)}, s6, s7")
    a(f"s_lshl_b32 s6, {s(sG)}, 7")
    a(f"s_lshl_b32 s7, {s(sCT)}, 6")
    a(f"s_add_u32 s6, s6, s7")
    a(f"s_add_u32 {s(sXO)}, {s(sXO)}, s6")
    for q in range(2):
        vm.issue("xd", f"buffer_load_dwordx4 {v(XD+4*q,4)}, {v(vXO)}, {s(rX,4)}, {s(sXO)} offen offset:{16*q}")
    a(f"v_lshlrev_b32 {v(vL16)}, 4, v1")
    a(f"s_mul_i32 {s(sHb)}, {s(sB)}, {2*HSTR*1024}")
    a(f"s_lshl_b32 s6, {s(sJ)}, 10")
    a(f"s_add_u32 {s(sHb)}, {s(sHb)}, s6")
    a(f"s_add_u32 {s(sHb)}, {s(sHb)}, {HF}")
    a(f"s_mul_i32 s6, {s(sRT)}, {HSTR*1024}")
    a(f"s_add_u32 s7, s6, {s(sHb)}")
    a(f"v_add_u32 {v(vB0)}, s7, {v(vL16)}")
    a(f"s_sub_u32 s6, {HSTR*1024}, s6")
    a(f"s_add_u32 s7, s6, {s(sHb)}")
    a(f"v_add_u32 {v(vB1)}, s7, {v(vL16)}")
    a(f"v_bfe_u32 v16, v1, 2, 2")
    a(f"v_lshl_add_u32 {v(vTW)}, v9, 2, v16")
    a(f"v_lshlrev_b32 {v(vTW)}, 7, {v(vTW)}")
    a(f"v_bfe_u32 v15, v1, 4, 1")
    a(f"v_lshl_add_u32 {v(vTW)}, v15, 4, {v(vTW)}")
    a(f"v_and_b32 v15, 1, v1")
    a(f"v_lshl_add_u32 {v(vTW)}, v15, 5, {v(vTW)}")
    a(f"v_bfe_u32 v15, v1, 1, 1")
    a(f"v_lshl_add_u32 {v(vTW)}, v15, 3, {v(vTW)}")
    a(f"v_lshrrev_b32 v16, 1, v16")
    a(f"v_xor_b32 v16, {s(sCT)}, v16")
    a(f"v_lshl_add_u32 {v(vTW)}, v16, 6, {v(vTW)}")
    assert L_STG == 0
    a(f"v_xor_b32 {v(vT1)}, 64, {v(vTW)}")
    a(f"v_add_u32 {v(vT0)}, {s(sStg)}, {v(vTW)}")
    a(f"v_add_u32 {v(vT1)}, {s(sStg)}, {v(vT1)}")
    a(f"v_and_b32 v16, 3, v1")
    a(f"v_lshl_add_u32 v16, v16, 2, {v(vSY)}")
    spin_begin(a, "G_cf")
    a(f"ds_read_b32 v17, v16 offset:{SY_CF}")
    a(f"s_waitcnt lgkmcnt(0)")
    a(f"v_cmp_eq_u32 vcc, 0, v17")
    a(f"s_nop 0")
    a(f"s_cbranch_vccz G_cf_ok")
    spin_retry(a, "G_cf", 2)
    lds_wait(a, "G_wo", vSY, SY_WO, 1, 16, SL1)
    def wread(hh):
        for g2 in range(8):
            o = 16384*hh + 2048*g2
            a(f"ds_read_b64_tr_b16 {v(WFR(hh,g2),2)}, {v(vTW)} offset:{o}")
            a(f"ds_read_b64_tr_b16 {v(WFR(hh,g2)+2,2)}, {v(vTW)} offset:{o+1024}")
            if g2 % 4 == 3: a(f"s_waitcnt lgkmcnt(4)")
    for hh in range(3): wread(hh)
    a(f"s_waitcnt vmcnt(0) lgkmcnt(0)")
    lds_inc(a, vSY, SY_RED2, vONE)
    a(f"v_and_b32 v15, 7, v1")
    a(f"v_lshlrev_b32 v15, 3, v15")
    lds_wait(a, "G_r2", vSY, SY_RED2, 4, 16)
    stamp(a, 8)
    for i in range(FD - 1): issueW(i)
    a(f"s_lshl_b32 s7, {s(sB)}, 7")
    a(f"s_add_u32 s7, s7, {FL_H}")
    spin_begin(a, "G_h")
    a(f"buffer_load_dwordx2 v[16:17], v15, {s(rWS,4)}, s7 offen sc1")
    a(f"s_waitcnt vmcnt(0)")
    a(f"v_cmp_ne_u64 vcc, {s(sTAG,2)}, v[16:17]")
    a(f"s_nop 0")
    a(f"s_cbranch_vccz G_h_ok")
    spin_retry(a, "G_h", 4)
    stamp(a, 5)
    vm.drained()
    for i in range(FD - 1): issueH(i)
    def aread(i, ct):
        base = AF + 8*(i % 2) + 4*ct; o = (i % FD)*2048
        a(f"ds_read_b64_tr_b16 {v(base,2)}, {v(vT1 if ct else vT0)} offset:{o}")
        a(f"ds_read_b64_tr_b16 {v(base+2,2)}, {v(vT1 if ct else vT0)} offset:{o+1024}")
    vm.wait(("f", 0))
    aread(0, 1); aread(0, 0)
    a(f"s_setprio {GLO}")
    for i in range(N):
        a(f"s_waitcnt lgkmcnt(0)")
        k = 0
        for rt in (1, 0):
            for ct in (1, 0):
                acc = ACC + 16*(2*rt + ct)
                c = "0" if i == 0 else v(acc, 16)
                a(f"v_mfma_f32_32x32x16_bf16 {v(acc,16)}, {v(AF+8*(i%2)+4*ct,4)}, {v(BFS[i%FD]+4*rt,4)}, {c}")
                if k == 0 and i + 1 < N:
                    vm.wait(("f", i + 1)); aread(i + 1, 1)
                if k == 1 and i + 1 < N: aread(i + 1, 0)
                if k == 2 and i + FD - 1 < N: issueW(i + FD - 1)
                if k == 3 and i + FD - 1 < N: issueH(i + FD - 1)
                k += 1
    stamp(a, 6)
    a(f"s_setprio {GHI}")
    vm.drained()
    vOR, vLR, vFL, vFG = 5, 6, 7, 15
    OB, RT_, LV = 80, 16, 48
    vSK, vRS = 152, 12
    sOP, sOC, sLIM, sPHS = T+1, T+3, T+4, T+8
    a(f"v_add_u32 {v(vSK)}, {s(sStg)}, {v(vL16)}")
    a.nop(4)
    a(f"s_lshl_b32 s6, {s(sRT)}, 7")
    a(f"v_lshl_add_u32 {v(vRS)}, v8, 2, {v(vSY)}")
    a(f"v_add_u32 {v(vRS)}, s6, {v(vRS)}")
    a(f"s_lshl_b32 s6, {s(sJ)}, 13")
    a(f"s_add_u32 s6, s6, {L_QO}")
    a(f"v_add_u32 {v(vOR)}, s6, {v(vL16)}")
    for lam in (3, 2, 1):
        for q in range(4):
            a(f"ds_write_b128 {v(vSK)}, {v(ACC+16*lam+4*q,4)} offset:{(lam-1)*4096 + q*1024}")
    lds_inc(a, vSY, SY_RED1, vONE)
    a(f"ds_read_b32 {v(vRS)}, {v(vRS)} offset:{SY_RS}")
    a(f"s_lshl_b32 s6, {s(sJ)}, 10")
    a(f"s_add_u32 s7, s6, {L_L}")
    a(f"v_lshlrev_b32 {v(vLR)}, 2, v8")
    a(f"v_add_u32 {v(vLR)}, s7, {v(vLR)}")
    a(f"v_and_b32 {v(vFG)}, 3, v1")
    a(f"v_lshlrev_b32 {v(vFG)}, 8, {v(vFG)}")
    a(f"v_add_u32 {v(vFL)}, s7, {v(vFG)}")
    a(f"s_lshl_b32 s7, {s(sRT)}, 10")
    a(f"s_add_u32 {s(sOC)}, s7, {L_L}")
    if DEF: a(f"v_add_u32 {v(vFG)}, {L_L + 1024}, {v(vFG)}")
    else: a(f"v_add_u32 {v(vFG)}, {s(sOC)}, {v(vFG)}")
    a(f"s_lshl_b32 {s(sOP)}, {s(sC)}, 13")
    a(f"s_add_u32 {s(sOP)}, {s(sOP)}, s6")
    a(f"s_add_u32 {s(sOP)}, {s(sOP)}, {OF}")
    a(f"s_lshl_b32 {s(sOC)}, {s(sB)}, 16")
    a(f"s_add_u32 {s(sOC)}, {s(sOC)}, s7")
    a(f"s_add_u32 {s(sOC)}, {s(sOC)}, {OF}")
    a(f"s_mov_b32 {s(sLIM)}, {f2u(2.0**120):#x}")
    def red(k):
        spin_begin(a, f"G_o{k}")
        a(f"ds_read_b32 {v(LV+4)}, {v(vFL)} offset:{4096*k + 128}")
        a(f"s_waitcnt lgkmcnt(0)")
        a(f"v_cmp_eq_u32 vcc, 0, {v(LV+4)}")
        a(f"s_nop 0")
        a(f"s_cbranch_vccz G_o{k}_ok")
        spin_retry(a, f"G_o{k}", RSL if k else 2)
        a(f"ds_read2st64_b32 {v(LV,2)}, {v(vLR)} offset0:{16*k} offset1:{16*k+1}")
        a(f"ds_read2st64_b32 {v(LV+2,2)}, {v(vLR)} offset0:{16*k+2} offset1:{16*k+3}")
        for w in range(4):
            for hf in range(2):
                a(f"ds_read_b128 {v(RT_+8*w+4*hf,4)}, {v(vOR)} offset:{2048*w + 1024*hf}")
        if k == 0:
            a(f"s_cmp_eq_u32 {s(sJ)}, 3")
            a(f"s_mov_b32 s6, 32768")
            a(f"s_cselect_b32 s6, {(L_KROT - L_QO - 3*8192) & 0xffffffff}, s6")
            a(f"v_add_u32 {v(vOR)}, s6, {v(vOR)}")
        a(f"s_add_u32 {s(sPHS)}, {s(sJ)}, {4*k}")
        a(f"s_waitcnt lgkmcnt(8)")
        a(f"v_pk_add_f32 {v(LV,2)}, {v(LV,2)}, {v(LV+2,2)}")
        a(f"s_waitcnt lgkmcnt(4)")
        a(f"v_add_f32 {v(LV)}, {v(LV)}, {v(LV+1)}")
        for i in range(4): a(f"v_pk_add_f32 {v(RT_+2*i,2)}, {v(RT_+2*i,2)}, {v(RT_+8+2*i,2)}")
        a(f"v_rcp_f32 {v(LV+2)}, {v(LV)}")
        a(f"s_waitcnt lgkmcnt(0)")
        for i in range(4): a(f"v_pk_add_f32 {v(RT_+16+2*i,2)}, {v(RT_+16+2*i,2)}, {v(RT_+24+2*i,2)}")
        for i in range(4): a(f"v_pk_add_f32 {v(RT_+2*i,2)}, {v(RT_+2*i,2)}, {v(RT_+16+2*i,2)}")
        for i in range(4): a(f"v_maximum3_f32 {v(LV)}, |{v(RT_+2*i)}|, |{v(RT_+2*i+1)}|, {v(LV)}")
        a(f"v_cmp_ngt_f32 vcc, {s(sLIM)}, {v(LV)}")
        a(f"s_nop 0")
        if FORCE_FB: a(f"s_bitcmp1_b32 {s(sJ)}, 0"); a(f"s_cbranch_scc1 G_fb")
        a(f"s_cbranch_vccnz G_fb")
        a.label(f"G_ret{k}")
        for i in range(4): a(f"v_pk_mul_f32 {v(RT_+2*i,2)}, {v(RT_+2*i,2)}, {v(LV+2,2)} op_sel_hi:[1,0]")
        for i in range(4): a(f"v_cvt_pk_bf16_f32 {v(RT_+8+i)}, {v(RT_+2*i)}, {v(RT_+2*i+1)}")
        if k: a(f"s_add_u32 {s(sOP)}, {s(sOP)}, 4096")
        a(f"buffer_store_dwordx4 {v(RT_+8,4)}, {v(vL16)}, {s(rWS,4)}, {s(sOP)} offen sc1")
    def cons(hs, bufs):
        name = "G_c" + "".join(map(str, hs))
        if hs == [3]:
            spin_begin(a, f"G_g3")
            a(f"ds_read_b32 {v(LV+4)}, {v(vFG)} offset:{2048*3 + 128}")
            a(f"s_waitcnt lgkmcnt(0)")
            a(f"v_cmp_eq_u32 vcc, 0, {v(LV+4)}")
            a(f"s_nop 0")
            a(f"s_cbranch_vccz G_g3_ok")
            spin_retry(a, f"G_g3", 2)
        spin_begin(a, name)
        a(f"s_add_u32 s6, {s(sOC)}, {2048*hs[0]}")
        regs = []
        for g2 in range(8):
            for hh, ob in zip(hs, bufs):
                a(f"buffer_load_dwordx4 {v(ob+4*g2,4)}, {v(vL16)}, {s(rWS,4)}, s6 offen offset:{2048*(hh-hs[0])} sc1")
                regs.append(ob + 4*g2)
            if g2 < 7: a(f"s_add_u32 s6, s6, 8192")
        for n, b in enumerate(regs):
            a(f"s_waitcnt vmcnt({len(regs)-1-n})")
            if n == 0:
                a(f"v_max3_u32 {v(LV+4)}, {v(b)}, {v(b+1)}, {v(b+2)}")
                a(f"v_max_u32 {v(LV+4)}, {v(LV+4)}, {v(b+3)}")
            else:
                a(f"v_max3_u32 {v(LV+4)}, {v(b)}, {v(b+1)}, {v(LV+4)}")
                a(f"v_max3_u32 {v(LV+4)}, {v(b+2)}, {v(b+3)}, {v(LV+4)}")
        a(f"v_cmp_eq_u32 vcc, -1, {v(LV+4)}")
        a(f"s_nop 0")
        a(f"s_cbranch_vccz {name}_ok")
        spin_retry(a, name, 0 if hs == [3] else 4)
        if hs != [3]: a(f"s_setprio {GLO}")
        for hh, ob in zip(hs, bufs):
            for g2 in range(8):
                a(f"v_mfma_f32_32x32x16_bf16 {v(ACC,16)}, {v(WFR(hh,g2),4)}, {v(ob+4*g2,4)}, {v(ACC,16)}")
        if hs != [3]: a(f"s_setprio {GHI}")
    def reduce_now():
        for lam in range(1, 4): a(f"v_add_u32 {v(vSK+lam)}, {12288*(3^lam)}, {v(vL16)}")
        for q in range(8):
            a(f"v_lshlrev_b32 {v(XU+2*q)}, 16, {v(XD+q)}")
            a(f"v_and_b32 {v(XU+2*q+1)}, 0xffff0000, {v(XD+q)}")
        lds_wait(a, "G_r1", vSY, SY_RED1, 4, LV+4)
        for lam in range(1, 4):
            for q in range(4):
                a(f"ds_read_b128 {v(ACC+16*lam+4*q,4)}, {v(vSK+lam)} offset:{(lam-1)*4096 + q*1024}")
        a(f"s_waitcnt lgkmcnt(4)")
        for i in range(8):
            a(f"v_pk_add_f32 {v(ACC+2*i,2)}, {v(ACC+2*i,2)}, {v(ACC+16+2*i,2)}")
        for i in range(8):
            a(f"v_pk_add_f32 {v(ACC+2*i,2)}, {v(ACC+2*i,2)}, {v(ACC+32+2*i,2)}")
        a(f"s_waitcnt lgkmcnt(0)")
        for i in range(8):
            a(f"v_pk_add_f32 {v(ACC+2*i,2)}, {v(ACC+2*i,2)}, {v(ACC+48+2*i,2)}")
        for i in range(8):
            a(f"v_pk_fma_f32 {v(ACC+2*i,2)}, {v(ACC+2*i,2)}, {v(vRS,2)}, {v(XU+2*i,2)} op_sel_hi:[1,0,1]")
        stamp(a, 7)
    def c_ld(items):
        h0 = min(h for h, _, _ in items)
        a(f"s_add_u32 s6, {s(sOC)}, {2048*h0}")
        for g2 in range(8):
            for hh, g_, r in items:
                if g_ == g2: a(f"buffer_load_dwordx4 {v(r,4)}, {v(vL16)}, {s(rWS,4)}, s6 offen offset:{2048*(hh-h0)} sc1")
            if g2 < 7: a(f"s_add_u32 s6, s6, 8192")
    def c_chk(items, later=0, tmp=LV+4, wait=True, mm=(), hook=None):
        mm = list(mm)
        regs = [r for g2 in range(8) for _, g_, r in items if g_ == g2]
        for n, b in enumerate(regs):
            if wait: a(f"s_waitcnt vmcnt({len(regs)-1-n+later})")
            if hook: hook(n)
            if mm and n % 2 == 0: c_mm([mm.pop(0)])
            if n == 0:
                a(f"v_max3_u32 {v(tmp)}, {v(b)}, {v(b+1)}, {v(b+2)}")
                a(f"v_max_u32 {v(tmp)}, {v(tmp)}, {v(b+3)}")
            else:
                a(f"v_max3_u32 {v(tmp)}, {v(b)}, {v(b+1)}, {v(tmp)}")
                a(f"v_max3_u32 {v(tmp)}, {v(b+2)}, {v(b+3)}, {v(tmp)}")
        assert not mm
        a(f"v_cmp_eq_u32 vcc, -1, {v(tmp)}")
        a(f"s_nop 0")
    def c_mm(items):
        for hh, g2, r in items:
            a(f"v_mfma_f32_32x32x16_bf16 {v(ACC,16)}, {v(WFR(hh,g2),4)}, {v(r,4)}, {v(ACC,16)}")
    def c_spin(name, items, sleep, tmp=LV+4):
        spin_begin(a, name)
        c_ld(items); c_chk(items, tmp=tmp)
        a(f"s_cbranch_vccz {name}_ok")
        spin_retry(a, name, sleep)
    I0 = [(0, g2, OB + 4*g2) for g2 in range(8)]
    I1a = [(1, g2, 112 + 4*g2) for g2 in range(4)]
    I1b = [(1, g2, RT_ + 4*(g2-4)) for g2 in range(4, 8)]
    I2 = [(2, g2, RT_ + 4*g2) for g2 in range(8)]
    I3 = [(3, g2, 128 + 4*g2) for g2 in range(8)]
    assert DEF
    J1 = [(1, g2, RT_ + 4*g2) for g2 in range(8)]
    J2 = [(2, g2, (48 if g2 < 4 else 96) + 4*g2) for g2 in range(8)]
    if DEF:
        red(0)
        sO3 = rWA
        for n in range(8): a(f"s_add_u32 {s(sO3+n)}, {s(sOC)}, {2048*3 + 8192*n}")
        a(f"s_cmp_eq_u32 {s(sJ)}, 3")
        a(f"s_cbranch_scc1 G_x3")
        for i in range(8): a(f"v_pk_mul_f32 {v(ACC+2*i,2)}, {v(ACC+2*i,2)}, {v(vRS,2)} op_sel_hi:[1,0]")
        stamp(a, 7)
        a.label("G_red1")
        red(1)
        stamp(a, 10)
        a(f"s_cmp_eq_u32 {s(sJ)}, 3")
        a(f"s_cbranch_scc1 G_w3")
        a(f"v_and_b32 v5, 3, v1")
        a(f"v_bfe_u32 v6, v1, 2, 3")
        a(f"v_min_u32 v5, 2, v5")
        a(f"v_lshlrev_b32 v6, 13, v6")
        a(f"v_lshl_add_u32 v6, v5, 11, v6")
        spin_begin(a, "G_pp")
        a(f"buffer_load_dword v7, v6, {s(rWS,4)}, {s(sOC)} offen offset:1020 sc1")
        a(f"s_waitcnt vmcnt(0)")
        a(f"v_cmp_eq_u32 vcc, -1, v7")
        a(f"s_nop 0")
        a(f"s_cbranch_vccz G_pp_ok")
        spin_retry(a, "G_pp", SL4)
        c_ld(I0 + J1); c_ld(J2)
        lds_wait(a, "G_r1b", vSY, SY_RED1, 4, 5)
        a(f"s_mov_b32 {s(T+10)}, 0x00003f80")
        a(f"s_mov_b32 {s(T+11)}, 0x3f800000")
        stamp(a, 9)
        spin_begin(a, f"G_g3")
        a(f"ds_read_b32 v5, {v(vFG)} offset:{2048*3 + 128}")
        a(f"s_waitcnt lgkmcnt(0)")
        a(f"v_cmp_eq_u32 vcc, 0, v5")
        a(f"s_nop 0")
        a(f"s_cbranch_vccz G_g3_ok")
        spin_retry(a, f"G_g3", SL3)
        for q in range(8):
            for h_ in range(2): a(f"v_dot2_f32_bf16 {v(ACC+2*q+h_)}, {v(XD+q)}, {s(T+10+h_)}, {v(ACC+2*q+h_)}")
        if IP < 0: c_ld(I3)
        a(f"s_waitcnt vmcnt({8 if IP < 0 else 0})")
        c_chk(I0, tmp=5, wait=False)
        a(f"s_cbranch_vccnz G_s0")
        a.label("G_b0")
        c_chk(J1 + J2, tmp=5, wait=False, mm=I0, hook=lambda n: c_ld(I3) if n == 2*IP else None)
        if IP == 8: c_ld(I3)
        XW, XU2, PW = 80, 192, [88, 16, 32]
        a(f"s_cbranch_vccnz G_s1")
        a.label("G_b1")
        for n in range(8):
            c_mm([J1[n]])
            if n < 3:
                a(f"s_xor_b32 s6, {s(sJ)}, {n+1}")
                a(f"s_mul_i32 s6, s6, 12288")
                a(f"v_add_u32 {v(5+n)}, s6, {v(vL16)}")
            a(f"ds_read_b64_tr_b16 {v(WFR(3,n),2)}, {v(vTW)} offset:{16384*3 + 2048*n}")
            a(f"ds_read_b64_tr_b16 {v(WFR(3,n)+2,2)}, {v(vTW)} offset:{16384*3 + 2048*n + 1024}")
            if n == 6: a(f"s_waitcnt lgkmcnt(8)")
        a(f"s_waitcnt lgkmcnt(2)")
        for lam in range(1, 4):
            for q in range(4):
                a(f"ds_read_b128 {v(PW[lam-1]+4*q,4)}, {v(4+lam)} offset:{(lam-1)*4096 + q*1024}")
        for n in range(8):
            c_mm([J2[n]])
            if n == 2: a(f"s_waitcnt lgkmcnt(4)")
            if n == 5: a(f"s_waitcnt lgkmcnt(0)")
            if n >= 2:
                k, i0_ = (1, n - 2) if n < 5 else (2, n - 5)
                for i in range(3*i0_, min(3*i0_ + 3, 8)):
                    a(f"v_pk_add_f32 {v(PW[0]+2*i,2)}, {v(PW[0]+2*i,2)}, {v(PW[k]+2*i,2)}")
        a.nop(10)
        for i in range(8):
            a(f"v_pk_fma_f32 {v(ACC+2*i,2)}, {v(PW[0]+2*i,2)}, {v(vRS,2)}, {v(ACC+2*i,2)} op_sel_hi:[1,0,1]")
        a(f"s_branch G_k3")
        sF = T + 2
        I2x = [(2, g2, OB + 4*g2) for g2 in range(8)]
        a.label("G_x3")
        reduce_now()
        c_spin("G_c01", I0 + J1, SL2)
        stamp(a, 9)
        a(f"s_setprio {GLO}")
        c_mm(I0)
        c_ld(I2x)
        c_mm(J1)
        wread(3)
        a(f"s_setprio {GHI}")
        c_chk(I2x)
        a(f"s_mov_b32 {s(sF)}, 0")
        a(f"s_cbranch_vccnz G_red1")
        a(f"s_mov_b32 {s(sF)}, 1")
        c_mm(I2x)
        a(f"s_branch G_red1")
        a.label("G_w3")
        c_ld(I3)
        a(f"s_cmp_eq_u32 {s(sF)}, 0")
        a(f"s_cbranch_scc1 G_s2")
        a.label("G_k3")
        if MSK:
            def m_chk(later):
                for n, (_, g2, b) in enumerate(I3):
                    a(f"s_waitcnt vmcnt({7-n+later})")
                    a(f"v_max3_u32 {v(LV+4+n%2)}, {v(b)}, {v(b+1)}, {v(b+2)}")
                    a(f"v_max_u32 {v(LV+4+n%2)}, {v(LV+4+n%2)}, {v(b+3)}")
                    a(f"v_cmp_eq_u32 {s(8+2*n,2)}, -1, {v(LV+4+n%2)}")
                    if n == 1: a(f"s_or_b64 s[6:7], s[8:9], s[8:9]")
                    if n > 1: a(f"s_or_b64 s[6:7], s[6:7], {s(8+2*n-2,2)}")
                a(f"s_or_b64 s[6:7], s[6:7], s[22:23]")
                a(f"s_cbranch_scc0 G_c3_ok")
            def m_ld():
                for n, (_, g2, b) in enumerate(I3):
                    a(f"s_mov_b64 exec, {s(8+2*n,2)}")
                    a(f"buffer_load_dwordx4 {v(b,4)}, {v(vL16)}, {s(rWS,4)}, {s(sO3+n)} offen sc1")
                a(f"s_mov_b64 exec, -1")
            m_chk(0)
            for _ in range(MPD):
                m_ld()
                a(f"s_sleep {MSP}")
            spin_begin(a, "G_c3")
            m_ld()
            m_chk(8*MPD)
            spin_retry(a, "G_c3", MSL)
        else:
            c_chk(I3)
            a(f"s_cbranch_vccz G_c3_ok")
            c_spin("G_c3", I3, 0)
        c_mm(I3)
    else:
        cons([0, 1], [OB, RT_])
        stamp(a, 9)
        red(1)
        stamp(a, 10)
        cons([2], [OB]); cons([3], [OB])
    stamp(a, 11)
    a.nop(12)
    for q in range(2):
        for i in range(4):
            a(f"v_cvt_pk_bf16_f32 {v(RT_+4*q+i)}, {v(ACC+8*q+2*i)}, {v(ACC+8*q+2*i+1)}")
        a(f"buffer_store_dwordx4 {v(RT_+4*q,4)}, {v(vXO)}, {s(rOUT,4)}, {s(sXO)} offen offset:{16*q}{['', ' sc1', ' nt', ' sc0 sc1', ' sc1 nt'][OST]}")
    a(f"s_add_u32 s6, s2, {s(sJ)}")
    a(f"s_cmp_eq_u32 s6, 0")
    a(f"s_cbranch_scc0 G_end")
    a(f"s_mov_b64 exec, 1")
    a(f"v_mov_b32 v56, {s(sTAG)}")
    a(f"v_mov_b32 v57, {s(sTAG+1)}")
    a(f"s_mov_b32 s6, {EP}")
    a(f"buffer_store_dwordx2 v[56:57], off, {s(rWS,4)}, s6 sc1")
    a.label("G_end")
    endpgm(a, 12)

    if DEF:
        a.label("G_s0")
        c_spin("G_d0", I0, 2, 5)
        a(f"s_branch G_b0")
        a.label("G_s1")
        c_spin("G_d1", J1, 2, 5)
        c_spin("G_d2", J2, 2, 5)
        a(f"s_branch G_b1")
        a.label("G_s2")
        c_spin("G_c2", I2, 2)
        c_mm(I2)
        a(f"s_branch G_k3")
    a.label("G_fb")
    FS, FC, FO, FK, FV, FQ, FI, FVo = 80, 96, RT_, 112, 116, 124, 56, 57
    a(f"s_lshl_b32 s7, {s(sPHS)}, 10")
    a(f"s_add_u32 s7, s7, {L_QT}")
    a(f"v_add_u32 {v(FQ)}, s7, {v(vL16)}")
    a(f"ds_read_b128 {v(FQ,4)}, {v(FQ)}")
    a(f"s_waitcnt lgkmcnt(0)")
    a(f"v_mov_b32 {v(FI)}, 0xdddddddd")
    a(f"v_mov_b32 {v(FC)}, 0xff800000")
    a(f"s_mov_b32 s6, {KF}")
    a.label("G_fb1")
    a(f"buffer_load_dwordx4 {v(FK,4)}, {v(vL16)}, {s(rWS,4)}, s6 offen sc1")
    a(f"s_waitcnt vmcnt(0)")
    a(f"v_mfma_f32_32x32x16_bf16 {v(FS,16)}, {v(FK,4)}, {v(FQ,4)}, 0")
    a.nop(12)
    for i in range(8):
        a(f"v_maximum3_f32 {v(FC)}, {v(FC)}, {v(FS+2*i)}, {v(FS+2*i+1)}")
    a(f"s_add_u32 s6, s6, 1024")
    a(f"s_cmp_lt_u32 s6, {KF + 65536}")
    a(f"s_cbranch_scc1 G_fb1")
    a(f"v_mov_b32 {v(FC+1)}, {v(FC)}")
    a(f"s_nop 1")
    a(f"v_permlane32_swap_b32 {v(FC)}, {v(FC+1)}")
    a(f"v_and_b32 {v(FVo)}, 31, v1")
    a(f"v_cmp_eq_u32 vcc, 16, {v(FVo)}")
    a(f"v_maximum3_f32 {v(FC)}, {v(FC)}, {v(FC+1)}, {v(FC+1)}")
    a(f"v_mov_b32 {v(FV)}, 0x3f803f80")
    a(f"v_cndmask_b32 {v(FV)}, 0, {v(FV)}, vcc")
    a(f"v_sub_f32 {v(FC)}, 0, {v(FC)}")
    for i in range(1, 8): a(f"v_mov_b32 {v(FV+i)}, {v(FV)}")
    for i in range(1, 16): a(f"v_mov_b32 {v(FC+i)}, {v(FC)}")
    for i in range(16): a(f"v_mov_b32 {v(FO+i)}, 0")
    a(f"v_and_b32 {v(FVo)}, 15, v1")
    a(f"v_lshrrev_b32 {v(FS)}, 5, v1")
    a(f"v_lshlrev_b32 {v(FVo)}, 4, {v(FVo)}")
    a(f"v_lshl_add_u32 {v(FVo)}, {v(FS)}, 8, {v(FVo)}")
    a(f"s_mov_b32 s6, {KF}")
    a.label("G_fb2")
    a(f"s_add_u32 s7, s6, {VF - KF}")
    a(f"buffer_load_dwordx4 {v(FK,4)}, {v(vL16)}, {s(rWS,4)}, s6 offen sc1")
    a(f"s_mov_b32 exec_lo, 0xffff")
    a(f"s_mov_b32 exec_hi, 0xffff")
    a(f"buffer_load_dwordx4 {v(FV,4)}, {v(FVo)}, {s(rWS,4)}, s7 offen sc1")
    a(f"buffer_load_dwordx4 {v(FV+4,4)}, {v(FVo)}, {s(rWS,4)}, s7 offen offset:512 sc1")
    a(f"s_mov_b64 exec, -1")
    a(f"s_waitcnt vmcnt(0)")
    a(f"v_mfma_f32_32x32x16_bf16 {v(FS,16)}, {v(FK,4)}, {v(FQ,4)}, {v(FC,16)}")
    a.nop(12)
    for i in range(16): a(f"v_exp_f32 {v(FS+i)}, {v(FS+i)}")
    a(f"s_nop 1")
    a(f"v_smfmac_f32_32x32x32_bf16 {v(FO,16)}, {v(FV,4)}, {v(FS,8)}, {v(FI)}")
    a(f"v_smfmac_f32_32x32x32_bf16 {v(FO,16)}, {v(FV+4,4)}, {v(FS+8,8)}, {v(FI)}")
    a.nop(16)
    a(f"s_add_u32 s6, s6, 1024")
    a(f"s_cmp_lt_u32 s6, {KF + 65536}")
    a(f"s_cbranch_scc1 G_fb2")
    a(f"v_mov_b32 {v(FO+9)}, {v(FO+8)}")
    a(f"s_nop 1")
    a(f"v_permlane32_swap_b32 {v(FO+8)}, {v(FO+9)}")
    a(f"s_nop 1")
    a(f"v_rcp_f32 {v(LV+2)}, {v(FO+8)}")
    a(f"s_cmp_lt_u32 {s(sPHS)}, 4")
    a(f"s_cbranch_scc1 G_ret0")
    a(f"s_branch G_ret1")

    a.label("G_idle")
    a(f"s_waitcnt vmcnt(0) lgkmcnt(0)")
    lds_inc(a, vSY, SY_WQ, vONE)
    fix_tag(a)
    stamp(a, 1)
    stamp(a, 2)
    stamp(a, 3)
    lds_inc(a, vSY, SY_XFREE, vONE)
    a(f"s_mov_b32 {s(T+8)}, 2")
    a(f"s_branch G_hpub")


def gen_kv(a, isv):
    real = a
    if isv: a = Asm()
    vm = VM(a)
    sfx = "v" if isv else "k"
    a("s_setprio 3")
    ids(a)
    vSY, vONE, vU = 2, 3, 4
    WK, XK = 128, 64
    vL16, vBW, vTk, vXk = 5, 6, 7, 11
    MA, SX, CS, ON, Q0, Q1 = 20, 24, 28, 32, 36, 37
    sTG = T + 1
    a(f"v_lshlrev_b32 {v(vL16)}, 4, v1")
    a(f"v_lshrrev_b32 v12, 4, v1")
    a(f"v_and_b32 v13, 15, v1")
    a(f"v_lshlrev_b32 {v(vXk)}, 10, v13")
    a(f"v_lshl_add_u32 {v(vXk)}, v12, 4, {v(vXk)}")
    a(f"s_and_b32 {s(sTG)}, {s(sG)}, 3")
    a(f"s_lshl_b32 {s(T+4)}, {s(sB)}, 16")
    a(f"s_lshl_b32 s6, {s(sTG)}, 14")
    a(f"s_add_u32 {s(T+4)}, {s(T+4)}, s6")
    a(f"s_waitcnt lgkmcnt(0)")
    srd(a, rX, sPX, 2097152)
    for u in range(16):
        vm.issue(("xk", u), f"buffer_load_dwordx4 {v(XK+4*u,4)}, {v(vXk)}, {s(rX,4)}, {s(T+4)} offen offset:{64*u}")
    a(f"s_cmp_{'lt' if KHI else 'ge'}_u32 {s(sG)}, 4")
    a(f"s_cselect_b32 s6, {s(sPWV)}, {s(sPWK)}")
    a(f"s_cselect_b32 s7, {s(sPWV+1)}, {s(sPWK+1)}")
    srd(a, rWB, 6, 16384)
    for u in range(16):
        if u % 4 == 0: a(f"s_movk_i32 s6, {u*1024}")
        vm.issue(("wk", u), f"buffer_load_dwordx4 {v(WK+4*u,4)}, {v(vL16)}, {s(rWB,4)}, s6 offen offset:{(u%4)*1024}")
    args_ready(a)
    a(f"s_cmp_{'lt' if KHI else 'ge'}_u32 {s(sG)}, 4")
    a(f"s_cbranch_scc1 V_start")
    a = real; vm.a = a
    srd(a, rWS, sPWS, WS_SIZE)
    a(f"s_mov_b32 {s(sJ)}, 3")
    a(f"v_mov_b32 {v(vSY)}, {L_SY}")
    a(f"v_mov_b32 {v(vONE)}, 1")
    a(f"v_add_u32 {v(vBW)}, {L_BNC + 3*4096}, {v(vL16)}")
    a(f"v_bfe_u32 v14, v1, 2, 2")
    a(f"v_lshl_add_u32 v14, v12, 3, v14")
    a(f"v_and_b32 v15, 3, v1")
    a(f"v_lshlrev_b32 v15, 3, v15")
    a(f"v_lshl_add_u32 {v(vTk)}, v14, 5, v15")
    a(f"v_add_u32 {v(vTk)}, {L_BNC + 3*4096}, {v(vTk)}")
    a(f"v_and_b32 v14, 1, v12")
    a(f"v_lshrrev_b32 v15, 1, v12")
    a(f"v_lshlrev_b32 v13, 4, v13")
    if isv:
        a(f"v_lshl_add_u32 v19, v15, 8, v13")
        a(f"v_lshl_add_u32 v19, v14, 3, v19")
    else:
        a(f"v_lshl_add_u32 v18, v14, 9, v13")
        a(f"v_lshl_add_u32 v18, v15, 3, v18")
    a(f"s_lshr_b32 s7, {s(sTG)}, 1")
    a(f"s_lshl1_add_u32 s7, {s(sB)}, s7")
    a(f"s_lshl_b32 s7, s7, 10")
    a(f"s_and_b32 s6, {s(sTG)}, 1")
    a(f"s_lshl_b32 {s(T+2+isv)}, s6, {8+isv}")
    a(f"s_add_u32 {s(T+2+isv)}, {s(T+2+isv)}, s7")
    a(f"s_add_u32 {s(T+2+isv)}, {s(T+2+isv)}, {VF if isv else KF}")
    a(f"v_mul_u32_u24 v16, {RSTR}, v1")
    a(f"s_and_b32 s6, s2, 7")
    a(f"s_lshr_b32 s7, s6, {[3,2,1,0][[1,2,4,8].index(NREP)]}")
    a(f"s_mul_i32 {s(T+6)}, s7, {RSTR}")
    a(f"s_add_u32 {s(T+6)}, {s(T+6)}, {FL_KV}")
    a(f"s_lshr_b32 s7, s2, 3")
    a(f"s_mul_i32 s6, s6, {LSTR}")
    a(f"s_lshl2_add_u32 s6, s7, s6")
    a(f"v_lshrrev_b32 v14, 3, v1")
    a(f"v_mul_u32_u24 v14, {LSTR}, v14")
    a(f"v_and_b32 v15, 7, v1")
    a(f"v_lshl_add_u32 v10, v15, 4, v14")
    a(f"s_add_u32 {s(T+5)}, s6, {FL_KV}")
    for i in range(4): a(f"v_mov_b32 {v(ON+i)}, 0x3f803f80")
    a(f"v_mov_b32 {v(Q0)}, 0")
    a(f"v_mov_b32 {v(Q1)}, 0")
    inv = f2u(1.0/512)
    for u in range(16):
        vm.wait(("xk", u))
        a(f"v_mfma_f32_16x16x32_bf16 {v(SX,4)}, {v(ON,4)}, {v(XK+4*u,4)}, {'0' if u == 0 else v(SX,4)}")
        for d in range(4): a(f"v_dot2_f32_bf16 {v(Q0+d%2)}, {v(XK+4*u+d)}, {v(XK+4*u+d)}, {v(Q0+d%2)}")
    if isv:
        srd(a, rWA, sPWK, 16384)
        if WKPF:
            a(f"v_lshlrev_b32 v14, 7, v1")
            a(f"s_movk_i32 s6, 8192")
            vm.issue("pf", f"buffer_load_dword v15, v14, {s(rWA,4)}, 0 offen")
            vm.issue("pf", f"buffer_load_dword v15, v14, {s(rWA,4)}, s6 offen")
    a(f"s_waitcnt lgkmcnt(0)")
    fix_tag(a)
    stamp(a, 1)
    stats = [
        [f"v_add_f32 {v(Q0)}, {v(Q0)}, {v(Q1)}", f"v_mov_b32 {v(Q1)}, {v(Q0)}"],
        [f"v_permlane16_swap_b32 {v(Q0)}, {v(Q1)}", f"v_mul_f32 {v(SX)}, {inv:#x}, {v(SX)}", f"v_add_f32 {v(Q0)}, {v(Q0)}, {v(Q1)}",
         f"v_mov_b32 {v(Q1)}, {v(Q0)}", f"v_mul_f32 {v(SX+1)}, {v(SX)}, {v(SX)}"],
        [f"v_permlane32_swap_b32 {v(Q0)}, {v(Q1)}", f"v_mov_b32 {v(SX+2)}, {inv:#x}", f"v_add_f32 {v(Q0)}, {v(Q0)}, {v(Q1)}",
         f"v_fma_f32 {v(Q0)}, {v(Q0)}, {v(SX+2)}, -{v(SX+1)}", f"v_max_f32 {v(Q0)}, 0, {v(Q0)}"],
        [f"v_cvt_pk_bf16_f32 {v(Q0)}, {v(SX)}, {v(Q0)}", f"v_lshlrev_b32 {v(SX)}, 16, {v(Q0)}", f"v_and_b32 {v(Q0)}, 0xffff0000, {v(Q0)}",
         f"v_add_f32 {v(Q0)}, {f2u(1e-5):#x}, {v(Q0)}"],
        [f"v_cvt_pk_bf16_f32 {v(Q0)}, {v(Q0)}, {v(Q0)}", f"v_and_b32 {v(Q0)}, 0xffff0000, {v(Q0)}", f"v_sqrt_f32 {v(Q0)}, {v(Q0)}"],
        [f"v_cvt_pk_bf16_f32 {v(Q0)}, {v(Q0)}, {v(Q0)}", f"v_and_b32 {v(Q0)}, 0xffff0000, {v(Q0)}", f"v_rcp_f32 {v(Q0)}, {v(Q0)}"]]
    if True:
        fill = [list(x) for x in stats]
        if isv:
            for src_, dst in ((SX, 40), (Q0, 44)):
                for G_ in range(4):
                    fill.append([f"v_mov_b32_dpp {v(dst+r)}, {v(src_)} row_newbcast:{4*G_+r} row_mask:{1<<G_:#x} bank_mask:0xf" for r in range(4)])
        def mm(u):
            c = lambda r: "0" if u == 0 else v(r, 4)
            if isv:
                a(f"v_mfma_f32_16x16x32_bf16 {v(CS,4)}, {v(ON,4)}, {v(WK+4*u,4)}, {c(CS)}")
                a(f"v_mfma_f32_16x16x32_bf16 {v(MA,4)}, {v(XK+4*u,4)}, {v(WK+4*u,4)}, {c(MA)}")
            else:
                a(f"v_mfma_f32_16x16x32_bf16 {v(CS,4)}, {v(WK+4*u,4)}, {v(ON,4)}, {c(CS)}")
                a(f"v_mfma_f32_16x16x32_bf16 {v(MA,4)}, {v(WK+4*u,4)}, {v(XK+4*u,4)}, {c(MA)}")
        LAG = 3
        for u in range(16 + LAG):
            if u < 16:
                vm.wait(("wk", u))
                a(f"ds_write_b128 {v(vBW)}, {v(WK+4*u,4)} offset:{(u%4)*1024}")
                a(f"ds_read_b64_tr_b16 {v(WK+4*u,2)}, {v(vTk)} offset:{(u%4)*1024}")
                a(f"ds_read_b64_tr_b16 {v(WK+4*u+2,2)}, {v(vTk)} offset:{(u%4)*1024+128}")
            if fill:
                for ins in fill.pop(0): a(ins)
            if u >= LAG:
                a(f"s_waitcnt lgkmcnt({3*(min(u, 15) - (u - LAG))})")
                mm(u - LAG)
        assert not fill
        a.nop(8)
        if isv:
            for i in range(2):
                a(f"v_pk_fma_f32 {v(MA+2*i,2)}, {v(CS+2*i,2)}, {v(40+2*i,2)}, {v(MA+2*i,2)} neg_lo:[1,0,0] neg_hi:[1,0,0]")
            for i in range(2): a(f"v_pk_mul_f32 {v(MA+2*i,2)}, {v(MA+2*i,2)}, {v(44+2*i,2)}")
        else:
            for i in range(2):
                a(f"v_pk_fma_f32 {v(MA+2*i,2)}, {v(CS+2*i,2)}, {v(SX,2)}, {v(MA+2*i,2)} op_sel_hi:[1,0,1] neg_lo:[1,0,0] neg_hi:[1,0,0]")
            for i in range(2): a(f"v_pk_mul_f32 {v(MA+2*i,2)}, {v(MA+2*i,2)}, {v(Q0,2)} op_sel_hi:[1,0]")
        a(f"v_cvt_pk_bf16_f32 {v(MA)}, {v(MA)}, {v(MA+1)}")
        a(f"v_cvt_pk_bf16_f32 {v(MA+1)}, {v(MA+2)}, {v(MA+3)}")
        a(f"buffer_store_dwordx2 {v(MA,2)}, v{18+isv}, {s(rWS,4)}, {s(T+2+isv)} offen sc1")
    stamp(a, 2)
    X2 = 192
    vm.drained()
    def sloads():
        if isv:
            for u in range(16):
                if u % 4 == 0: a(f"s_movk_i32 s6, {u*1024}")
                vm.issue(("w2", u), f"buffer_load_dwordx4 {v(WK+4*u,4)}, {v(vL16)}, {s(rWA,4)}, s6 offen offset:{(u%4)*1024}")
    if SPOS == 1: sloads()
    a(f"v_mov_b32 v17, {s(sTAG)}")
    a(f"s_mov_b64 exec, {(1 << NREP) - 1}")
    a(f"s_waitcnt vmcnt({len(vm.q)})")
    vm.issue("fl", f"buffer_store_dword v17, v16, {s(rWS,4)}, {s(T+5)} offen sc1")
    a(f"s_mov_b64 exec, -1")
    stamp(a, 3)
    pl = lambda q: a(f"buffer_load_dwordx4 {v(20+4*q,4)}, v10, {s(rWS,4)}, {s(T+6)} offen sc1")
    if DBG & 8:
        a(f"s_waitcnt vmcnt(0)")
        stamp(a, 5)
        pl(0)
        a(f"s_waitcnt vmcnt(0)")
        stamp(a, 6)
        pl(0)
        a(f"s_waitcnt vmcnt(0)")
        stamp(a, 7)
    a(f"s_setprio {KSP}")
    if SPOS == 0: sloads()
    if not isv:
        a(f"s_branch G_ks")
        return
    a(f"v_and_b32 v14, 1, v12")
    a(f"v_lshrrev_b32 v15, 1, v12")
    a(f"v_lshl_add_u32 v18, v14, 9, v13")
    a(f"v_lshl_add_u32 v18, v15, 3, v18")
    LG = 3
    for u in range(16 + LG):
        if u < 16:
            vm.wait(("w2", u))
            a(f"ds_write_b128 {v(vBW)}, {v(WK+4*u,4)} offset:{(u%4)*1024}")
            a(f"ds_read_b64_tr_b16 {v(WK+4*u,2)}, {v(vTk)} offset:{(u%4)*1024}")
            a(f"ds_read_b64_tr_b16 {v(WK+4*u+2,2)}, {v(vTk)} offset:{(u%4)*1024+128}")
        if u >= LG:
            q = u - LG
            c = lambda r: "0" if q == 0 else v(r, 4)
            a(f"s_waitcnt lgkmcnt({3*(min(u, 15) - q)})")
            a(f"v_mfma_f32_16x16x32_bf16 {v(CS,4)}, {v(WK+4*q,4)}, {v(ON,4)}, {c(CS)}")
            a(f"v_mfma_f32_16x16x32_bf16 {v(MA,4)}, {v(WK+4*q,4)}, {v(XK+4*q,4)}, {c(MA)}")
    a.nop(8)
    for i in range(2):
        a(f"v_pk_fma_f32 {v(MA+2*i,2)}, {v(CS+2*i,2)}, {v(SX,2)}, {v(MA+2*i,2)} op_sel_hi:[1,0,1] neg_lo:[1,0,0] neg_hi:[1,0,0]")
    for i in range(2): a(f"v_pk_mul_f32 {v(MA+2*i,2)}, {v(MA+2*i,2)}, {v(Q0,2)} op_sel_hi:[1,0]")
    a(f"v_cvt_pk_bf16_f32 {v(MA)}, {v(MA)}, {v(MA+1)}")
    a(f"v_cvt_pk_bf16_f32 {v(MA+1)}, {v(MA+2)}, {v(MA+3)}")
    a.label("G_ks")
    if DBG & 16: stamp(a, 5)
    a(f"v_add_u32 v18, {L_KS}, v18")
    a(f"s_xor_b32 s6, {s(sTG)}, 1")
    a(f"ds_write_b64 v18, {v(MA,2)}")
    a(f"s_lshl_b32 s6, s6, 8")
    a(f"v_add_u32 v15, s6, v13")
    a(f"v_mul_u32_u24 v14, {XN_STRIDE//16}, v15")
    a(f"v_lshl_add_u32 v14, v12, 4, v14")
    a(f"v_lshrrev_b32 v15, 2, v15")
    a(f"v_add_u32 v15, {v(vSY)}, v15")
    lds_wait(a, "G_kl", vSY, SY_LN, 4, 19, KLS)
    if DBG & 16: stamp(a, 6)
    a(f"s_setprio 3")
    for u in range(14): a(f"ds_read_b128 {v(XK+4*u,4)}, v14 offset:{64*u}")
    pl(0)
    for u in range(16):
        if u < 2: a(f"ds_read_b128 {v(XK+4*(14+u),4)}, v14 offset:{64*(14+u)}")
        if u == 2: a(f"ds_read_b32 v56, v15 offset:{SY_RS}")
        a(f"s_waitcnt lgkmcnt({14 if u < 3 else 16-u})")
        a(f"v_mfma_f32_16x16x32_bf16 {v(44+4*(u&1),4)}, {v(WK+4*u,4)}, {v(XK+4*u,4)}, {'0' if u < 2 else v(44+4*(u&1),4)}")
    a(f"s_waitcnt lgkmcnt(0)")
    a.nop(7)
    for i in range(2): a(f"v_pk_add_f32 {v(44+2*i,2)}, {v(44+2*i,2)}, {v(48+2*i,2)}")
    for i in range(2): a(f"v_pk_mul_f32 {v(44+2*i,2)}, {v(44+2*i,2)}, v[56:57] op_sel_hi:[1,0]")
    for i in range(2): a(f"v_cvt_pk_bf16_f32 {v(44+i)}, {v(44+2*i)}, {v(44+2*i+1)}")
    a(f"ds_write_b64 v18, v[44:45] offset:256")
    a(f"ds_write_b32 {v(vSY)}, {v(vONE)} offset:{SY_KS}")
    stamp(a, 14)
    assert NPOLL == 1
    a(f"s_mov_b32 {s(sSPIN)}, {SPIN_MAX}")
    a(f"s_branch G_pk{sfx}_in")
    a.label(f"G_pk{sfx}_top")
    for q in range(NPOLL):
        pl((q - 1) % NPOLL)
        a.label(f"G_pk{sfx}_in")
        a(f"s_waitcnt vmcnt({NPOLL-1})")
        b_ = 20 + 4*q
        for i in range(4): a(f"v_xor_b32 {v(b_+i)}, {v(b_+i)}, v17")
        a(f"v_or3_b32 {v(b_)}, {v(b_)}, {v(b_+1)}, {v(b_+2)}")
        a(f"v_or_b32 {v(b_)}, {v(b_)}, {v(b_+3)}")
        a(f"v_cmp_ne_u32 vcc, 0, {v(b_)}")
        a(f"s_nop 0")
        a(f"s_cbranch_vccz G_pk{sfx}_ok")
        if q < NPOLL - 1 and PSLEEP: a(f"s_sleep {PSLEEP}")
    spin_retry(a, "G_pk" + sfx, PSLEEP)
    a(f"ds_write_b32 {v(vSY)}, {v(vONE)} offset:{SY_KVRDY}")
    if DBG & 8:
        a(f"s_sub_u32 s6, {SPIN_MAX}, {s(sSPIN)}")
        a(f"s_mul_i32 s6, s6, 100")
        a(f"s_add_u32 {s(70+2*8)}, s6, s70")
        pl(0)
        a(f"s_waitcnt vmcnt(0)")
        stamp(a, 9)
    stamp(a, 13)
    if not BAL: a(f"s_setprio {GLO}")
    setup_u(a)
    if BAL:
        assert KHI
        sP, sWo, sRho, sW0 = T+1, T+2, T+3, T+4
        srd(a, rWB, sPW1, 1409024)
        a(f"s_lshr_b32 s6, {s(sG)}, 1")
        a(f"s_add_u32 {s(sP)}, s6, 18")
        a(f"s_and_b32 {s(T+9)}, {s(sG)}, 1")
        a(f"s_movk_i32 s6, 2752")
        a(f"v_lshlrev_b32 v13, 4, v9")
        a(f"v_mad_u32_u24 v5, v8, s6, v13")
        a(f"s_lshl_b32 {s(sW0)}, {s(sP)}, 7")
        a(f"s_and_b32 {s(sRho)}, {s(sB)}, {W1ROT}")
        for u in range(W1D):
            if u % 8 == 0:
                a(f"s_xor_b32 s6, {s(sRho)}, {u//8}")
                a(f"s_mul_i32 s6, s6, {64*2752}")
                a(f"s_add_u32 {s(sWo)}, {s(sW0)}, s6")
            a(f"buffer_load_dwordx4 {v(128+4*u,4)}, v5, {s(rWB,4)}, {s(sWo)} offen")
            if u % 8 != 7: a(f"s_add_u32 {s(sWo)}, {s(sWo)}, {8*2752}")
        a(f"s_sub_u32 {s(sTAG)}, {s(sTAG)}, 1")
        a(f"s_subb_u32 {s(sTAG+1)}, {s(sTAG+1)}, 0")
        lds_wait(a, "G_wq3", vSY, SY_QCNT, 4, 16)
        a(f"s_setprio {F3P}")
        a(f"s_branch G_f1")
        a.label("G_wod")
    else:
        lds_inc(a, vSY, SY_XFREE, vONE)
        srd(a, rWA, sPWO, 524288)
        a(f"s_and_b32 {s(T+10)}, {s(sB)}, 7")
        a(f"v_and_b32 v16, 3, v1")
        a(f"v_lshl_add_u32 v16, v16, 2, {v(vSY)}")
        spin_begin(a, "G_pf")
        a(f"ds_read_b32 v17, v16 offset:{SY_CF}")
        a(f"s_waitcnt lgkmcnt(0)")
        a(f"v_cmp_eq_u32 vcc, 0, v17")
        a(f"s_nop 0")
        a(f"s_cbranch_vccz G_pf_ok")
        spin_retry(a, "G_pf", 4)
        a(f"s_lshl_b32 s7, {s(T+10)}, 16")
        for u in range(8):
            a(f"buffer_load_dwordx4 {v(192+4*u,4)}, {v(vU)}, {s(rWA,4)}, s7 offen")
            a(f"s_add_u32 s7, s7, 8192")
    a(f"v_add_u32 v5, {8192-1024}, {v(vU)}")
    lds_wait2(a, "G_wqf", vSY, SY_QCNT, 8, 16, SL1)
    a(f"s_setprio {GHI}")
    for hh in range(4):
        for g2 in range(8):
            a(f"s_mov_b32 m0, {L_STG + 16384*hh + 2048*g2}")
            a(f"s_mov_b32 s7, {65536*g2 + 16384*hh}")
            a(f"buffer_load_dwordx4 {v(vU)}, {s(rWA,4)}, s7 offen lds")
            a(f"buffer_load_dwordx4 v5, {s(rWA,4)}, s7 offen offset:1024 lds")
    a(f"s_waitcnt vmcnt(16)")
    a(f"ds_write_b32 {v(vSY)}, {v(vONE)} offset:{SY_WO}")
    a(f"s_branch G_ffn2")

def descriptor(name, vgpr=256, sgpr=102):
    return f""".amdhsa_kernel {name}
  .amdhsa_next_free_vgpr {vgpr}
  .amdhsa_next_free_sgpr {sgpr}
  .amdhsa_accum_offset {min(256, (vgpr+3)//4*4)}
  .amdhsa_group_segment_fixed_size 0
  .amdhsa_kernarg_size 88
  .amdhsa_user_sgpr_count 2
  .amdhsa_user_sgpr_kernarg_segment_ptr 1
  .amdhsa_system_sgpr_workgroup_id_x 1
.end_amdhsa_kernel
"""

def main(out):
    hdr = open("cdna_kernels/" + NAME + ".s.ref").read().split("; Override")[0]
    a = Asm()
    name = NAME + "_kernel"
    a('.amdgcn_target "amdgcn-amd-amdhsa--gfx950"')
    a(".text")
    a(f".globl {name}")
    a(f".p2align 8")
    a(f".type {name},@function")
    a.label(name)
    a(f"s_cmp_ge_u32 s2, 256")
    a(f"s_cbranch_scc1 K_exit")
    stamp(a, 0)
    if PROF:
        for i in range(1, 15): a(f"s_mov_b32 {s(70+2*i)}, 0")
    a(f"s_load_dwordx16 s[8:23], s[0:1], 0")
    a(f"s_load_dwordx4 s[24:27], s[0:1], 64")
    a(f"s_load_dwordx2 s[28:29], s[0:1], 80")
    a(f"v_lshrrev_b32 v1, 6, v0")
    a(f"s_nop 0")
    a(f"v_readfirstlane_b32 {s(sW)}, v1")
    assert MAP84
    a(f"s_cmp_lt_u32 {s(sW)}, 4")
    a(f"s_cbranch_scc1 A_start")
    a(f"s_cmp_lt_u32 {s(sW)}, 7")
    a(f"s_cbranch_scc1 G_start")
    gen_kv(a, 0)
    a(".p2align 6")
    a.label("V_start")
    gen_kv(a, 1)
    a(".p2align 6")
    a.label("A_start")
    gen_a(a)
    a.label("K_exit")
    a("s_endpgm")
    a(".p2align 6")
    a.label("G_start")
    gen_g(a)
    pr = check_hazards(a.lines, name)
    for p in pr[:5]: print("HAZARD", p)
    launch = f"; @launch grid=(256,1,1) block=(512,1,1) lds={LDS_TOTAL}\n"
    txt = hdr + launch + a.text() + '.section .rodata,"a"\n.p2align 6\n' + descriptor(name)
    open(out, "w").write(txt)
    print("wrote", out, len(txt), "bytes; LDS", LDS_TOTAL)

if __name__ == "__main__":
    main(sys.argv[1] if len(sys.argv) > 1 and not sys.argv[1].startswith("--") else "cdna_kernels/" + NAME + ".s")
```

```python
import sys, struct
from asmlib import Asm, v, s, check_hazards

NAME = "parallel_sum__grouped_kv_mqa__dense_activation_relu__prompt"
QF, KF, VF, FL_KV, FL_H, EP, OF, HF = 0x040000, 0x300000, 0x310000, 0x320000, 0x328000, 0x32A000, 0x400000, 0x600000
HSTR = 88
WS_SIZE = 0x1000000
CSCALE = 0x3eb8aa3b
BIAS = 96.0
def f2u(x): return struct.unpack("<I", struct.pack("<f", x))[0]
def opt(name, default):
    for a_ in sys.argv[1:]:
        if a_.startswith("--" + name + "="): return int(a_.split("=")[1])
    return default
PROF = "--prof" in sys.argv
PROF_OFF = 0xF00000
HPROF = "--hprof" in sys.argv
FORCE_FB = "--forcefb" in sys.argv
DP0 = opt("dp0", 2)
DPRE = opt("dpre", 7)
SPIN_MAX = 1 << 15
APRIO = opt("aprio", 1)
GHI = opt("ghi", 3)
GLO = opt("glo", 0)
PSLEEP = opt("psleep", 0)
W1D = opt("w1d", 12)
W1ROT = opt("w1rot", 7)
KVFIRST = opt("kvfirst", 1)
DBG = opt("dbg", 0)
F1PRIO = opt("f1prio", 0)
KVROT = opt("kvrot", 1)
F2ROT = opt("f2rot", 1)
MAP84 = opt("map84", 1)
FD = opt("fd", 6)
F1W = opt("f1w", 0); QLA = opt("qla", 5)
NREP = opt("nrep", 8); RSTR = opt("rstr", 70656); FL_KV = opt("flkv", 0x340000); LSTR = opt("lstr", 640)
assert FL_KV + 7*RSTR + 7*LSTR + 128 <= OF and (8*LSTR <= RSTR or 8*RSTR <= LSTR)
FLW = opt("flw", 0)
OST = opt("ost", 0)
WOPF = opt("wopf", 1)
RSL = opt("rsl", 0)
NPOLL = opt("npoll", 1); PGAP = opt("pgap", 4); ASL = opt("asl", 0)
GX = opt("gx", 0)
W1F = opt("w1f", 8); W1POS = opt("w1pos", 99)
VFULL = opt("vfull", 1)
NS = 2; KSP = opt("ksp", 1); WKPF = opt("wkpf", 0); XP = opt("xp", 0x14735260); KHI = opt("khi", 1); SL1 = opt("sl1", 3); SL2 = opt("sl2", 4); SL3 = opt("sl3", 2)
VH = opt("vh", 16); P2C = opt("p2c", 1); ES = opt("es", 0); OSL = opt("osl", 3); RCL = opt("rcl", 1); IP = opt("ip", 5); SL4 = opt("sl4", 4); WOPS = opt("wops", 8); BAL = opt("bal", 0); F3P = opt("f3p", 2)
SPOS = opt("spos", 1); GX4 = opt("gx4", 0); CSL = opt("csl", 0); KLS = opt("kls", 0)
DEF = opt("def", 1); MSK = opt("msk", 1); MPD = opt("mpd", 0); MSL = opt("msl", 0); MSP = opt("msp", 4); PRE2 = opt("pre2", 1)
P1 = opt("p1", 2); PQ = opt("pq", 5); P0 = opt("p0", 10)

sW, sB, sG = 3, 4, 5
sPX, sPWQ, sPWK, sPWV, sPWO, sPBX, sPW1, sPW2 = 8, 10, 12, 14, 16, 18, 20, 22
sPOUT, sPDBG, sPWS = 24, 26, 28
sC, sJ = 30, 31
rX, rWA, rWB, rWS, rOUT = 32, 36, 40, 44, 48
sTAG = 52
sSPIN = 54
T = 56

XN_STRIDE = 1040
L_STG = 0
L_R2 = 64 * XN_STRIDE
L_KROT = L_R2
L_L = L_R2 + 16384
L_QO = L_L + 8192
L_BNC = L_QO + 5 * 8192
assert L_BNC == L_R2 + 65536
L_QT = L_QO + 7 * 8192
L_C = L_QT + 8192
L_SY = L_C + 4096
LDS_TOTAL = L_SY + 1024
TID_OFF = 49152
SY_LN, SY_WQ, SY_KVRDY, SY_QCNT, SY_XFREE, SY_HCNT, SY_RED1 = 0, 4, 8, 12, 16, 20, 28
SY_CF, SY_RED2, SY_WO, SY_RS, SY_KS, SY_L0 = 32, 48, 52, 256, 24, 56
L_KS = L_BNC + 3 * 4096

class VM:
    def __init__(self, a): self.a, self.q = a, []
    def issue(self, tag, txt):
        self.a(txt); self.q.append(tag)
        assert len(self.q) < 4000
    def n_after(self, tags):
        if not isinstance(tags, (list, set)): tags = [tags]
        idx = max(i for i, t in enumerate(self.q) if t in tags)
        return len(self.q) - 1 - idx
    def wait(self, tags, extra=""):
        n = self.n_after(tags)
        assert n <= 63, n
        self.a(f"s_waitcnt vmcnt({n}){extra}")
    def drained(self): self.q = []

def stamp(a, i):
    if PROF: a(f"s_memrealtime {s(70+2*i,2)}")
def endpgm(a, n):
    if PROF:
        a("s_waitcnt vmcnt(0)")
        stamp(a, n); n += 1
        a("s_waitcnt lgkmcnt(0)")
        a("s_mov_b64 exec, 1")
        for i in range(15):
            a(f"v_mov_b32 {v(240+i)}, {s(70+2*i)}")
        a(f"v_mov_b32 v255, 15")
        a(f"s_lshl_b32 s6, s2, 3")
        a(f"s_add_u32 s6, s6, {s(sW)}")
        a(f"s_lshl_b32 s6, s6, 6")
        a(f"s_add_u32 s6, s6, {PROF_OFF}")
        a(f"v_mov_b32 v239, 0")
        for q in range(4):
            a(f"buffer_store_dwordx4 {v(240+4*q,4)}, v239, {s(rWS,4)}, s6 offen offset:{16*q}")
    if PROF and HPROF:
        n -= 1
        isA = n == 11
        srd(a, rX, sPDBG, 256)
        def amax(word, val):
            a(f"v_mov_b32 v238, {val}")
            a(f"buffer_atomic_umax v238, v239, {s(rX,4)}, 0 offen offset:{4*word} sc1")
            a(f"s_waitcnt vmcnt(0)")
        a(f"s_not_b32 s6, s70")
        amax(0, "s6"); amax(1, "s70"); amax(14, s(70+2*n))
        if isA:
            for w_, st_ in enumerate((3, 4, 6, 9, 10, 11)): amax(2 + w_, s(70+2*st_))
        else:
            lab = a.newlabel("HP")
            a(f"s_cmp_eq_u32 {s(sJ)}, 3")
            a(f"s_cbranch_scc1 {lab}")
            for w_, st_ in enumerate((3, 5, 6)): amax(8 + w_, s(70+2*st_))
            a(f"s_endpgm")
            a.label(lab)
            for w_, st_ in enumerate((1, 3, 13)): amax(11 + w_, s(70+2*st_))
            a(f"s_not_b32 s6, {s(70+2*13)}")
            amax(15, "s6")
    a("s_endpgm")

def srd(a, r, ptr, size):
    a(f"s_mov_b32 {s(r)}, {s(ptr)}")
    a(f"s_and_b32 {s(r+1)}, {s(ptr+1)}, 0xffff")
    a(f"s_mov_b32 {s(r+2)}, {size}")
    a(f"s_mov_b32 {s(r+3)}, 0x20000")

def ids(a):
    a(f"s_and_b32 s6, s2, 7")
    if XP:
        a(f"s_lshl_b32 s6, s6, 2")
        a(f"s_lshr_b32 s6, {XP:#x}, s6")
        a(f"s_and_b32 s6, s6, 7")
    a(f"s_lshr_b32 s7, s2, 3")
    if MAP84:
        a(f"s_and_b32 {s(sG)}, s7, 3")
        if GX: a(f"s_xor_b32 {s(sG)}, {s(sG)}, {GX}")
        a(f"s_and_b32 {s(sB)}, s6, 1")
        a(f"s_lshl2_add_u32 {s(sG)}, {s(sB)}, {s(sG)}")
        if GX4: a(f"s_xor_b32 {s(sG)}, {s(sG)}, 4")
        a(f"s_lshr_b32 s6, s6, 1")
        a(f"s_lshr_b32 s7, s7, 2")
        a(f"s_lshl3_add_u32 {s(sB)}, s6, s7")
    else:
        a(f"s_and_b32 {s(sG)}, s7, 7")
        a(f"s_lshr_b32 s7, s7, 3")
        a(f"s_lshl2_add_u32 {s(sB)}, s6, s7")
    a(f"s_lshl3_add_u32 {s(sC)}, {s(sB)}, {s(sG)}")
    a(f"v_and_b32 v1, 63, v0")

def args_ready(a):
    a(f"s_waitcnt lgkmcnt(0)")
    a(f"s_barrier")
    a(f"s_add_u32 s6, {s(sPWS)}, {EP}")
    a(f"s_addc_u32 s7, {s(sPWS+1)}, 0")
    a(f"s_load_dwordx2 {s(sTAG,2)}, s[6:7], 0")

def fix_tag(a):
    a(f"s_add_u32 {s(sTAG)}, {s(sTAG)}, 1")
    a(f"s_addc_u32 {s(sTAG+1)}, {s(sTAG+1)}, 0")

def spin_begin(a, name):
    a(f"s_mov_b32 {s(sSPIN)}, {SPIN_MAX}")
    a.label(name + "_top")
def spin_retry(a, name, sleep=1):
    a(f"s_sleep {sleep}")
    a(f"s_sub_u32 {s(sSPIN)}, {s(sSPIN)}, 1")
    a(f"s_cmp_lg_u32 {s(sSPIN)}, 0")
    a(f"s_cbranch_scc1 {name}_top")
    a.label(name + "_ok")

def lds_wait(a, name, vaddr, off, val, vt, sleep=1):
    spin_begin(a, name)
    a(f"ds_read_b32 {v(vt)}, {v(vaddr)} offset:{off}")
    a(f"s_waitcnt lgkmcnt(0)")
    a(f"v_readfirstlane_b32 s6, {v(vt)}")
    a(f"s_cmp_ge_u32 s6, {val}")
    a(f"s_cbranch_scc1 {name}_ok")
    spin_retry(a, name, sleep)

def lds_inc(a, vsy, off, vone):
    a(f"s_mov_b64 exec, 1")
    a(f"ds_add_u32 {v(vsy)}, {v(vone)} offset:{off}")
    a(f"s_mov_b64 exec, -1")

def publish(a, name, vsy, off, last, vone, vt, flbase):
    a(f"s_lshl_b32 s6, {s(sB)}, 7")
    a(f"s_lshl3_add_u32 s6, {s(sG)}, s6")
    a(f"s_add_u32 s7, s6, {flbase}")
    a(f"v_mov_b32 {v(vt)}, {s(sTAG)}")
    a(f"v_mov_b32 {v(vt+1)}, {s(sTAG+1)}")
    a(f"s_mov_b64 exec, 1")
    a(f"s_waitcnt vmcnt(0)")
    if True:
        a(f"ds_add_rtn_u32 {v(vt+2)}, {v(vsy)}, {v(vone)} offset:{off}")
        a(f"s_waitcnt lgkmcnt(0)")
        a(f"v_readfirstlane_b32 s6, {v(vt+2)}")
        a(f"s_cmp_eq_u32 s6, {last}")
        a(f"s_cbranch_scc0 {name}_skip")
    a(f"buffer_store_dwordx2 {v(vt,2)}, off, {s(rWS,4)}, s7 sc1")
    a.label(name + "_skip")
    a(f"s_mov_b64 exec, -1")

def lds_wait2(a, name, vaddr, off, val, vt, sleep=1):
    spin_begin(a, name)
    a(f"ds_read2_b32 {v(vt,2)}, {v(vaddr)} offset0:{off//4} offset1:{off//4+1}")
    a(f"s_waitcnt lgkmcnt(0)")
    a(f"v_add_u32 {v(vt)}, {v(vt)}, {v(vt+1)}")
    a(f"s_nop 0")
    a(f"v_readfirstlane_b32 s6, {v(vt)}")
    a(f"s_cmp_ge_u32 s6, {val}")
    a(f"s_cbranch_scc1 {name}_ok")
    spin_retry(a, name, sleep)

def gen_a(a):
    vm = VM(a)
    a("s_setprio 2")
    ids(a)
    vKR, vQO, vIDX, vCA, vQV = 2, 3, 4, 6, 7
    Q, KROT, S0, S1_, C, O, KR, VR = 8, 12, 16, 32, 48, 64, 80, 128
    rot = (0, 4, 8, 12)
    res = [t for t in range(16) if t not in rot]
    kreg = lambda t: KROT if t in rot else KR + 4*res.index(t)
    kslot = lambda t: (t//8)*8192 + ((t//4) & 1)*1024
    sMASK, sKB, sVB, sKD, sPH = T, T+2, T+6, T+10, T+11
    sONES, sLO, sHI = T+12, T+13, 55
    vXW, vRSW, vTR, vXR, vRSR, vQT, vXL = 8, 9, 10, 11, 12, kreg(11)+3, 15
    vSY, vQ0, vZA = kreg(11), kreg(11)+1, kreg(11)+2
    vCW, vCF, vCP, vONE = kreg(13), kreg(13)+1, kreg(13)+2, kreg(13)+3
    XRAW, TMP = 16, 96
    t0, t1, t2, t3, t4, t5 = 96, 97, 98, 99, 100, 101
    a(f"v_lshrrev_b32 {v(t0)}, 3, v1")
    a(f"v_and_b32 {v(t1)}, 7, v1")
    a(f"v_lshlrev_b32 {v(vXL)}, 10, {v(t0)}")
    a(f"v_lshl_add_u32 {v(vXL)}, {v(t1)}, 4, {v(vXL)}")
    a(f"s_lshl_b32 s6, {s(sW)}, 4")
    a(f"v_add_u32 {v(t0)}, s6, {v(t0)}")
    a(f"v_mul_u32_u24 {v(vXW)}, {XN_STRIDE}, {v(t0)}")
    a(f"v_lshl_add_u32 {v(vXW)}, {v(t1)}, 4, {v(vXW)}")
    a(f"v_mov_b32 {v(vSY)}, {L_SY}")
    a(f"v_lshl_add_u32 {v(vRSW)}, {v(t0)}, 2, {v(vSY)}")
    a(f"v_mov_b32 {v(vONE)}, 1")
    a(f"s_lshl_b32 s6, {s(sW)}, 8")
    a(f"s_add_u32 s6, s6, {L_L + 128}")
    a(f"v_lshlrev_b32 {v(vZA)}, 10, {v(t1)}")
    a(f"v_add_u32 {v(vZA)}, s6, {v(vZA)}")
    a(f"v_lshrrev_b32 {v(t2)}, 5, v1")
    a(f"v_bfe_u32 {v(t3)}, v1, 2, 2")
    a(f"v_lshlrev_b32 {v(vTR)}, 10, {v(t2)}")
    a(f"v_lshl_add_u32 {v(vTR)}, {v(t3)}, 7, {v(vTR)}")
    a(f"v_bfe_u32 {v(t4)}, v1, 4, 1")
    a(f"v_lshl_add_u32 {v(vTR)}, {v(t4)}, 5, {v(vTR)}")
    a(f"v_and_b32 {v(t4)}, 3, v1")
    a(f"v_lshl_add_u32 {v(vTR)}, {v(t4)}, 3, {v(vTR)}")
    a(f"v_lshl_add_u32 {v(vCP)}, {v(t4)}, 2, {v(vSY)}")
    a(f"v_lshrrev_b32 {v(t3)}, 1, {v(t3)}")
    a(f"s_and_b32 s6, {s(sW)}, 1")
    a(f"s_lshr_b32 s7, {s(sW)}, 1")
    a(f"v_xor_b32 {v(t3)}, s6, {v(t3)}")
    a(f"v_lshl_add_u32 {v(vTR)}, {v(t3)}, 6, {v(vTR)}")
    a(f"v_add_u32 {v(vTR)}, {L_R2}, {v(vTR)}")
    a(f"s_lshl2_add_u32 s6, s6, s7")
    a(f"s_lshl_b32 s6, s6, 10")
    a(f"v_lshlrev_b32 {v(t5)}, 4, v1")
    a(f"v_add_u32 {v(vQ0)}, {L_QT}, {v(t5)}")
    a(f"v_add_u32 {v(vQT)}, s6, {v(vQ0)}")
    a(f"v_and_b32 {v(t0)}, 31, v1")
    a(f"s_lshl_b32 s6, s7, 5")
    a(f"v_add_u32 {v(t3)}, s6, {v(t0)}")
    a(f"v_mul_u32_u24 {v(vXR)}, {XN_STRIDE}, {v(t3)}")
    a(f"v_lshl_add_u32 {v(vXR)}, {v(t2)}, 4, {v(vXR)}")
    a(f"v_lshl_add_u32 {v(vRSR)}, {v(t3)}, 2, {v(vSY)}")
    a(f"s_mov_b32 {s(sONES)}, 0x3f803f80")
    a(f"s_mov_b32 {s(sLO)}, {0x1f80 if RCL else 0x3f80:#x}")
    a(f"s_mov_b32 {s(sHI)}, {0x1f800000 if RCL else 0x3f800000:#x}")
    a(f"s_mov_b32 {s(sMASK)}, 0x0000ffff")
    a(f"s_mov_b32 {s(sMASK+1)}, 0x0000ffff")
    a(f"s_lshl_b32 {s(sKD)}, {s(sW)}, 11")
    a(f"s_add_u32 {s(sKD)}, {s(sKD)}, {L_KROT}")
    a(f"v_add_u32 {v(vKR)}, {s(sKD)}, {v(t5)}")
    a(f"s_lshl_b32 s6, {s(sW)}, 11")
    a(f"s_add_u32 s7, s6, {L_QO}")
    a(f"v_add_u32 {v(vQO)}, s7, {v(t5)}")
    a(f"v_mov_b32 {v(vIDX)}, 0xdddddddd")
    a(f"v_mov_b32 {v(vIDX+1)}, 0xdddddddd")
    a(f"v_lshlrev_b32 {v(vCA)}, 4, {v(t0)}")
    a(f"v_add_u32 {v(vCA)}, {L_C}, {v(vCA)}")
    a(f"s_and_b32 s6, {s(sW)}, 1")
    a(f"s_lshr_b32 s7, {s(sW)}, 1")
    a(f"s_lshl2_add_u32 s7, s6, s7")
    a(f"s_lshl_b32 s7, s7, 9")
    a(f"v_add_u32 {v(vCW)}, s7, {v(vCA)}")
    a(f"s_lshl_b32 s7, {s(sW)}, 2")
    a(f"v_add_u32 {v(vCF)}, s7, {v(vSY)}")
    a(f"v_and_b32 {v(t3)}, 15, v1")
    a(f"v_lshlrev_b32 {v(vQV)}, 4, {v(t3)}")
    a(f"v_lshl_add_u32 {v(vQV)}, {v(t2)}, 8, {v(vQV)}")
    if VFULL:
        a(f"v_bfe_u32 {v(t4)}, v1, 4, 1")
        a(f"v_lshl_add_u32 {v(vQV)}, {v(t4)}, 9, {v(vQV)}")
    a(f"s_lshl_b32 s6, {s(sW)}, 14")
    a(f"s_add_u32 {s(sVB)}, s6, {VF}")
    a(f"s_add_u32 {s(sKB)}, s6, {KF}")
    a(f"s_sub_u32 {s(sKB)}, {s(sKB)}, {s(sKD)}")
    if KVROT:
        a(f"s_and_b32 s7, {s(sG)}, 3")
        a(f"s_lshl_b32 s7, s7, 12")
    else:
        a(f"s_mov_b32 s7, 0")
    for i in (3, 2, 1, 0):
        a(f"s_xor_b32 s6, s7, {4096*i}")
        a(f"s_add_u32 {s(sKB+i)}, {s(sKB)}, s6")
        a(f"s_add_u32 {s(sVB+i)}, {s(sVB)}, s6")
    a(f"v_cmp_eq_u32 vcc, 20, v1")
    a(f"v_mov_b32 v0, 0x3f80")
    a(f"v_mov_b32 v1, 0")
    a(f"v_cndmask_b32 v0, 0, v0, vcc")
    if VFULL: a(f"v_cmp_eq_u32 vcc, 0, {v(t3)}")
    else: a(f"v_cmp_eq_u32 vcc, 16, {v(t0)}")
    a(f"v_mov_b32 v92, 0x3f803f80")
    a(f"s_lshl_b32 s6, {s(sB)}, 16")
    a(f"v_cndmask_b32 v92, 0, v92, vcc")
    a(f"v_mov_b32 v93, v92")
    a(f"s_lshl_b32 s7, {s(sW)}, 14")
    a(f"s_add_u32 s6, s6, s7")
    a(f"s_add_u32 s7, s6, 8192")
    a(f"s_waitcnt lgkmcnt(0)")
    srd(a, rX, sPX, 2097152)
    a(f"s_barrier")
    for st in range(2):
        for j in range(8):
            vm.issue(("x", st, j), f"buffer_load_dwordx4 {v(XRAW+32*st+4*j,4)}, {v(vXL)}, {s(rX,4)}, s{6+st} offen offset:{128*j}")
    srd(a, rWS, sPWS, WS_SIZE)
    for r in range(128, 256, 2):
        if r & 4 or r >= 128 + 8*VH: a(f"v_pk_mov_b32 {v(r,2)}, v[92:93], v[92:93]")
    S1, S2 = 80, 82
    for i in range(4): a(f"v_mov_b32 {v(80+i)}, 0")
    inv = f2u(1.0/512)
    k = 0
    for st in range(2):
        for j in range(8):
            vm.wait(("x", st, j))
            for d in range(4):
                x = XRAW + 32*st + 4*j + d
                a(f"v_dot2_f32_bf16 {v(S1+st)}, {v(x)}, {s(sONES)}, {v(S1+st)}")
                a(f"v_dot2_f32_bf16 {v(S2+st)}, {v(x)}, {v(x)}, {v(S2+st)}")
        if st == 1: stamp(a, 1)
        a("s_nop 2")
        for dpp in ("quad_perm:[1,0,3,2]", "quad_perm:[2,3,0,1]", "row_half_mirror"):
            for r in (S1+st, S2+st):
                a(f"v_add_f32_dpp {v(r)}, {v(r)}, {v(r)} {dpp} row_mask:0xf bank_mask:0xf")
            a("s_nop 0")
        for r in (S1+st, S2+st): a(f"v_mul_f32 {v(r)}, {inv:#x}, {v(r)}")
        a(f"v_fma_f32 {v(S2+st)}, -{v(S1+st)}, {v(S1+st)}, {v(S2+st)}")
        a(f"v_max_f32 {v(S2+st)}, 0, {v(S2+st)}")
        a(f"v_cvt_pk_bf16_f32 {v(84+st)}, {v(S1+st)}, {v(S2+st)}")
        a(f"v_lshlrev_b32 {v(S1+st)}, 16, {v(84+st)}")
        if RCL: a(f"v_mul_f32 {v(S1+st)}, {s(sHI)}, {v(S1+st)}")
        r = 84 + st
        rs_ops = [f"v_and_b32 {v(r)}, 0xffff0000, {v(r)}",
                  f"v_add_f32 {v(r)}, {f2u(1e-5):#x}, {v(r)}",
                  f"v_cvt_pk_bf16_f32 {v(r)}, {v(r)}, {v(r)}",
                  f"v_and_b32 {v(r)}, 0xffff0000, {v(r)}",
                  f"v_sqrt_f32 {v(r)}, {v(r)}",
                  f"v_cvt_pk_bf16_f32 {v(r)}, {v(r)}, {v(r)}",
                  f"v_and_b32 {v(r)}, 0xffff0000, {v(r)}",
                  f"v_rcp_f32 {v(r)}, {v(r)}"]
        for j in range(8):
            t = TMP + 8*(k % 2); k += 1
            for d in range(4):
                x = XRAW + 32*st + 4*j + d
                a(f"v_dot2_f32_bf16 {v(t+2*d)}, {v(x)}, {s(sLO)}, {v(S1+st)} neg_lo:[0,0,1]")
                a(f"v_dot2_f32_bf16 {v(t+2*d+1)}, {v(x)}, {s(sHI)}, {v(S1+st)} neg_lo:[0,0,1]")
            a(rs_ops[j])
            if RCL and j == 6: a(f"v_mul_f32 {v(r)}, {s(sHI)}, {v(r)}")
            for d in range(4):
                x = XRAW + 32*st + 4*j + d
                a(f"v_cvt_pk_bf16_f32 {v(x)}, {v(t+2*d)}, {v(t+2*d+1)}")
            a(f"ds_write_b128 {v(vXW)}, {v(XRAW+32*st+4*j,4)} offset:{128*j + st*8*XN_STRIDE}")
        a(f"ds_write_b32 {v(vRSW)}, {v(84+st)} offset:{SY_RS + 32*st}")
        if ES and st == 0: lds_inc(a, vSY, SY_L0, vONE)
    lds_inc(a, vSY, SY_LN, vONE)
    stamp(a, 2)
    lds_wait2(a, "A_ln", vSY, SY_LN, 7, 96, 0)
    stamp(a, 3)
    ACC, WF, XF = 64, 16, 40
    LA = QLA
    vSC, vFLG, KS = kreg(9), kreg(9)+2, [Q, kreg(10)]
    QA, QB = kreg(14), kreg(15)
    sLD = T + 11
    a(f"ds_read_b32 {v(vSC)}, {v(vRSR)} offset:{SY_RS}")
    def rd(st):
        a(f"ds_read_b64_tr_b16 {v(WF+4*(st%6),2)}, {v(vTR)} offset:{2048*st}")
        a(f"ds_read_b64_tr_b16 {v(WF+4*(st%6)+2,2)}, {v(vTR)} offset:{2048*st+512}")
        a(f"ds_read_b128 {v(XF+4*(st%6),4)}, {v(vXR)} offset:{32*st}")
    def rdks():
        for i in range(NS//2): a(f"ds_read_b128 {v(KS[i],4)}, {v(vQ0)} offset:{1024*i}")
    a(f"v_add_u32 {v(vQ0)}, {(L_KS - L_QT) & 0xffffffff}, {v(vQ0)}")
    assert L_QT - L_KS == 4096
    for st in range(LA): rd(st)
    ex = 0
    for st in range(32):
        if st + LA < 32: rd(st + LA)
        if st == 30:
            a(f"ds_read2_b32 {v(vFLG,2)}, {v(vSY)} offset0:{SY_KVRDY//4} offset1:{SY_KS//4}")
            rdks(); ex = 1 + NS//2
        a(f"s_waitcnt lgkmcnt({3*min(LA, 31-st) + ex})")
        c = "0" if st == 0 else v(ACC, 16)
        a(f"v_mfma_f32_32x32x16_bf16 {v(ACC,16)}, {v(WF+4*(st%6),4)}, {v(XF+4*(st%6),4)}, {c}")
    a(f"s_setprio 3")
    vm.drained()
    def ldK(t, tag):
        vm.issue(tag, f"buffer_load_dwordx4 {v(kreg(t),4)}, {v(vKR)}, {s(rWS,4)}, {s(sKB+t//4)} offen offset:{(t%4)*1024} sc1")
    def dmaK(t, tag):
        a(f"s_add_u32 m0, {s(sKD)}, {kslot(t)}")
        a(f"s_nop 0")
        vm.issue(tag, f"buffer_load_dwordx4 {v(vKR)}, {s(rWS,4)}, {s(sKB+t//4)} offen sc1 lds")
    def group(t, dma=True, regs=True):
        tag = ("g", t)
        if dma and t == 9: dmaK(0, tag)
        if dma and t + 2 in rot: dmaK(t + 2, tag)
        if not regs: return
        if t + 1 in res: ldK(t + 1, tag)
        if t >= VH: a(f"s_mov_b64 exec, {s(sMASK,2)}")
        for t2 in range(2 if t >= VH else 1):
            vm.issue(tag, f"buffer_load_dwordx4 {v(VR+8*t+4*t2,4)}, {v(vQV)}, {s(rWS,4)}, {s(sVB+t//4)} offen offset:{(t%4)*1024+512*t2} sc1")
        if t >= VH: a(f"s_mov_b64 exec, -1")
    assert VFULL and DPRE <= 8
    def first_loads():
        vm.drained()
        ldK(0, "k0")
        for t in range(DP0): group(t, dma=False)
    a(f"v_mul_f32 {v(vSC)}, {CSCALE:#x}, {v(vSC)}")
    a(f"s_waitcnt lgkmcnt({NS//2})")
    a(f"v_readfirstlane_b32 {s(sLD)}, {v(vFLG)}")
    a(f"v_readfirstlane_b32 s7, {v(vFLG+1)}")
    stamp(a, 4)
    a(f"s_cmp_eq_u32 {s(sLD)}, 0")
    a(f"s_cbranch_scc1 A_nol")
    first_loads()
    a.label("A_nol")
    a.nop(8)
    for hh in range(2):
        d = (QA, QB)[hh]
        for i in range(4):
            r = ACC + 8*hh + 2*i
            a(f"v_pk_mul_f32 {v(r,2)}, {v(r,2)}, {v(vSC,2)} op_sel_hi:[1,0]")
        for i in range(4):
            r = ACC + 8*hh + 2*i
            a(f"v_cvt_pk_bf16_f32 {v(d+i)}, {v(r)}, {v(r+1)}")
        a(f"ds_write_b128 {v(vQT)}, {v(d,4)} offset:{2048*hh}")
    a(f"s_cmp_lg_u32 s7, 0")
    a(f"s_waitcnt lgkmcnt(2)")
    a(f"s_cbranch_scc1 A_ks_ok")
    spin_begin(a, "A_ks")
    a(f"ds_read_b32 {v(vFLG)}, {v(vSY)} offset:{SY_KS}")
    rdks()
    a(f"s_waitcnt lgkmcnt(0)")
    a(f"v_readfirstlane_b32 s7, {v(vFLG)}")
    a(f"s_cmp_lg_u32 s7, 0")
    a(f"s_cbranch_scc1 A_ks_ok")
    spin_retry(a, "A_ks", 0)
    if P2C: a(f"ds_read_b32 {v(vFLG+1)}, {v(vSY)} offset:{SY_KVRDY}")
    for hh in range(2):
        a(f"v_mfma_f32_32x32x16_bf16 {v((S0, C)[hh],16)}, {v(KS[0],4)}, {v((QA, QB)[hh],4)}, 0")
    if NS == 2: a(f"v_mfma_f32_32x32x8_bf16 {v(O,16)}, v[0:1], {v(vIDX,2)}, 0")
    if P2C:
        a(f"s_waitcnt lgkmcnt(0)")
        a(f"v_readfirstlane_b32 s7, {v(vFLG+1)}")
        a(f"s_andn2_b32 s7, s7, {s(sLD)}")
        a(f"s_cbranch_scc0 A_no2")
        first_loads()
        a(f"s_mov_b32 {s(sLD)}, 1")
        a.label("A_no2")
    a.nop(7 if P2C else 11)
    for i in range(4):
        for base in (S0, S0 + 8, C, C + 8):
            if i < 3: a(f"v_max3_f32 {v(base)}, {v(base)}, {v(base+2*i+1)}, {v(base+2*i+2)}")
            elif base in (S0, C): a(f"v_max3_f32 {v(base)}, {v(base)}, {v(base+7)}, {v(base+15)}")
    for base in (S0, C): a(f"v_max_f32 {v(base)}, {v(base)}, {v(base+8)}")
    for base in (S0, C): a(f"v_mov_b32 {v(base+1)}, {v(base)}")
    a(f"s_nop 0")
    for base in (S0, C): a(f"v_permlane32_swap_b32 {v(base)}, {v(base+1)}")
    if NS == 4: a(f"v_mfma_f32_32x32x8_bf16 {v(O,16)}, v[0:1], {v(vIDX,2)}, 0")
    else: a(f"s_nop 0")
    for base in (S0, C): a(f"v_max_f32 {v(base)}, {v(base)}, {v(base+1)}")
    for base in (S0, C): a(f"v_sub_f32 {v(base)}, {f2u(-BIAS):#x}, {v(base)}")
    for i in range(1, 4):
        for base in (S0, C): a(f"v_mov_b32 {v(base+i)}, {v(base)}")
    a(f"ds_write_b128 {v(vCW)}, {v(S0,4)}")
    a(f"ds_write_b128 {v(vCW)}, {v(C,4)} offset:1024")
    lds_inc(a, vSY, SY_QCNT, vONE)
    stamp(a, 6)
    a(f"s_cmp_lg_u32 {s(sLD)}, 0")
    a(f"s_cbranch_scc1 A_kvb")
    lds_wait(a, "A_kw", vSY, SY_KVRDY, 1, S0, ASL)
    first_loads()
    a.label("A_kvb")
    for t in range(DP0, DPRE): group(t, dma=False)
    spin_begin(a, "A_c")
    a(f"ds_read_b32 {v(S0)}, {v(vSY)} offset:{SY_QCNT}")
    a(f"ds_read_b128 {v(Q,4)}, {v(vQ0)} offset:4096")
    for i in range(4): a(f"ds_read_b128 {v(C+4*i,4)}, {v(vCA)}")
    a(f"s_waitcnt lgkmcnt(5)")
    a(f"v_readfirstlane_b32 s6, {v(S0)}")
    a(f"s_cmp_ge_u32 s6, 4")
    a(f"s_cbranch_scc1 A_c_ok")
    spin_retry(a, "A_c", CSL)
    stamp(a, 7)
    for t in range(DPRE): group(t, regs=False)
    a(f"ds_write_b32 {v(vZA)}, v1")
    a(f"ds_write_b32 {v(vCF)}, {v(vONE)} offset:{SY_CF}")
    stamp(a, 9)
    def PV(t, half):
        sb = (S0 if t % 2 == 0 else S1_) + 8*half
        a(f"v_smfmac_f32_32x32x32_bf16 {v(O,16)}, {v(VR+8*t+4*half,4)}, {v(sb,8)}, {v(vIDX)}")
    def QK(t):
        sb = S0 if t % 2 == 0 else S1_
        a(f"v_mfma_f32_32x32x16_bf16 {v(sb,16)}, {v(kreg(t),4)}, {v(Q,4)}, {v(C,16)}")
    def rdK(t): a(f"ds_read_b128 {v(KROT,4)}, {v(vKR)} offset:{kslot(t)}")
    def rdQC(p):
        a(f"ds_read_b128 {v(Q,4)}, {v(vQV)} offset:{1024*p}")
        for i in range(4): a(f"ds_read_b128 {v(C+4*i,4)}, {v(vCA)} offset:{512*p}")
    def flush(p):
        r, o = (vQO, 8192*p) if p < 7 else (vKR, 0)
        a(f"ds_write_b128 {v(r)}, {v(O,4)} offset:{o}")
        a(f"ds_write_b128 {v(r)}, {v(O+4,4)} offset:{o+1024}")
        a(f"ds_write_addtid_b32 {v(O+8)} offset:{TID_OFF + 1024*p}")
    vm.wait("k0", " lgkmcnt(2)")
    a(f"s_setprio {APRIO}")
    QK(0)
    a.nop(12)
    for t in range(16):
        cur = S0 if t % 2 == 0 else S1_
        E = lambda i: a(f"v_exp_f32 {v(cur+i)}, {v(cur+i)}")
        if t == 0: stamp(a, 1)
        if t == 4: stamp(a, 2)
        if t == 8: stamp(a, 5)
        if t == 12: stamp(a, 8)
        E(0); E(1)
        if t > 0: PV(t-1, 1)
        if t + DPRE < 16: group(t + DPRE)
        if t == 16 - DPRE:
            a(f"s_sub_u32 s6, {L_QT}, {s(sKD)}")
            a(f"v_add_u32 {v(vQV)}, s6, {v(vKR)}")
            a(f"s_lshl_b32 s6, {s(sW)}, 8")
            a(f"s_add_u32 m0, s6, {L_L - TID_OFF}")
        E(2); E(3); E(4)
        nt = (t + 1) % 16
        if DBG & 64: a("s_waitcnt lgkmcnt(0)" if nt in rot else "s_nop 0")
        else: vm.wait(("g", t), " lgkmcnt(0)" if nt in rot else "")
        QK(nt)
        if (t + 2) % 16 in rot: rdK((t + 2) % 16)
        if t == 15: rdK(4)
        for i in range(5, 10):
            if t < VH and i < 7 and not (DBG & 32):
                for q in range(2): a(f"v_permlane16_swap_b32 {v(VR+8*t+2*(i-5)+q)}, {v(VR+8*t+4+2*(i-5)+q)}")
            E(i)
        PV(t, 0)
        if t == 14: rdQC(1)
        for i in range(10, 16): E(i)
    stamp(a, 10)
    if PROF: a(f"s_memtime {s(70+2*12,2)}")
    for p in range(1, 8):
      for t in range(16):
        cur = S0 if t % 2 == 0 else S1_
        E = lambda i: a(f"v_exp_f32 {v(cur+i)}, {v(cur+i)}")
        nt = (t + 1) % 16
        if t == 0:
            E(0); E(1); PV(15, 1); E(2); E(3); E(4); QK(1)
            for i in range(5, 13):
                E(i)
                if p == 6 and i == 6: a(f"v_readfirstlane_b32 s6, {v(vIDX+1)}")
                if p == 6 and i == 8: a(f"s_cmp_lt_u32 s6, 4")
                if p == 6 and i == 8: a(f"s_cbranch_scc1 A_chk")
                if p == 6 and i == 8: a.label("A_back")
                if p == 6 and i == 9: a(f"v_mov_b32 {v(vIDX+1)}, {v(vIDX)}")
            flush(p - 1)
            a(f"v_mfma_f32_32x32x8_bf16 {v(O,16)}, v[0:1], {v(vIDX,2)}, 0")
            E(13); E(14); E(15)
            PV(0, 0)
            continue
        last = p == 7 and t == 15
        p1 = max(P1, 3) if t == 1 else P1
        pq = max(PQ, p1)
        for i in range(16 + 1):
            if i == p1: PV(t-1, 1)
            if i == pq and not last:
                if nt in rot: a(f"s_waitcnt lgkmcnt(0)")
                QK(nt)
                if nt in rot and not (p == 7 and nt == 12): rdK((nt + 4) % 16)
            if i == P0: PV(t, 0)
            if i == 10 and t == 14 and p < 7:
                rdQC(p + 1)
                if p == 5: a(f"ds_read_b32 {v(vIDX+1)}, {v(vCA)} offset:{L_SY + SY_XFREE - L_C}")
            if i < 16: E(i)
    if PROF: a(f"s_memtime {s(70+2*13,2)}")
    stamp(a, 14)
    a(f"s_nop 1")
    PV(15, 1)
    a.nop(12)
    flush(7)
    endpgm(a, 11)
    a.label("A_chk")
    lds_wait(a, "A_x", vCA, L_SY + SY_XFREE - L_C, 4, vIDX+1)
    a(f"s_branch A_back")

def setup_u(a, vU=4, vONE=3):
    a(f"v_lshrrev_b32 v8, 3, v1")
    a(f"v_and_b32 v9, 7, v1")
    a(f"v_lshrrev_b32 v10, 2, v1")
    a(f"v_and_b32 v10, 4, v10")
    a(f"v_xor_b32 v10, v9, v10")
    a(f"v_lshlrev_b32 {v(vU)}, 10, v8")
    a(f"v_lshl_add_u32 {v(vU)}, v10, 4, {v(vU)}")
    a(f"s_lshl_b32 s6, {s(sG)}, 7")
    a(f"v_add_u32 {v(vU)}, s6, {v(vU)}")
    a(f"v_mov_b32 {v(vONE)}, 1")

def gen_g(a):
    vm = VM(a)
    ids(a)
    a(f"s_sub_u32 {s(sJ)}, {s(sW)}, 4")
    vSY, vONE, vU = 2, 3, 4
    a(f"v_mov_b32 {v(vSY)}, {L_SY}")
    a(f"v_lshl_add_u32 v12, v1, 2, {v(vSY)}")
    a(f"v_mov_b32 v13, 0")
    a(f"ds_write_b32 v12, v13")
    setup_u(a)
    sP, sWo, sRho, sW0 = T+1, T+2, T+3, T+4
    vW1, vBW, vT0, vT1, vXR, vX0 = 5, 6, 7, 11, 12, 48
    ACC, AF, XF, ST = 64, 16, 32, 128
    sHR = T + 9
    if BAL:
        a(f"s_mul_i32 s6, {s(sG)}, 3")
        a(f"s_add_u32 {s(sP)}, s6, {s(sJ)}")
        a(f"s_add_u32 s6, {s(sP)}, 12")
        a(f"s_and_b32 {s(sHR)}, s6, 1")
        a(f"s_lshr_b32 s6, s6, 1")
        a(f"s_cmp_ge_u32 {s(sG)}, 4")
        a(f"s_cselect_b32 {s(sP)}, s6, {s(sP)}")
        a(f"s_cselect_b32 {s(sHR)}, {s(sHR)}, 0")
    else:
        a(f"s_mul_i32 {s(sP)}, {s(sG)}, 3")
        a(f"s_cmp_eq_u32 {s(sG)}, 7")
        a(f"s_cselect_b32 {s(sP)}, 20, {s(sP)}")
        a(f"s_add_u32 {s(sP)}, {s(sP)}, {s(sJ)}")
    a(f"s_movk_i32 s6, 2752")
    a(f"v_lshlrev_b32 v13, 4, v9")
    a(f"v_mad_u32_u24 {v(vW1)}, v8, s6, v13")
    a(f"s_lshl_b32 {s(sW0)}, {s(sP)}, 7")
    a(f"s_and_b32 {s(sRho)}, {s(sB)}, {W1ROT}")
    a(f"s_lshl_b32 {s(T+6)}, {s(sRho)}, 13")
    a(f"s_lshl_b32 {s(T+7)}, {s(sJ)}, 10")
    args_ready(a)
    srd(a, rWA, sPWQ, 524288)
    srd(a, rWB, sPW1, 1409024)
    if not BAL:
        a(f"s_lshr_b32 s6, {s(sG)}, 1")
        a(f"s_add_u32 s6, s6, {s(sJ)}")
        a(f"s_cmp_eq_u32 s6, 5")
        a(f"s_cselect_b32 {s(rWB+2)}, 0, {s(rWB+2)}")
        a(f"s_cselect_b32 {s(T+8)}, 1, 0")
    R = W1D
    assert R % 2 == 0 and 4 <= R <= 32
    def ldw(u):
        if u % 8 == 0:
            a(f"s_xor_b32 s6, {s(sRho)}, {u//8}")
            a(f"s_mul_i32 s6, s6, {64*2752}")
            a(f"s_add_u32 {s(sWo)}, {s(sW0)}, s6")
        if not (DBG & 2): vm.issue(("w1", u), f"buffer_load_dwordx4 {v(ST+4*(u%R),4)}, {v(vW1)}, {s(rWB,4)}, {s(sWo)} offen")
        if u % 8 != 7: a(f"s_add_u32 {s(sWo)}, {s(sWo)}, {8*2752}")
    for i in range(22):
        if i == W1POS:
            for u in range(W1F): ldw(u)
        if i == 21: a(f"s_mov_b32 {s(T+7)}, {63*1024}")
        a(f"s_xor_b32 s6, {s(T+7)}, {s(T+6)}")
        a(f"s_add_u32 m0, s6, {L_R2}")
        a(f"s_lshl_b32 s6, s6, 3")
        vm.issue("wq", f"buffer_load_dwordx4 {v(vU)}, {s(rWA,4)}, s6 offen lds")
        if i < 20: a(f"s_add_u32 {s(T+7)}, {s(T+7)}, 3072")
    srd(a, rWS, sPWS, WS_SIZE)
    if not BAL:
        a(f"s_cmp_eq_u32 {s(T+8)}, 1")
        a(f"s_cbranch_scc1 G_idle")
    for u in range(W1F if W1POS < 22 else 0, R): ldw(u)
    a.label("G_f1")
    if BAL:
        srd(a, rWA, sPWO, 524288)
        a(f"s_and_b32 s6, {s(sB)}, 7")
        a(f"s_lshl2_add_u32 s6, s6, {s(sJ)}")
        a(f"s_lshl_b32 {s(T+10)}, s6, 14")
        a(f"s_add_u32 {s(T+11)}, {s(T+10)}, 8192")
    a(f"s_lshl_b32 s6, {s(sJ)}, 12")
    a(f"s_add_u32 s6, s6, {L_BNC}")
    a(f"v_lshlrev_b32 {v(vBW)}, 7, v8")
    a(f"v_lshl_add_u32 {v(vBW)}, v10, 4, {v(vBW)}")
    a(f"v_add_u32 {v(vBW)}, s6, {v(vBW)}")
    a(f"v_lshrrev_b32 v13, 5, v1")
    a(f"v_bfe_u32 v14, v1, 2, 2")
    a(f"v_lshlrev_b32 {v(vT0)}, 10, v13")
    a(f"v_lshl_add_u32 {v(vT0)}, v14, 7, {v(vT0)}")
    a(f"v_bfe_u32 v15, v1, 4, 1")
    a(f"v_lshl_add_u32 {v(vT0)}, v15, 5, {v(vT0)}")
    a(f"v_and_b32 v15, 3, v1")
    a(f"v_lshl_add_u32 {v(vT0)}, v15, 3, {v(vT0)}")
    a(f"v_lshrrev_b32 v14, 1, v14")
    a(f"v_lshl_add_u32 {v(vT0)}, v14, 6, {v(vT0)}")
    a(f"v_xor_b32 {v(vT1)}, 64, {v(vT0)}")
    a(f"v_add_u32 {v(vT0)}, s6, {v(vT0)}")
    a(f"v_add_u32 {v(vT1)}, s6, {v(vT1)}")
    a(f"v_and_b32 v14, 31, v1")
    a(f"v_mul_u32_u24 {v(vXR)}, {XN_STRIDE}, v14")
    a(f"v_lshl_add_u32 {v(vXR)}, v13, 4, {v(vXR)}")
    if BAL:
        a(f"s_mul_i32 s6, {s(sHR)}, {32*XN_STRIDE}")
        a(f"v_add_u32 {v(vXR)}, s6, {v(vXR)}")
    for q in range(8):
        a(f"s_xor_b32 s6, {s(sRho)}, {q}")
        a(f"s_lshl_b32 s6, s6, 7")
        a(f"v_add_u32 {v(vX0+q)}, s6, {v(vXR)}")
    for i in range(4): a(f"v_mov_b32 {v(56+i)}, -1")
    a(f"v_lshlrev_b32 v60, 4, v1")
    a(f"s_lshl1_add_u32 {s(T+5)}, {s(sC)}, {s(sJ)}")
    a(f"s_lshl_b32 {s(T+5)}, {s(T+5)}, 12")
    a(f"s_add_u32 {s(T+5)}, {s(T+5)}, {OF}")
    def wr1(u):
        if not (DBG & 1): vm.wait(("w1", u))
        a(f"ds_write_b128 {v(vBW)}, {v(ST+4*(u%R),4)} offset:{(u%4)*1024}")
    def trd(st, ct):
        b = AF + 8*(st % 2) + 4*ct; o = (st % 2)*2048
        a(f"ds_read_b64_tr_b16 {v(b,2)}, {v(vT1 if ct else vT0)} offset:{o}")
        a(f"ds_read_b64_tr_b16 {v(b+2,2)}, {v(vT1 if ct else vT0)} offset:{o+512}")
    def xrd(st, rt):
        a(f"ds_read_b128 {v(XF+8*(st%2)+4*rt,4)}, {v(vX0+st//4)} offset:{32*(st%4) + rt*32*XN_STRIDE}")
    vm.wait("wq")
    lds_inc(a, vSY, SY_WQ, vONE)
    for u in range(4): wr1(u)
    trd(0, 0); trd(0, 1)
    a(f"s_waitcnt lgkmcnt(0)")
    for u in range(R, R + 4): ldw(u)
    fix_tag(a)
    stamp(a, 1)
    lds_wait(a, "G_ln", vSY, SY_LN, 4, 61, 1)
    if F1W: lds_wait(a, "G_q", vSY, SY_QCNT, F1W, 61, 1)
    stamp(a, 2)
    if F1PRIO or F3P == 3: a(f"s_setprio {F1PRIO}")
    q0 = list(vm.q)
    def ffn1(half):
        vm.q = list(q0)
        sf = "h" if half else ""
        rts = (0,) if half else (0, 1)
        for rt in rts: xrd(0, rt)
        for st in range(32):
            a(f"s_waitcnt lgkmcnt({2 if 0 < st < 31 else 0})")
            if BAL and WOPF and st == WOPS:
                for q in range(2): vm.issue("pf", f"buffer_load_dwordx4 {v(192+4*q,4)}, {v(vU)}, {s(rWA,4)}, {s(T+10+q)} offen")
            if st == 10: stamp(a, 13)
            if st == 20: stamp(a, 14)
            k = 0
            for ct in range(2):
                for rt in range(2):
                    acc = ACC + 32*ct + 16*rt
                    c = "0" if st == 0 else v(acc, 16)
                    if rt in rts: a(f"v_mfma_f32_32x32x16_bf16 {v(acc,16)}, {v(AF+8*(st%2)+4*ct,4)}, {v(XF+8*(st%2)+4*rt,4)}, {c}")
                    if k < 2 and st + 1 < 32:
                        trd(st + 1, k)
                        if k in rts: xrd(st + 1, k)
                    if k >= 2 and st + 2 < 32:
                        u = 2*(st+2) + k - 2
                        wr1(u)
                        if u + R < 64: ldw(u + R)
                    k += 1
        stamp(a, 3)
        a(f"s_setprio {GHI}")
        lds_inc(a, vSY, SY_XFREE, vONE)
        a(f"s_cmp_ge_u32 {s(sJ)}, 2")
        a(f"s_cbranch_scc1 G_nop{sf}")
        for p in range(4):
            a(f"buffer_store_dwordx4 v[56:59], v60, {s(rWS,4)}, {s(T+5)} offen offset:{p*1024} sc1")
        a.label("G_nop" + sf)
        a(f"v_lshlrev_b32 v8, 4, v1")
        a(f"s_mul_i32 s6, {s(sB)}, {2*HSTR}")
        a(f"s_lshl2_add_u32 s6, {s(sP)}, s6")
        if half:
            a(f"s_mul_i32 s7, {s(sHR)}, {HSTR}")
            a(f"s_add_u32 s6, s6, s7")
            a.nop(4)
        a(f"s_lshl_b32 s6, s6, 10")
        a(f"s_add_u32 s6, s6, {HF}")
        a(f"s_add_u32 s7, s6, {HSTR*1024}")
        k = 0
        for ct in range(2):
            for rt in rts:
                for hh in range(2):
                    d = ST + 4*k; k += 1
                    for i in range(4):
                        r = ACC + 32*ct + 16*rt + 8*hh + 2*i
                        a(f"v_cvt_pk_bf16_f32 {v(d+i)}, {v(r)}, {v(r+1)}{' clamp' if RCL else ''}")
                    for i in range(0 if RCL else 4):
                        a(f"v_pk_max_i16 {v(d+i)}, {v(d+i)}, 0")
                    a(f"buffer_store_dwordx4 {v(d,4)}, v8, {s(rWS,4)}, s{6+rt} offen offset:{1024*(2*ct+hh)} sc1")
    if BAL:
        a(f"s_cmp_lt_u32 {s(sP)}, 12")
        a(f"s_cbranch_scc1 G_full")
        ffn1(1)
        a(f"s_branch G_hpub")
        a(".p2align 6")
        a.label("G_full")
    ffn1(0)
    a.label("G_hpub")
    publish(a, "G_pubh", vSY, SY_HCNT, 3 if BAL else 2, vONE, 16, FL_H)
    stamp(a, 4)
    if BAL:
        a(f"s_cmp_eq_u32 {s(sJ)}, 2")
        a(f"s_cbranch_scc1 G_wod")
    a.label("G_ffn2")
    if DBG & 4: a(f"s_branch G_end")
    a(f"s_setprio {GHI}")
    vm.drained()
    sStg, sWo, sHo, sCT, sRT, sXO, sWj, sHb = T, T+2, T+3, T+4, T+5, T+6, T+7, T+9
    vA1, vB0, vB1, vT0, vT1, vXO, vL16, vTW = 5, 6, 7, 11, 12, 10, 13, 14
    ACC, AF, XD, XU = 64, 16, 144, 128
    BFS = [32, 40, 48, 56, 128, 136]
    WFR = lambda hh, g2: 160 + 32*(hh % 3) + 4*g2
    assert FD <= 6
    a(f"s_lshl_b32 {s(sWj)}, {s(sJ)}, 14")
    a(f"s_mul_i32 {s(sStg)}, {s(sJ)}, 12288")
    a(f"s_add_u32 {s(sStg)}, {s(sStg)}, {L_STG}")
    srd(a, rWA, sPW2, 1409024)
    srd(a, rX, sPX, 2097152)
    srd(a, rOUT, sPOUT, 2097152)
    a(f"v_add_u32 {v(vA1)}, {8192-1024}, {v(vU)}")
    N = 22
    if F2ROT:
        a(f"s_lshl1_add_u32 s6, {s(sG)}, {s(sB)}")
        a(f"s_and_b32 s6, s6, 7")
        a(f"s_mul_i32 s6, s6, 11")
        a(f"s_lshr_b32 s6, s6, 2")
    else:
        a(f"s_mov_b32 s6, 0")
    a(f"s_lshl_b32 {s(sHo)}, s6, 12")
    a(f"s_lshl_b32 {s(sWo)}, s6, 16")
    a(f"s_add_u32 {s(sWo)}, {s(sWo)}, {s(sWj)}")
    def issueW(i):
        a(f"s_add_u32 m0, {s(sStg)}, {(i % FD)*2048}")
        a(f"s_nop 0")
        vm.issue(("f", i), f"buffer_load_dwordx4 {v(vU)}, {s(rWA,4)}, {s(sWo)} offen lds")
        vm.issue(("f", i), f"buffer_load_dwordx4 {v(vA1)}, {s(rWA,4)}, {s(sWo)} offen offset:1024 lds")
        a(f"s_add_u32 {s(sWo)}, {s(sWo)}, {4*16384}")
        a(f"s_cmp_ge_u32 {s(sWo)}, {N*65536}")
        a(f"s_cselect_b32 {s(sWo)}, {s(sWj)}, {s(sWo)}")
    def issueH(i):
        vm.issue(("f", i), f"buffer_load_dwordx4 {v(BFS[i%FD],4)}, {v(vB0)}, {s(rWS,4)}, {s(sHo)} offen sc1")
        vm.issue(("f", i), f"buffer_load_dwordx4 {v(BFS[i%FD]+4,4)}, {v(vB1)}, {s(rWS,4)}, {s(sHo)} offen sc1")
        a(f"s_add_u32 {s(sHo)}, {s(sHo)}, 4096")
        a(f"s_cmp_ge_u32 {s(sHo)}, {N*4096}")
        a(f"s_cselect_b32 {s(sHo)}, 0, {s(sHo)}")
    a(f"s_and_b32 {s(sCT)}, {s(sJ)}, 1")
    a(f"s_lshr_b32 {s(sRT)}, {s(sJ)}, 1")
    a(f"v_and_b32 v8, 31, v1")
    a(f"v_lshrrev_b32 v9, 5, v1")
    a(f"v_lshlrev_b32 {v(vXO)}, 10, v8")
    a(f"v_lshl_add_u32 {v(vXO)}, v9, 5, {v(vXO)}")
    a(f"s_lshl_b32 s6, {s(sB)}, 16")
    a(f"s_lshl_b32 s7, {s(sRT)}, 15")
    a(f"s_add_u32 {s(sXO)}, s6, s7")
    a(f"s_lshl_b32 s6, {s(sG)}, 7")
    a(f"s_lshl_b32 s7, {s(sCT)}, 6")
    a(f"s_add_u32 s6, s6, s7")
    a(f"s_add_u32 {s(sXO)}, {s(sXO)}, s6")
    for q in range(2):
        vm.issue("xd", f"buffer_load_dwordx4 {v(XD+4*q,4)}, {v(vXO)}, {s(rX,4)}, {s(sXO)} offen offset:{16*q}")
    a(f"v_lshlrev_b32 {v(vL16)}, 4, v1")
    a(f"s_mul_i32 {s(sHb)}, {s(sB)}, {2*HSTR*1024}")
    a(f"s_lshl_b32 s6, {s(sJ)}, 10")
    a(f"s_add_u32 {s(sHb)}, {s(sHb)}, s6")
    a(f"s_add_u32 {s(sHb)}, {s(sHb)}, {HF}")
    a(f"s_mul_i32 s6, {s(sRT)}, {HSTR*1024}")
    a(f"s_add_u32 s7, s6, {s(sHb)}")
    a(f"v_add_u32 {v(vB0)}, s7, {v(vL16)}")
    a(f"s_sub_u32 s6, {HSTR*1024}, s6")
    a(f"s_add_u32 s7, s6, {s(sHb)}")
    a(f"v_add_u32 {v(vB1)}, s7, {v(vL16)}")
    a(f"v_bfe_u32 v16, v1, 2, 2")
    a(f"v_lshl_add_u32 {v(vTW)}, v9, 2, v16")
    a(f"v_lshlrev_b32 {v(vTW)}, 7, {v(vTW)}")
    a(f"v_bfe_u32 v15, v1, 4, 1")
    a(f"v_lshl_add_u32 {v(vTW)}, v15, 4, {v(vTW)}")
    a(f"v_and_b32 v15, 1, v1")
    a(f"v_lshl_add_u32 {v(vTW)}, v15, 5, {v(vTW)}")
    a(f"v_bfe_u32 v15, v1, 1, 1")
    a(f"v_lshl_add_u32 {v(vTW)}, v15, 3, {v(vTW)}")
    a(f"v_lshrrev_b32 v16, 1, v16")
    a(f"v_xor_b32 v16, {s(sCT)}, v16")
    a(f"v_lshl_add_u32 {v(vTW)}, v16, 6, {v(vTW)}")
    assert L_STG == 0
    a(f"v_xor_b32 {v(vT1)}, 64, {v(vTW)}")
    a(f"v_add_u32 {v(vT0)}, {s(sStg)}, {v(vTW)}")
    a(f"v_add_u32 {v(vT1)}, {s(sStg)}, {v(vT1)}")
    a(f"v_and_b32 v16, 3, v1")
    a(f"v_lshl_add_u32 v16, v16, 2, {v(vSY)}")
    spin_begin(a, "G_cf")
    a(f"ds_read_b32 v17, v16 offset:{SY_CF}")
    a(f"s_waitcnt lgkmcnt(0)")
    a(f"v_cmp_eq_u32 vcc, 0, v17")
    a(f"s_nop 0")
    a(f"s_cbranch_vccz G_cf_ok")
    spin_retry(a, "G_cf", 2)
    lds_wait(a, "G_wo", vSY, SY_WO, 1, 16, SL1)
    def wread(hh):
        for g2 in range(8):
            o = 16384*hh + 2048*g2
            a(f"ds_read_b64_tr_b16 {v(WFR(hh,g2),2)}, {v(vTW)} offset:{o}")
            a(f"ds_read_b64_tr_b16 {v(WFR(hh,g2)+2,2)}, {v(vTW)} offset:{o+1024}")
            if g2 % 4 == 3: a(f"s_waitcnt lgkmcnt(4)")
    for hh in range(3): wread(hh)
    a(f"s_waitcnt vmcnt(0) lgkmcnt(0)")
    lds_inc(a, vSY, SY_RED2, vONE)
    a(f"v_and_b32 v15, 7, v1")
    a(f"v_lshlrev_b32 v15, 3, v15")
    lds_wait(a, "G_r2", vSY, SY_RED2, 4, 16)
    stamp(a, 8)
    for i in range(FD - 1): issueW(i)
    a(f"s_lshl_b32 s7, {s(sB)}, 7")
    a(f"s_add_u32 s7, s7, {FL_H}")
    spin_begin(a, "G_h")
    a(f"buffer_load_dwordx2 v[16:17], v15, {s(rWS,4)}, s7 offen sc1")
    a(f"s_waitcnt vmcnt(0)")
    a(f"v_cmp_ne_u64 vcc, {s(sTAG,2)}, v[16:17]")
    a(f"s_nop 0")
    a(f"s_cbranch_vccz G_h_ok")
    spin_retry(a, "G_h", 4)
    stamp(a, 5)
    vm.drained()
    for i in range(FD - 1): issueH(i)
    def aread(i, ct):
        base = AF + 8*(i % 2) + 4*ct; o = (i % FD)*2048
        a(f"ds_read_b64_tr_b16 {v(base,2)}, {v(vT1 if ct else vT0)} offset:{o}")
        a(f"ds_read_b64_tr_b16 {v(base+2,2)}, {v(vT1 if ct else vT0)} offset:{o+1024}")
    vm.wait(("f", 0))
    aread(0, 1); aread(0, 0)
    a(f"s_setprio {GLO}")
    for i in range(N):
        a(f"s_waitcnt lgkmcnt(0)")
        k = 0
        for rt in (1, 0):
            for ct in (1, 0):
                acc = ACC + 16*(2*rt + ct)
                c = "0" if i == 0 else v(acc, 16)
                a(f"v_mfma_f32_32x32x16_bf16 {v(acc,16)}, {v(AF+8*(i%2)+4*ct,4)}, {v(BFS[i%FD]+4*rt,4)}, {c}")
                if k == 0 and i + 1 < N:
                    vm.wait(("f", i + 1)); aread(i + 1, 1)
                if k == 1 and i + 1 < N: aread(i + 1, 0)
                if k == 2 and i + FD - 1 < N: issueW(i + FD - 1)
                if k == 3 and i + FD - 1 < N: issueH(i + FD - 1)
                k += 1
    stamp(a, 6)
    a(f"s_setprio {GHI}")
    vm.drained()
    vOR, vLR, vFL, vFG = 5, 6, 7, 15
    OB, RT_, LV = 80, 16, 48
    vSK, vRS = 152, 12
    sOP, sOC, sLIM, sPHS = T+1, T+3, T+4, T+8
    a(f"v_add_u32 {v(vSK)}, {s(sStg)}, {v(vL16)}")
    a.nop(4)
    a(f"s_lshl_b32 s6, {s(sRT)}, 7")
    a(f"v_lshl_add_u32 {v(vRS)}, v8, 2, {v(vSY)}")
    a(f"v_add_u32 {v(vRS)}, s6, {v(vRS)}")
    a(f"s_lshl_b32 s6, {s(sJ)}, 13")
    a(f"s_add_u32 s6, s6, {L_QO}")
    a(f"v_add_u32 {v(vOR)}, s6, {v(vL16)}")
    for lam in (3, 2, 1):
        for q in range(4):
            a(f"ds_write_b128 {v(vSK)}, {v(ACC+16*lam+4*q,4)} offset:{(lam-1)*4096 + q*1024}")
    lds_inc(a, vSY, SY_RED1, vONE)
    a(f"ds_read_b32 {v(vRS)}, {v(vRS)} offset:{SY_RS}")
    a(f"s_lshl_b32 s6, {s(sJ)}, 10")
    a(f"s_add_u32 s7, s6, {L_L}")
    a(f"v_lshlrev_b32 {v(vLR)}, 2, v8")
    a(f"v_add_u32 {v(vLR)}, s7, {v(vLR)}")
    a(f"v_and_b32 {v(vFG)}, 3, v1")
    a(f"v_lshlrev_b32 {v(vFG)}, 8, {v(vFG)}")
    a(f"v_add_u32 {v(vFL)}, s7, {v(vFG)}")
    a(f"s_lshl_b32 s7, {s(sRT)}, 10")
    a(f"s_add_u32 {s(sOC)}, s7, {L_L}")
    if DEF: a(f"v_add_u32 {v(vFG)}, {L_L + 1024}, {v(vFG)}")
    else: a(f"v_add_u32 {v(vFG)}, {s(sOC)}, {v(vFG)}")
    a(f"s_lshl_b32 {s(sOP)}, {s(sC)}, 13")
    a(f"s_add_u32 {s(sOP)}, {s(sOP)}, s6")
    a(f"s_add_u32 {s(sOP)}, {s(sOP)}, {OF}")
    a(f"s_lshl_b32 {s(sOC)}, {s(sB)}, 16")
    a(f"s_add_u32 {s(sOC)}, {s(sOC)}, s7")
    a(f"s_add_u32 {s(sOC)}, {s(sOC)}, {OF}")
    a(f"s_mov_b32 {s(sLIM)}, {f2u(2.0**120):#x}")
    def red(k):
        spin_begin(a, f"G_o{k}")
        a(f"ds_read_b32 {v(LV+4)}, {v(vFL)} offset:{4096*k + 128}")
        a(f"s_waitcnt lgkmcnt(0)")
        a(f"v_cmp_eq_u32 vcc, 0, {v(LV+4)}")
        a(f"s_nop 0")
        a(f"s_cbranch_vccz G_o{k}_ok")
        if k and OSL:
            a(f"s_cmp_eq_u32 {s(sJ)}, 3")
            a(f"s_cbranch_scc1 G_o1_ns")
            a(f"s_sleep {OSL}")
            a.label("G_o1_ns")
        spin_retry(a, f"G_o{k}", RSL if k else 2)
        a(f"ds_read2st64_b32 {v(LV,2)}, {v(vLR)} offset0:{16*k} offset1:{16*k+1}")
        a(f"ds_read2st64_b32 {v(LV+2,2)}, {v(vLR)} offset0:{16*k+2} offset1:{16*k+3}")
        for w in range(4):
            for hf in range(2):
                a(f"ds_read_b128 {v(RT_+8*w+4*hf,4)}, {v(vOR)} offset:{2048*w + 1024*hf}")
        if k == 0:
            a(f"s_cmp_eq_u32 {s(sJ)}, 3")
            a(f"s_mov_b32 s6, 32768")
            a(f"s_cselect_b32 s6, {(L_KROT - L_QO - 3*8192) & 0xffffffff}, s6")
            a(f"v_add_u32 {v(vOR)}, s6, {v(vOR)}")
        a(f"s_add_u32 {s(sPHS)}, {s(sJ)}, {4*k}")
        a(f"s_waitcnt lgkmcnt(8)")
        a(f"v_pk_add_f32 {v(LV,2)}, {v(LV,2)}, {v(LV+2,2)}")
        a(f"s_waitcnt lgkmcnt(4)")
        a(f"v_add_f32 {v(LV)}, {v(LV)}, {v(LV+1)}")
        for i in range(4): a(f"v_pk_add_f32 {v(RT_+2*i,2)}, {v(RT_+2*i,2)}, {v(RT_+8+2*i,2)}")
        a(f"v_rcp_f32 {v(LV+2)}, {v(LV)}")
        a(f"s_waitcnt lgkmcnt(0)")
        for i in range(4): a(f"v_pk_add_f32 {v(RT_+16+2*i,2)}, {v(RT_+16+2*i,2)}, {v(RT_+24+2*i,2)}")
        for i in range(4): a(f"v_pk_add_f32 {v(RT_+2*i,2)}, {v(RT_+2*i,2)}, {v(RT_+16+2*i,2)}")
        for i in range(4): a(f"v_maximum3_f32 {v(LV)}, |{v(RT_+2*i)}|, |{v(RT_+2*i+1)}|, {v(LV)}")
        a(f"v_cmp_ngt_f32 vcc, {s(sLIM)}, {v(LV)}")
        a(f"s_nop 0")
        if FORCE_FB: a(f"s_bitcmp1_b32 {s(sJ)}, 0"); a(f"s_cbranch_scc1 G_fb")
        a(f"s_cbranch_vccnz G_fb")
        a.label(f"G_ret{k}")
        for i in range(4): a(f"v_pk_mul_f32 {v(RT_+2*i,2)}, {v(RT_+2*i,2)}, {v(LV+2,2)} op_sel_hi:[1,0]")
        for i in range(4): a(f"v_cvt_pk_bf16_f32 {v(RT_+8+i)}, {v(RT_+2*i)}, {v(RT_+2*i+1)}")
        if k: a(f"s_add_u32 {s(sOP)}, {s(sOP)}, 4096")
        a(f"buffer_store_dwordx4 {v(RT_+8,4)}, {v(vL16)}, {s(rWS,4)}, {s(sOP)} offen sc1")
    def cons(hs, bufs):
        name = "G_c" + "".join(map(str, hs))
        if hs == [3]:
            spin_begin(a, f"G_g3")
            a(f"ds_read_b32 {v(LV+4)}, {v(vFG)} offset:{2048*3 + 128}")
            a(f"s_waitcnt lgkmcnt(0)")
            a(f"v_cmp_eq_u32 vcc, 0, {v(LV+4)}")
            a(f"s_nop 0")
            a(f"s_cbranch_vccz G_g3_ok")
            spin_retry(a, f"G_g3", 2)
        spin_begin(a, name)
        a(f"s_add_u32 s6, {s(sOC)}, {2048*hs[0]}")
        regs = []
        for g2 in range(8):
            for hh, ob in zip(hs, bufs):
                a(f"buffer_load_dwordx4 {v(ob+4*g2,4)}, {v(vL16)}, {s(rWS,4)}, s6 offen offset:{2048*(hh-hs[0])} sc1")
                regs.append(ob + 4*g2)
            if g2 < 7: a(f"s_add_u32 s6, s6, 8192")
        for n, b in enumerate(regs):
            a(f"s_waitcnt vmcnt({len(regs)-1-n})")
            if n == 0:
                a(f"v_max3_u32 {v(LV+4)}, {v(b)}, {v(b+1)}, {v(b+2)}")
                a(f"v_max_u32 {v(LV+4)}, {v(LV+4)}, {v(b+3)}")
            else:
                a(f"v_max3_u32 {v(LV+4)}, {v(b)}, {v(b+1)}, {v(LV+4)}")
                a(f"v_max3_u32 {v(LV+4)}, {v(b+2)}, {v(b+3)}, {v(LV+4)}")
        a(f"v_cmp_eq_u32 vcc, -1, {v(LV+4)}")
        a(f"s_nop 0")
        a(f"s_cbranch_vccz {name}_ok")
        spin_retry(a, name, 0 if hs == [3] else 4)
        if hs != [3]: a(f"s_setprio {GLO}")
        for hh, ob in zip(hs, bufs):
            for g2 in range(8):
                a(f"v_mfma_f32_32x32x16_bf16 {v(ACC,16)}, {v(WFR(hh,g2),4)}, {v(ob+4*g2,4)}, {v(ACC,16)}")
        if hs != [3]: a(f"s_setprio {GHI}")
    def reduce_now():
        for lam in range(1, 4): a(f"v_add_u32 {v(vSK+lam)}, {12288*(3^lam)}, {v(vL16)}")
        for q in range(8):
            a(f"v_lshlrev_b32 {v(XU+2*q)}, 16, {v(XD+q)}")
            a(f"v_and_b32 {v(XU+2*q+1)}, 0xffff0000, {v(XD+q)}")
        lds_wait(a, "G_r1", vSY, SY_RED1, 4, LV+4)
        for lam in range(1, 4):
            for q in range(4):
                a(f"ds_read_b128 {v(ACC+16*lam+4*q,4)}, {v(vSK+lam)} offset:{(lam-1)*4096 + q*1024}")
        a(f"s_waitcnt lgkmcnt(4)")
        for i in range(8):
            a(f"v_pk_add_f32 {v(ACC+2*i,2)}, {v(ACC+2*i,2)}, {v(ACC+16+2*i,2)}")
        for i in range(8):
            a(f"v_pk_add_f32 {v(ACC+2*i,2)}, {v(ACC+2*i,2)}, {v(ACC+32+2*i,2)}")
        a(f"s_waitcnt lgkmcnt(0)")
        for i in range(8):
            a(f"v_pk_add_f32 {v(ACC+2*i,2)}, {v(ACC+2*i,2)}, {v(ACC+48+2*i,2)}")
        for i in range(8):
            a(f"v_pk_fma_f32 {v(ACC+2*i,2)}, {v(ACC+2*i,2)}, {v(vRS,2)}, {v(XU+2*i,2)} op_sel_hi:[1,0,1]")
        stamp(a, 7)
    def c_ld(items):
        h0 = min(h for h, _, _ in items)
        a(f"s_add_u32 s6, {s(sOC)}, {2048*h0}")
        for g2 in range(8):
            for hh, g_, r in items:
                if g_ == g2: a(f"buffer_load_dwordx4 {v(r,4)}, {v(vL16)}, {s(rWS,4)}, s6 offen offset:{2048*(hh-h0)} sc1")
            if g2 < 7: a(f"s_add_u32 s6, s6, 8192")
    def c_chk(items, later=0, tmp=LV+4, wait=True, mm=(), hook=None):
        mm = list(mm)
        regs = [r for g2 in range(8) for _, g_, r in items if g_ == g2]
        for n, b in enumerate(regs):
            if wait: a(f"s_waitcnt vmcnt({len(regs)-1-n+later})")
            if hook: hook(n)
            if mm and n % 2 == 0: c_mm([mm.pop(0)])
            if n == 0:
                a(f"v_max3_u32 {v(tmp)}, {v(b)}, {v(b+1)}, {v(b+2)}")
                a(f"v_max_u32 {v(tmp)}, {v(tmp)}, {v(b+3)}")
            else:
                a(f"v_max3_u32 {v(tmp)}, {v(b)}, {v(b+1)}, {v(tmp)}")
                a(f"v_max3_u32 {v(tmp)}, {v(b+2)}, {v(b+3)}, {v(tmp)}")
        assert not mm
        a(f"v_cmp_eq_u32 vcc, -1, {v(tmp)}")
        a(f"s_nop 0")
    def c_mm(items):
        for hh, g2, r in items:
            a(f"v_mfma_f32_32x32x16_bf16 {v(ACC,16)}, {v(WFR(hh,g2),4)}, {v(r,4)}, {v(ACC,16)}")
    def c_spin(name, items, sleep, tmp=LV+4):
        spin_begin(a, name)
        c_ld(items); c_chk(items, tmp=tmp)
        a(f"s_cbranch_vccz {name}_ok")
        spin_retry(a, name, sleep)
    I0 = [(0, g2, OB + 4*g2) for g2 in range(8)]
    I1a = [(1, g2, 112 + 4*g2) for g2 in range(4)]
    I1b = [(1, g2, RT_ + 4*(g2-4)) for g2 in range(4, 8)]
    I2 = [(2, g2, RT_ + 4*g2) for g2 in range(8)]
    I3 = [(3, g2, 128 + 4*g2) for g2 in range(8)]
    assert DEF
    J1 = [(1, g2, RT_ + 4*g2) for g2 in range(8)]
    J2 = [(2, g2, (48 if g2 < 4 else 96) + 4*g2) for g2 in range(8)]
    if DEF:
        red(0)
        sO3 = rWA
        for n in range(8): a(f"s_add_u32 {s(sO3+n)}, {s(sOC)}, {2048*3 + 8192*n}")
        a(f"s_cmp_eq_u32 {s(sJ)}, 3")
        a(f"s_cbranch_scc1 G_x3")
        for i in range(8): a(f"v_pk_mul_f32 {v(ACC+2*i,2)}, {v(ACC+2*i,2)}, {v(vRS,2)} op_sel_hi:[1,0]")
        stamp(a, 7)
        a.label("G_red1")
        red(1)
        stamp(a, 10)
        sF = T + 2
        a(f"s_cmp_eq_u32 {s(sJ)}, 3")
        a(f"s_cbranch_scc0 G_n3")
        c_ld(I3)
        a(f"s_cmp_eq_u32 {s(sF)}, 0")
        a(f"s_cbranch_scc1 G_s2")
        a(f"s_branch G_k3")
        a.label("G_n3")
        a(f"v_and_b32 v5, 3, v1")
        a(f"v_bfe_u32 v6, v1, 2, 3")
        a(f"v_min_u32 v5, 2, v5")
        a(f"v_lshlrev_b32 v6, 13, v6")
        a(f"v_lshl_add_u32 v6, v5, 11, v6")
        spin_begin(a, "G_pp")
        a(f"buffer_load_dword v7, v6, {s(rWS,4)}, {s(sOC)} offen offset:1020 sc1")
        a(f"s_waitcnt vmcnt(0)")
        a(f"v_cmp_eq_u32 vcc, -1, v7")
        a(f"s_nop 0")
        a(f"s_cbranch_vccz G_pp_ok")
        spin_retry(a, "G_pp", SL4)
        c_ld(I0 + J1); c_ld(J2)
        lds_wait(a, "G_r1b", vSY, SY_RED1, 4, 5)
        a(f"s_mov_b32 {s(T+10)}, 0x00003f80")
        a(f"s_mov_b32 {s(T+11)}, 0x3f800000")
        stamp(a, 9)
        spin_begin(a, f"G_g3")
        a(f"ds_read_b32 v5, {v(vFG)} offset:{2048*3 + 128}")
        a(f"s_waitcnt lgkmcnt(0)")
        a(f"v_cmp_eq_u32 vcc, 0, v5")
        a(f"s_nop 0")
        a(f"s_cbranch_vccz G_g3_ok")
        spin_retry(a, f"G_g3", SL3)
        for q in range(8):
            for h_ in range(2): a(f"v_dot2_f32_bf16 {v(ACC+2*q+h_)}, {v(XD+q)}, {s(T+10+h_)}, {v(ACC+2*q+h_)}")
        if IP < 0: c_ld(I3)
        a(f"s_waitcnt vmcnt({8 if IP < 0 else 0})")
        c_chk(I0, tmp=5, wait=False)
        a(f"s_cbranch_vccnz G_s0")
        a.label("G_b0")
        c_chk(J1 + J2, tmp=5, wait=False, mm=I0, hook=lambda n: c_ld(I3) if n == 2*IP else None)
        if IP == 8: c_ld(I3)
        XW, XU2, PW = 80, 192, [88, 16, 32]
        a(f"s_cbranch_vccnz G_s1")
        a.label("G_b1")
        for n in range(8):
            c_mm([J1[n]])
            if n < 3:
                a(f"s_xor_b32 s6, {s(sJ)}, {n+1}")
                a(f"s_mul_i32 s6, s6, 12288")
                a(f"v_add_u32 {v(5+n)}, s6, {v(vL16)}")
            a(f"ds_read_b64_tr_b16 {v(WFR(3,n),2)}, {v(vTW)} offset:{16384*3 + 2048*n}")
            a(f"ds_read_b64_tr_b16 {v(WFR(3,n)+2,2)}, {v(vTW)} offset:{16384*3 + 2048*n + 1024}")
            if n == 6: a(f"s_waitcnt lgkmcnt(8)")
        a(f"s_waitcnt lgkmcnt(2)")
        for lam in range(1, 4):
            for q in range(4):
                a(f"ds_read_b128 {v(PW[lam-1]+4*q,4)}, {v(4+lam)} offset:{(lam-1)*4096 + q*1024}")
        for n in range(8):
            c_mm([J2[n]])
            if n == 2: a(f"s_waitcnt lgkmcnt(4)")
            if n == 5: a(f"s_waitcnt lgkmcnt(0)")
            if n >= 2:
                k, i0_ = (1, n - 2) if n < 5 else (2, n - 5)
                for i in range(3*i0_, min(3*i0_ + 3, 8)):
                    a(f"v_pk_add_f32 {v(PW[0]+2*i,2)}, {v(PW[0]+2*i,2)}, {v(PW[k]+2*i,2)}")
        a.nop(10)
        for i in range(8):
            a(f"v_pk_fma_f32 {v(ACC+2*i,2)}, {v(PW[0]+2*i,2)}, {v(vRS,2)}, {v(ACC+2*i,2)} op_sel_hi:[1,0,1]")
        a.label("G_k3")
        if MSK:
            def m_chk(later):
                for n, (_, g2, b) in enumerate(I3):
                    a(f"s_waitcnt vmcnt({7-n+later})")
                    a(f"v_max3_u32 {v(LV+4+n%2)}, {v(b)}, {v(b+1)}, {v(b+2)}")
                    a(f"v_max_u32 {v(LV+4+n%2)}, {v(LV+4+n%2)}, {v(b+3)}")
                    a(f"v_cmp_eq_u32 {s(8+2*n,2)}, -1, {v(LV+4+n%2)}")
                    if n == 1: a(f"s_or_b64 s[6:7], s[8:9], s[8:9]")
                    if n > 1: a(f"s_or_b64 s[6:7], s[6:7], {s(8+2*n-2,2)}")
                a(f"s_or_b64 s[6:7], s[6:7], s[22:23]")
                a(f"s_cbranch_scc0 G_c3_ok")
            def m_ld():
                for n, (_, g2, b) in enumerate(I3):
                    a(f"s_mov_b64 exec, {s(8+2*n,2)}")
                    a(f"buffer_load_dwordx4 {v(b,4)}, {v(vL16)}, {s(rWS,4)}, {s(sO3+n)} offen sc1")
                a(f"s_mov_b64 exec, -1")
            m_chk(0)
            for _ in range(MPD):
                m_ld()
                a(f"s_sleep {MSP}")
            spin_begin(a, "G_c3")
            m_ld()
            m_chk(8*MPD)
            spin_retry(a, "G_c3", MSL)
        else:
            c_chk(I3)
            a(f"s_cbranch_vccz G_c3_ok")
            c_spin("G_c3", I3, 0)
        c_mm(I3)
    else:
        cons([0, 1], [OB, RT_])
        stamp(a, 9)
        red(1)
        stamp(a, 10)
        cons([2], [OB]); cons([3], [OB])
    stamp(a, 11)
    a.nop(12)
    for q in range(2):
        for i in range(4):
            a(f"v_cvt_pk_bf16_f32 {v(RT_+4*q+i)}, {v(ACC+8*q+2*i)}, {v(ACC+8*q+2*i+1)}")
        a(f"buffer_store_dwordx4 {v(RT_+4*q,4)}, {v(vXO)}, {s(rOUT,4)}, {s(sXO)} offen offset:{16*q}{['', ' sc1', ' nt', ' sc0 sc1', ' sc1 nt'][OST]}")
    a(f"s_add_u32 s6, s2, {s(sJ)}")
    a(f"s_cmp_eq_u32 s6, 0")
    a(f"s_cbranch_scc0 G_end")
    a(f"s_mov_b64 exec, 1")
    a(f"v_mov_b32 v56, {s(sTAG)}")
    a(f"v_mov_b32 v57, {s(sTAG+1)}")
    a(f"s_mov_b32 s6, {EP}")
    a(f"buffer_store_dwordx2 v[56:57], off, {s(rWS,4)}, s6 sc1")
    a.label("G_end")
    endpgm(a, 12)

    if DEF:
        sF = T + 2
        I2x = [(2, g2, OB + 4*g2) for g2 in range(8)]
        a.label("G_x3")
        reduce_now()
        c_spin("G_c01", I0 + J1, SL2)
        stamp(a, 9)
        a(f"s_setprio {GLO}")
        c_mm(I0)
        c_ld(I2x)
        c_mm(J1)
        wread(3)
        a(f"s_setprio {GHI}")
        c_chk(I2x)
        a(f"s_mov_b32 {s(sF)}, 0")
        a(f"s_cbranch_vccnz G_red1")
        a(f"s_mov_b32 {s(sF)}, 1")
        c_mm(I2x)
        a(f"s_branch G_red1")
        a.label("G_s0")
        c_spin("G_d0", I0, 2, 5)
        a(f"s_branch G_b0")
        a.label("G_s1")
        c_spin("G_d1", J1, 2, 5)
        c_spin("G_d2", J2, 2, 5)
        a(f"s_branch G_b1")
        a.label("G_s2")
        c_spin("G_c2", I2, 2)
        c_mm(I2)
        a(f"s_branch G_k3")
    a.label("G_fb")
    FS, FC, FO, FK, FV, FQ, FI, FVo = 80, 96, RT_, 112, 116, 124, 56, 57
    a(f"s_lshl_b32 s7, {s(sPHS)}, 10")
    a(f"s_add_u32 s7, s7, {L_QT}")
    a(f"v_add_u32 {v(FQ)}, s7, {v(vL16)}")
    a(f"ds_read_b128 {v(FQ,4)}, {v(FQ)}")
    a(f"s_waitcnt lgkmcnt(0)")
    a(f"v_mov_b32 {v(FI)}, 0xdddddddd")
    a(f"v_mov_b32 {v(FC)}, 0xff800000")
    a(f"s_mov_b32 s6, {KF}")
    a.label("G_fb1")
    a(f"buffer_load_dwordx4 {v(FK,4)}, {v(vL16)}, {s(rWS,4)}, s6 offen sc1")
    a(f"s_waitcnt vmcnt(0)")
    a(f"v_mfma_f32_32x32x16_bf16 {v(FS,16)}, {v(FK,4)}, {v(FQ,4)}, 0")
    a.nop(12)
    for i in range(8):
        a(f"v_maximum3_f32 {v(FC)}, {v(FC)}, {v(FS+2*i)}, {v(FS+2*i+1)}")
    a(f"s_add_u32 s6, s6, 1024")
    a(f"s_cmp_lt_u32 s6, {KF + 65536}")
    a(f"s_cbranch_scc1 G_fb1")
    a(f"v_mov_b32 {v(FC+1)}, {v(FC)}")
    a(f"s_nop 1")
    a(f"v_permlane32_swap_b32 {v(FC)}, {v(FC+1)}")
    a(f"v_and_b32 {v(FVo)}, 31, v1")
    a(f"v_cmp_eq_u32 vcc, 16, {v(FVo)}")
    a(f"v_maximum3_f32 {v(FC)}, {v(FC)}, {v(FC+1)}, {v(FC+1)}")
    a(f"v_mov_b32 {v(FV)}, 0x3f803f80")
    a(f"v_cndmask_b32 {v(FV)}, 0, {v(FV)}, vcc")
    a(f"v_sub_f32 {v(FC)}, 0, {v(FC)}")
    for i in range(1, 8): a(f"v_mov_b32 {v(FV+i)}, {v(FV)}")
    for i in range(1, 16): a(f"v_mov_b32 {v(FC+i)}, {v(FC)}")
    for i in range(16): a(f"v_mov_b32 {v(FO+i)}, 0")
    a(f"v_and_b32 {v(FVo)}, 15, v1")
    a(f"v_lshrrev_b32 {v(FS)}, 5, v1")
    a(f"v_lshlrev_b32 {v(FVo)}, 4, {v(FVo)}")
    a(f"v_lshl_add_u32 {v(FVo)}, {v(FS)}, 8, {v(FVo)}")
    a(f"s_mov_b32 s6, {KF}")
    a.label("G_fb2")
    a(f"s_add_u32 s7, s6, {VF - KF}")
    a(f"buffer_load_dwordx4 {v(FK,4)}, {v(vL16)}, {s(rWS,4)}, s6 offen sc1")
    a(f"s_mov_b32 exec_lo, 0xffff")
    a(f"s_mov_b32 exec_hi, 0xffff")
    a(f"buffer_load_dwordx4 {v(FV,4)}, {v(FVo)}, {s(rWS,4)}, s7 offen sc1")
    a(f"buffer_load_dwordx4 {v(FV+4,4)}, {v(FVo)}, {s(rWS,4)}, s7 offen offset:512 sc1")
    a(f"s_mov_b64 exec, -1")
    a(f"s_waitcnt vmcnt(0)")
    a(f"v_mfma_f32_32x32x16_bf16 {v(FS,16)}, {v(FK,4)}, {v(FQ,4)}, {v(FC,16)}")
    a.nop(12)
    for i in range(16): a(f"v_exp_f32 {v(FS+i)}, {v(FS+i)}")
    a(f"s_nop 1")
    a(f"v_smfmac_f32_32x32x32_bf16 {v(FO,16)}, {v(FV,4)}, {v(FS,8)}, {v(FI)}")
    a(f"v_smfmac_f32_32x32x32_bf16 {v(FO,16)}, {v(FV+4,4)}, {v(FS+8,8)}, {v(FI)}")
    a.nop(16)
    a(f"s_add_u32 s6, s6, 1024")
    a(f"s_cmp_lt_u32 s6, {KF + 65536}")
    a(f"s_cbranch_scc1 G_fb2")
    a(f"v_mov_b32 {v(FO+9)}, {v(FO+8)}")
    a(f"s_nop 1")
    a(f"v_permlane32_swap_b32 {v(FO+8)}, {v(FO+9)}")
    a(f"s_nop 1")
    a(f"v_rcp_f32 {v(LV+2)}, {v(FO+8)}")
    a(f"s_cmp_lt_u32 {s(sPHS)}, 4")
    a(f"s_cbranch_scc1 G_ret0")
    a(f"s_branch G_ret1")

    a.label("G_idle")
    a(f"s_waitcnt vmcnt(0) lgkmcnt(0)")
    lds_inc(a, vSY, SY_WQ, vONE)
    fix_tag(a)
    stamp(a, 1)
    stamp(a, 2)
    stamp(a, 3)
    lds_inc(a, vSY, SY_XFREE, vONE)
    a(f"s_mov_b32 {s(T+8)}, 2")
    a(f"s_branch G_hpub")


def gen_kv(a, isv):
    real = a
    if isv: a = Asm()
    vm = VM(a)
    sfx = "v" if isv else "k"
    a("s_setprio 3")
    ids(a)
    vSY, vONE, vU = 2, 3, 4
    WK, XK = 128, 64
    vL16, vBW, vTk, vXk = 5, 6, 7, 11
    MA, SX, CS, ON, Q0, Q1 = 20, 24, 28, 32, 36, 37
    sTG = T + 1
    a(f"v_lshlrev_b32 {v(vL16)}, 4, v1")
    a(f"v_lshrrev_b32 v12, 4, v1")
    a(f"v_and_b32 v13, 15, v1")
    a(f"v_lshlrev_b32 {v(vXk)}, 10, v13")
    a(f"v_lshl_add_u32 {v(vXk)}, v12, 4, {v(vXk)}")
    a(f"s_and_b32 {s(sTG)}, {s(sG)}, 3")
    a(f"s_lshl_b32 {s(T+4)}, {s(sB)}, 16")
    a(f"s_lshl_b32 s6, {s(sTG)}, 14")
    a(f"s_add_u32 {s(T+4)}, {s(T+4)}, s6")
    a(f"s_waitcnt lgkmcnt(0)")
    srd(a, rX, sPX, 2097152)
    for u in range(16):
        vm.issue(("xk", u), f"buffer_load_dwordx4 {v(XK+4*u,4)}, {v(vXk)}, {s(rX,4)}, {s(T+4)} offen offset:{64*u}")
    a(f"s_cmp_{'lt' if KHI else 'ge'}_u32 {s(sG)}, 4")
    a(f"s_cselect_b32 s6, {s(sPWV)}, {s(sPWK)}")
    a(f"s_cselect_b32 s7, {s(sPWV+1)}, {s(sPWK+1)}")
    srd(a, rWB, 6, 16384)
    for u in range(16):
        if u % 4 == 0: a(f"s_movk_i32 s6, {u*1024}")
        vm.issue(("wk", u), f"buffer_load_dwordx4 {v(WK+4*u,4)}, {v(vL16)}, {s(rWB,4)}, s6 offen offset:{(u%4)*1024}")
    args_ready(a)
    a(f"s_cmp_{'lt' if KHI else 'ge'}_u32 {s(sG)}, 4")
    a(f"s_cbranch_scc1 V_start")
    a = real; vm.a = a
    srd(a, rWS, sPWS, WS_SIZE)
    a(f"s_mov_b32 {s(sJ)}, 3")
    a(f"v_mov_b32 {v(vSY)}, {L_SY}")
    a(f"v_mov_b32 {v(vONE)}, 1")
    a(f"v_add_u32 {v(vBW)}, {L_BNC + 3*4096}, {v(vL16)}")
    a(f"v_bfe_u32 v14, v1, 2, 2")
    a(f"v_lshl_add_u32 v14, v12, 3, v14")
    a(f"v_and_b32 v15, 3, v1")
    a(f"v_lshlrev_b32 v15, 3, v15")
    a(f"v_lshl_add_u32 {v(vTk)}, v14, 5, v15")
    a(f"v_add_u32 {v(vTk)}, {L_BNC + 3*4096}, {v(vTk)}")
    a(f"v_and_b32 v14, 1, v12")
    a(f"v_lshrrev_b32 v15, 1, v12")
    a(f"v_lshlrev_b32 v13, 4, v13")
    if isv:
        a(f"v_lshl_add_u32 v19, v15, 8, v13")
        a(f"v_lshl_add_u32 v19, v14, 3, v19")
    else:
        a(f"v_lshl_add_u32 v18, v14, 9, v13")
        a(f"v_lshl_add_u32 v18, v15, 3, v18")
    a(f"s_lshr_b32 s7, {s(sTG)}, 1")
    a(f"s_lshl1_add_u32 s7, {s(sB)}, s7")
    a(f"s_lshl_b32 s7, s7, 10")
    a(f"s_and_b32 s6, {s(sTG)}, 1")
    a(f"s_lshl_b32 {s(T+2+isv)}, s6, {8+isv}")
    a(f"s_add_u32 {s(T+2+isv)}, {s(T+2+isv)}, s7")
    a(f"s_add_u32 {s(T+2+isv)}, {s(T+2+isv)}, {VF if isv else KF}")
    a(f"v_mul_u32_u24 v16, {RSTR}, v1")
    a(f"s_and_b32 s6, s2, 7")
    a(f"s_lshr_b32 s7, s6, {[3,2,1,0][[1,2,4,8].index(NREP)]}")
    a(f"s_mul_i32 {s(T+6)}, s7, {RSTR}")
    a(f"s_add_u32 {s(T+6)}, {s(T+6)}, {FL_KV}")
    a(f"s_lshr_b32 s7, s2, 3")
    a(f"s_mul_i32 s6, s6, {LSTR}")
    a(f"s_lshl2_add_u32 s6, s7, s6")
    a(f"v_lshrrev_b32 v14, 3, v1")
    a(f"v_mul_u32_u24 v14, {LSTR}, v14")
    a(f"v_and_b32 v15, 7, v1")
    a(f"v_lshl_add_u32 v10, v15, 4, v14")
    a(f"s_add_u32 {s(T+5)}, s6, {FL_KV}")
    for i in range(4): a(f"v_mov_b32 {v(ON+i)}, 0x3f803f80")
    a(f"v_mov_b32 {v(Q0)}, 0")
    a(f"v_mov_b32 {v(Q1)}, 0")
    inv = f2u(1.0/512)
    for u in range(16):
        vm.wait(("xk", u))
        a(f"v_mfma_f32_16x16x32_bf16 {v(SX,4)}, {v(ON,4)}, {v(XK+4*u,4)}, {'0' if u == 0 else v(SX,4)}")
        for d in range(4): a(f"v_dot2_f32_bf16 {v(Q0+d%2)}, {v(XK+4*u+d)}, {v(XK+4*u+d)}, {v(Q0+d%2)}")
    if isv:
        srd(a, rWA, sPWK, 16384)
        if WKPF:
            a(f"v_lshlrev_b32 v14, 7, v1")
            a(f"s_movk_i32 s6, 8192")
            vm.issue("pf", f"buffer_load_dword v15, v14, {s(rWA,4)}, 0 offen")
            vm.issue("pf", f"buffer_load_dword v15, v14, {s(rWA,4)}, s6 offen")
    a(f"s_waitcnt lgkmcnt(0)")
    fix_tag(a)
    stamp(a, 1)
    stats = [
        [f"v_add_f32 {v(Q0)}, {v(Q0)}, {v(Q1)}", f"v_mov_b32 {v(Q1)}, {v(Q0)}"],
        [f"v_permlane16_swap_b32 {v(Q0)}, {v(Q1)}", f"v_mul_f32 {v(SX)}, {inv:#x}, {v(SX)}", f"v_add_f32 {v(Q0)}, {v(Q0)}, {v(Q1)}",
         f"v_mov_b32 {v(Q1)}, {v(Q0)}", f"v_mul_f32 {v(SX+1)}, {v(SX)}, {v(SX)}"],
        [f"v_permlane32_swap_b32 {v(Q0)}, {v(Q1)}", f"v_mov_b32 {v(SX+2)}, {inv:#x}", f"v_add_f32 {v(Q0)}, {v(Q0)}, {v(Q1)}",
         f"v_fma_f32 {v(Q0)}, {v(Q0)}, {v(SX+2)}, -{v(SX+1)}", f"v_max_f32 {v(Q0)}, 0, {v(Q0)}"],
        [f"v_cvt_pk_bf16_f32 {v(Q0)}, {v(SX)}, {v(Q0)}", f"v_lshlrev_b32 {v(SX)}, 16, {v(Q0)}", f"v_and_b32 {v(Q0)}, 0xffff0000, {v(Q0)}",
         f"v_add_f32 {v(Q0)}, {f2u(1e-5):#x}, {v(Q0)}"],
        [f"v_cvt_pk_bf16_f32 {v(Q0)}, {v(Q0)}, {v(Q0)}", f"v_and_b32 {v(Q0)}, 0xffff0000, {v(Q0)}", f"v_sqrt_f32 {v(Q0)}, {v(Q0)}"],
        [f"v_cvt_pk_bf16_f32 {v(Q0)}, {v(Q0)}, {v(Q0)}", f"v_and_b32 {v(Q0)}, 0xffff0000, {v(Q0)}", f"v_rcp_f32 {v(Q0)}, {v(Q0)}"]]
    if True:
        fill = [list(x) for x in stats]
        if isv:
            for src_, dst in ((SX, 40), (Q0, 44)):
                for G_ in range(4):
                    fill.append([f"v_mov_b32_dpp {v(dst+r)}, {v(src_)} row_newbcast:{4*G_+r} row_mask:{1<<G_:#x} bank_mask:0xf" for r in range(4)])
        def mm(u):
            c = lambda r: "0" if u == 0 else v(r, 4)
            if isv:
                a(f"v_mfma_f32_16x16x32_bf16 {v(CS,4)}, {v(ON,4)}, {v(WK+4*u,4)}, {c(CS)}")
                a(f"v_mfma_f32_16x16x32_bf16 {v(MA,4)}, {v(XK+4*u,4)}, {v(WK+4*u,4)}, {c(MA)}")
            else:
                a(f"v_mfma_f32_16x16x32_bf16 {v(CS,4)}, {v(WK+4*u,4)}, {v(ON,4)}, {c(CS)}")
                a(f"v_mfma_f32_16x16x32_bf16 {v(MA,4)}, {v(WK+4*u,4)}, {v(XK+4*u,4)}, {c(MA)}")
        LAG = 3
        for u in range(16 + LAG):
            if u < 16:
                vm.wait(("wk", u))
                a(f"ds_write_b128 {v(vBW)}, {v(WK+4*u,4)} offset:{(u%4)*1024}")
                a(f"ds_read_b64_tr_b16 {v(WK+4*u,2)}, {v(vTk)} offset:{(u%4)*1024}")
                a(f"ds_read_b64_tr_b16 {v(WK+4*u+2,2)}, {v(vTk)} offset:{(u%4)*1024+128}")
            if fill:
                for ins in fill.pop(0): a(ins)
            if u >= LAG:
                a(f"s_waitcnt lgkmcnt({3*(min(u, 15) - (u - LAG))})")
                mm(u - LAG)
        assert not fill
        a.nop(8)
        if isv:
            for i in range(2):
                a(f"v_pk_fma_f32 {v(MA+2*i,2)}, {v(CS+2*i,2)}, {v(40+2*i,2)}, {v(MA+2*i,2)} neg_lo:[1,0,0] neg_hi:[1,0,0]")
            for i in range(2): a(f"v_pk_mul_f32 {v(MA+2*i,2)}, {v(MA+2*i,2)}, {v(44+2*i,2)}")
        else:
            for i in range(2):
                a(f"v_pk_fma_f32 {v(MA+2*i,2)}, {v(CS+2*i,2)}, {v(SX,2)}, {v(MA+2*i,2)} op_sel_hi:[1,0,1] neg_lo:[1,0,0] neg_hi:[1,0,0]")
            for i in range(2): a(f"v_pk_mul_f32 {v(MA+2*i,2)}, {v(MA+2*i,2)}, {v(Q0,2)} op_sel_hi:[1,0]")
        a(f"v_cvt_pk_bf16_f32 {v(MA)}, {v(MA)}, {v(MA+1)}")
        a(f"v_cvt_pk_bf16_f32 {v(MA+1)}, {v(MA+2)}, {v(MA+3)}")
        a(f"buffer_store_dwordx2 {v(MA,2)}, v{18+isv}, {s(rWS,4)}, {s(T+2+isv)} offen sc1")
    stamp(a, 2)
    X2 = 192
    vm.drained()
    def sloads():
        if isv:
            for u in range(16):
                if u % 4 == 0: a(f"s_movk_i32 s6, {u*1024}")
                vm.issue(("w2", u), f"buffer_load_dwordx4 {v(WK+4*u,4)}, {v(vL16)}, {s(rWA,4)}, s6 offen offset:{(u%4)*1024}")
    if SPOS == 1: sloads()
    a(f"v_mov_b32 v17, {s(sTAG)}")
    a(f"s_mov_b64 exec, {(1 << NREP) - 1}")
    a(f"s_waitcnt vmcnt({len(vm.q)})")
    vm.issue("fl", f"buffer_store_dword v17, v16, {s(rWS,4)}, {s(T+5)} offen sc1")
    a(f"s_mov_b64 exec, -1")
    stamp(a, 3)
    pl = lambda q: a(f"buffer_load_dwordx4 {v(20+4*q,4)}, v10, {s(rWS,4)}, {s(T+6)} offen sc1")
    if DBG & 8:
        a(f"s_waitcnt vmcnt(0)")
        stamp(a, 5)
        pl(0)
        a(f"s_waitcnt vmcnt(0)")
        stamp(a, 6)
        pl(0)
        a(f"s_waitcnt vmcnt(0)")
        stamp(a, 7)
    a(f"s_setprio {KSP}")
    if SPOS == 0: sloads()
    if not isv:
        a(f"s_branch G_ks")
        return
    a(f"v_and_b32 v14, 1, v12")
    a(f"v_lshrrev_b32 v15, 1, v12")
    a(f"v_lshl_add_u32 v18, v14, 9, v13")
    a(f"v_lshl_add_u32 v18, v15, 3, v18")
    LG = 3
    for u in range(16 + LG):
        if u < 16:
            vm.wait(("w2", u))
            a(f"ds_write_b128 {v(vBW)}, {v(WK+4*u,4)} offset:{(u%4)*1024}")
            a(f"ds_read_b64_tr_b16 {v(WK+4*u,2)}, {v(vTk)} offset:{(u%4)*1024}")
            a(f"ds_read_b64_tr_b16 {v(WK+4*u+2,2)}, {v(vTk)} offset:{(u%4)*1024+128}")
        if u >= LG:
            q = u - LG
            c = lambda r: "0" if q == 0 else v(r, 4)
            a(f"s_waitcnt lgkmcnt({3*(min(u, 15) - q)})")
            a(f"v_mfma_f32_16x16x32_bf16 {v(CS,4)}, {v(WK+4*q,4)}, {v(ON,4)}, {c(CS)}")
            a(f"v_mfma_f32_16x16x32_bf16 {v(MA,4)}, {v(WK+4*q,4)}, {v(XK+4*q,4)}, {c(MA)}")
    a.nop(8)
    for i in range(2):
        a(f"v_pk_fma_f32 {v(MA+2*i,2)}, {v(CS+2*i,2)}, {v(SX,2)}, {v(MA+2*i,2)} op_sel_hi:[1,0,1] neg_lo:[1,0,0] neg_hi:[1,0,0]")
    for i in range(2): a(f"v_pk_mul_f32 {v(MA+2*i,2)}, {v(MA+2*i,2)}, {v(Q0,2)} op_sel_hi:[1,0]")
    a(f"v_cvt_pk_bf16_f32 {v(MA)}, {v(MA)}, {v(MA+1)}")
    a(f"v_cvt_pk_bf16_f32 {v(MA+1)}, {v(MA+2)}, {v(MA+3)}")
    a.label("G_ks")
    if DBG & 16: stamp(a, 5)
    a(f"v_add_u32 v18, {L_KS}, v18")
    a(f"ds_write_b64 v18, {v(MA,2)}")
    if ES:
        a(f"s_andn2_b32 s6, 2, {s(sTG)}")
        a(f"s_lshl_b32 s6, s6, 8")
        a(f"v_and_b32 v15, 128, v13")
        a(f"v_add3_u32 v15, s6, v13, v15")
    else:
        a(f"s_xor_b32 s6, {s(sTG)}, 1")
        a(f"s_lshl_b32 s6, s6, 8")
        a(f"v_add_u32 v15, s6, v13")
    a(f"v_mul_u32_u24 v14, {XN_STRIDE//16}, v15")
    a(f"v_lshl_add_u32 v14, v12, 4, v14")
    a(f"v_lshrrev_b32 v15, 2, v15")
    a(f"v_add_u32 v15, {v(vSY)}, v15")
    lds_wait(a, "G_kl", vSY, SY_L0 if ES else SY_LN, 4, 19, KLS)
    if DBG & 16: stamp(a, 6)
    if not ES: a(f"s_setprio 3")
    for u in range(14): a(f"ds_read_b128 {v(XK+4*u,4)}, v14 offset:{64*u}")
    pl(0)
    for u in range(16):
        if u < 2: a(f"ds_read_b128 {v(XK+4*(14+u),4)}, v14 offset:{64*(14+u)}")
        if u == 2: a(f"ds_read_b32 v56, v15 offset:{SY_RS}")
        a(f"s_waitcnt lgkmcnt({14 if u < 3 else 16-u})")
        a(f"v_mfma_f32_16x16x32_bf16 {v(44+4*(u&1),4)}, {v(WK+4*u,4)}, {v(XK+4*u,4)}, {'0' if u < 2 else v(44+4*(u&1),4)}")
    a(f"s_waitcnt lgkmcnt(0)")
    a.nop(7)
    for i in range(2): a(f"v_pk_add_f32 {v(44+2*i,2)}, {v(44+2*i,2)}, {v(48+2*i,2)}")
    for i in range(2): a(f"v_pk_mul_f32 {v(44+2*i,2)}, {v(44+2*i,2)}, v[56:57] op_sel_hi:[1,0]")
    for i in range(2): a(f"v_cvt_pk_bf16_f32 {v(44+i)}, {v(44+2*i)}, {v(44+2*i+1)}")
    a(f"ds_write_b64 v18, v[44:45] offset:256")
    a(f"ds_write_b32 {v(vSY)}, {v(vONE)} offset:{SY_KS}")
    a(f"s_setprio 3")
    stamp(a, 14)
    assert NPOLL == 1
    a(f"s_mov_b32 {s(sSPIN)}, {SPIN_MAX}")
    a(f"s_branch G_pk{sfx}_in")
    a.label(f"G_pk{sfx}_top")
    for q in range(NPOLL):
        pl((q - 1) % NPOLL)
        a.label(f"G_pk{sfx}_in")
        a(f"s_waitcnt vmcnt({NPOLL-1})")
        b_ = 20 + 4*q
        for i in range(4): a(f"v_xor_b32 {v(b_+i)}, {v(b_+i)}, v17")
        a(f"v_or3_b32 {v(b_)}, {v(b_)}, {v(b_+1)}, {v(b_+2)}")
        a(f"v_or_b32 {v(b_)}, {v(b_)}, {v(b_+3)}")
        a(f"v_cmp_ne_u32 vcc, 0, {v(b_)}")
        a(f"s_nop 0")
        a(f"s_cbranch_vccz G_pk{sfx}_ok")
        if q < NPOLL - 1 and PSLEEP: a(f"s_sleep {PSLEEP}")
    spin_retry(a, "G_pk" + sfx, PSLEEP)
    a(f"ds_write_b32 {v(vSY)}, {v(vONE)} offset:{SY_KVRDY}")
    if DBG & 8:
        a(f"s_sub_u32 s6, {SPIN_MAX}, {s(sSPIN)}")
        a(f"s_mul_i32 s6, s6, 100")
        a(f"s_add_u32 {s(70+2*8)}, s6, s70")
        pl(0)
        a(f"s_waitcnt vmcnt(0)")
        stamp(a, 9)
    stamp(a, 13)
    if not BAL: a(f"s_setprio {GLO}")
    setup_u(a)
    if BAL:
        assert KHI
        sP, sWo, sRho, sW0 = T+1, T+2, T+3, T+4
        srd(a, rWB, sPW1, 1409024)
        a(f"s_lshr_b32 s6, {s(sG)}, 1")
        a(f"s_add_u32 {s(sP)}, s6, 18")
        a(f"s_and_b32 {s(T+9)}, {s(sG)}, 1")
        a(f"s_movk_i32 s6, 2752")
        a(f"v_lshlrev_b32 v13, 4, v9")
        a(f"v_mad_u32_u24 v5, v8, s6, v13")
        a(f"s_lshl_b32 {s(sW0)}, {s(sP)}, 7")
        a(f"s_and_b32 {s(sRho)}, {s(sB)}, {W1ROT}")
        for u in range(W1D):
            if u % 8 == 0:
                a(f"s_xor_b32 s6, {s(sRho)}, {u//8}")
                a(f"s_mul_i32 s6, s6, {64*2752}")
                a(f"s_add_u32 {s(sWo)}, {s(sW0)}, s6")
            a(f"buffer_load_dwordx4 {v(128+4*u,4)}, v5, {s(rWB,4)}, {s(sWo)} offen")
            if u % 8 != 7: a(f"s_add_u32 {s(sWo)}, {s(sWo)}, {8*2752}")
        a(f"s_sub_u32 {s(sTAG)}, {s(sTAG)}, 1")
        a(f"s_subb_u32 {s(sTAG+1)}, {s(sTAG+1)}, 0")
        lds_wait(a, "G_wq3", vSY, SY_QCNT, 4, 16)
        a(f"s_setprio {F3P}")
        a(f"s_branch G_f1")
        a.label("G_wod")
    else:
        lds_inc(a, vSY, SY_XFREE, vONE)
        srd(a, rWA, sPWO, 524288)
        a(f"s_and_b32 {s(T+10)}, {s(sB)}, 7")
        a(f"v_and_b32 v16, 3, v1")
        a(f"v_lshl_add_u32 v16, v16, 2, {v(vSY)}")
        spin_begin(a, "G_pf")
        a(f"ds_read_b32 v17, v16 offset:{SY_CF}")
        a(f"s_waitcnt lgkmcnt(0)")
        a(f"v_cmp_eq_u32 vcc, 0, v17")
        a(f"s_nop 0")
        a(f"s_cbranch_vccz G_pf_ok")
        spin_retry(a, "G_pf", 4)
        a(f"s_lshl_b32 s7, {s(T+10)}, 16")
        for u in range(8):
            a(f"buffer_load_dwordx4 {v(192+4*u,4)}, {v(vU)}, {s(rWA,4)}, s7 offen")
            a(f"s_add_u32 s7, s7, 8192")
    a(f"v_add_u32 v5, {8192-1024}, {v(vU)}")
    lds_wait2(a, "G_wqf", vSY, SY_QCNT, 8, 16, SL1)
    a(f"s_setprio {GHI}")
    for hh in range(4):
        for g2 in range(8):
            a(f"s_mov_b32 m0, {L_STG + 16384*hh + 2048*g2}")
            a(f"s_mov_b32 s7, {65536*g2 + 16384*hh}")
            a(f"buffer_load_dwordx4 {v(vU)}, {s(rWA,4)}, s7 offen lds")
            a(f"buffer_load_dwordx4 v5, {s(rWA,4)}, s7 offen offset:1024 lds")
    a(f"s_waitcnt vmcnt(16)")
    a(f"ds_write_b32 {v(vSY)}, {v(vONE)} offset:{SY_WO}")
    a(f"s_branch G_ffn2")

def descriptor(name, vgpr=256, sgpr=102):
    return f""".amdhsa_kernel {name}
  .amdhsa_next_free_vgpr {vgpr}
  .amdhsa_next_free_sgpr {sgpr}
  .amdhsa_accum_offset {min(256, (vgpr+3)//4*4)}
  .amdhsa_group_segment_fixed_size 0
  .amdhsa_kernarg_size 88
  .amdhsa_user_sgpr_count 2
  .amdhsa_user_sgpr_kernarg_segment_ptr 1
  .amdhsa_system_sgpr_workgroup_id_x 1
.end_amdhsa_kernel
"""

def main(out):
    hdr = open("cdna_kernels/" + NAME + ".s.ref").read().split("; Override")[0]
    a = Asm()
    name = NAME + "_kernel"
    a('.amdgcn_target "amdgcn-amd-amdhsa--gfx950"')
    a(".text")
    a(f".globl {name}")
    a(f".p2align 8")
    a(f".type {name},@function")
    a.label(name)
    a(f"s_cmp_ge_u32 s2, 256")
    a(f"s_cbranch_scc1 K_exit")
    stamp(a, 0)
    if PROF:
        for i in range(1, 15): a(f"s_mov_b32 {s(70+2*i)}, 0")
    a(f"s_load_dwordx16 s[8:23], s[0:1], 0")
    a(f"s_load_dwordx4 s[24:27], s[0:1], 64")
    a(f"s_load_dwordx2 s[28:29], s[0:1], 80")
    a(f"v_lshrrev_b32 v1, 6, v0")
    a(f"s_nop 0")
    a(f"v_readfirstlane_b32 {s(sW)}, v1")
    assert MAP84
    a(f"s_cmp_lt_u32 {s(sW)}, 4")
    a(f"s_cbranch_scc1 A_start")
    a(f"s_cmp_lt_u32 {s(sW)}, 7")
    a(f"s_cbranch_scc1 G_start")
    gen_kv(a, 0)
    a(".p2align 6")
    a.label("V_start")
    gen_kv(a, 1)
    a(".p2align 6")
    a.label("A_start")
    gen_a(a)
    a.label("K_exit")
    a("s_endpgm")
    a(".p2align 6")
    a.label("G_start")
    gen_g(a)
    pr = check_hazards(a.lines, name)
    for p in pr[:5]: print("HAZARD", p)
    launch = f"; @launch grid=(256,1,1) block=(512,1,1) lds={LDS_TOTAL}\n"
    txt = hdr + launch + a.text() + '.section .rodata,"a"\n.p2align 6\n' + descriptor(name)
    open(out, "w").write(txt)
    print("wrote", out, len(txt), "bytes; LDS", LDS_TOTAL)

if __name__ == "__main__":
    main(sys.argv[1] if len(sys.argv) > 1 and not sys.argv[1].startswith("--") else "cdna_kernels/" + NAME + ".s")
```
